```python
import torch

def _softmax(x, axis=-1):
    return torch.softmax(x, dim=axis)
def _gelu(x):
    return torch.nn.functional.gelu(x, approximate="tanh")
def _silu(x):
    return torch.nn.functional.silu(x)
def _sigmoid(x):
    return torch.sigmoid(x)
def _layernorm(x, axis=-1, eps=1e-5):
    m = x.mean(dim=axis, keepdim=True)
    v = x.var(dim=axis, keepdim=True, unbiased=False)
    return (x - m) / torch.sqrt(v + eps)
def _scatter_add(tgt, idx, src, axis=0):
    return tgt.clone().index_add_(axis, idx, src)
def _segment_sum(src, seg, n):
    out = torch.zeros((n,) + src.shape[1:], dtype=src.dtype)
    return out.index_add_(0, seg, src)
def _pad(x, pw):
    flat = tuple(v for pair in reversed(pw) for v in pair)
    return torch.nn.functional.pad(x, flat)

kernel_name = 'parallel_sum__ssm_conv_s4__dense_activation_relu__prompt'

def setup_inputs():

    _w = (lambda a: (lambda t: t.to(torch.bfloat16) if t.is_floating_point() else t)(torch.as_tensor(a)))
    def _A_setup():
        B, L, D, N = 1, 2048, 512, 128
        A_re = -(lambda _x: torch.exp(torch.as_tensor(_x)))((lambda *s: torch.randn(*s, dtype=torch.bfloat16) * 3.2)(D, N))
        A_im = torch.pi * (lambda *s: torch.randn(*s, dtype=torch.bfloat16) * 0.1)(D, N)
        B_re = (lambda *s: torch.randn(*s, dtype=torch.bfloat16) * 0.4)(D, N)
        B_im = (lambda *s: torch.randn(*s, dtype=torch.bfloat16) * 0.4)(D, N)
        C_re = (lambda *s: torch.randn(*s, dtype=torch.bfloat16) * 0.4)(D, N)
        C_im = (lambda *s: torch.randn(*s, dtype=torch.bfloat16) * 0.4)(D, N)
        log_dt = (lambda *s: torch.randn(*s, dtype=torch.bfloat16) * 0.1)(D) * 0.5 - 4.0
        Dskip = (lambda *s: torch.randn(*s, dtype=torch.bfloat16) * 0.2)(D)
        return {
            "u": _w((lambda *s: torch.randn(*s, dtype=torch.bfloat16) * 0.05)(B, L, D)),
            "A_re": _w(A_re),
            "A_im": _w(A_im),
            "B_re": _w(B_re),
            "B_im": _w(B_im),
            "C_re": _w(C_re),
            "C_im": _w(C_im),
            "log_dt": _w(log_dt),
            "Dskip": _w(Dskip),
        }
    _A_in = _A_setup()

    def _B_setup():
        B, S, D, Dff = 1, 2048, 512, 1376
        return {
            "x": _w((lambda *s: torch.randn(*s, dtype=torch.bfloat16) * 0.05)(B, S, D)),
            "w1": _w((lambda *s: torch.randn(*s, dtype=torch.bfloat16) * 0.05)(D, Dff)),
            "w2": _w((lambda *s: torch.randn(*s, dtype=torch.bfloat16) * 0.05)(Dff, D)),
        }
    _B_in = _B_setup()

    return {
        "A_u": _A_in["u"],
        "A_A_re": _A_in["A_re"],
        "A_A_im": _A_in["A_im"],
        "A_B_re": _A_in["B_re"],
        "A_B_im": _A_in["B_im"],
        "A_C_re": _A_in["C_re"],
        "A_C_im": _A_in["C_im"],
        "A_log_dt": _A_in["log_dt"],
        "A_Dskip": _A_in["Dskip"],
        "B_x": _B_in["x"],
        "B_w1": _B_in["w1"],
        "B_w2": _B_in["w2"],
    }

def reference(A_u, A_A_re, A_A_im, A_B_re, A_B_im, A_C_re, A_C_im, A_log_dt, A_Dskip, B_x, B_w1, B_w2):
    def _A_ref(u, A_re, A_im, B_re, B_im, C_re, C_im, log_dt, Dskip):
        Bsz, L, D = u.shape
        dt = torch.exp(log_dt)[:, None]
        A = A_re + 1j * A_im
        Bc = B_re + 1j * B_im
        Cc = C_re + 1j * C_im
        logdA = dt * A
        dB = dt * Bc
        l = (lambda x, dt: x.to(dt))(torch.arange(L), A_re.dtype)
        P = torch.exp(logdA[:, :, None] * l[None, None, :])
        K = torch.einsum("dn,dnl,dn->dl", Cc, P, dB).real
        L2 = 2 * L
        Kp = _pad(K, ((0, 0), (0, L)))
        up = (lambda x, *d: x.permute(*d))(u, 0, 2, 1)
        up = _pad(up, ((0, 0), (0, 0), (0, L)))
        Kf = (lambda x, axes=(-2,-1): torch.fft.rfft2(x.float(), dim=axes))(Kp[:, None, :], axes=(-2, -1))
        Uf = (lambda x, axes=(-2,-1): torch.fft.rfft2(x.float(), dim=axes))(up[:, :, None, :], axes=(-2, -1))
        Yf = Uf * Kf[None, :, :, :]
        y = (lambda x, s, axes=(-2,-1): torch.fft.irfft2(x, s=s, dim=axes).to(torch.bfloat16))(Yf, (1, L2), axes=(-2, -1))[:, :, 0, :L]
        y = (lambda x, *d: x.permute(*d))(y, 0, 2, 1) + u * Dskip[None, None, :]
        return y

    def _B_ref(x, w1, w2):
        h = torch.einsum("bsd,df->bsf", x, w1)
        zero = torch.zeros_like(h)
        h = torch.maximum(h, zero)
        return torch.einsum("bsf,fd->bsd", h, w2)

    x = A_u
    xn = _layernorm(x, axis=-1)
    return x + _A_ref(xn, A_A_re, A_A_im, A_B_re, A_B_im, A_C_re, A_C_im, A_log_dt, A_Dskip) + _B_ref(xn, B_w1, B_w2)
```

```python
from gen import *

N_G1 = 240
N_CV = 512
K2_LDS = 46080
UH = 0
KHL = 33792

def gen_k2(a):
    a.label("k2_kernel")
    a(f"""
    s_cmp_ge_u32 s2, {N_G1 + N_CV}
    s_cbranch_scc1 k2_done
    v_lshrrev_b32 v1, 6, v0
    v_and_b32 v2, 63, v0              ; lane
    s_load_dwordx2 s[6:7], s[0:1], 112 ; ws
    v_readfirstlane_b32 s3, v1
    s_cmp_lt_u32 s2, {N_G1}
    s_cbranch_scc1 k2_gemm
    s_load_dwordx2 s[4:5], s[0:1], 64 ; Dskip
    s_sub_u32 s20, s2, {N_G1}         ; d
    s_waitcnt lgkmcnt(0)
    s_and_b32 s21, s20, 0x1fe
    s_lshl_b32 s21, s21, 1
    s_load_dword s22, s[4:5], s21
    """)
    srd_off(a, 8, 6, 7, XT0_OFF, 2 * XT_SZ)
    srd_off(a, 12, 6, 7, KH_OFF, 0x400000)
    srd_off(a, 16, 6, 7, YT_OFF, 0x200000)
    a(f"""
    v_and_b32 v3, 1, v2
    v_mul_u32_u24 v3, {XT_SZ:#x}, v3
    v_and_b32 v4, 62, v2
    v_lshl_add_u32 v3, v4, 1, v3
    s_mul_i32 s23, s20, {XT_RS}       ; d*4224
    s_lshl_b32 s24, s3, 7
    s_add_u32 s24, s24, s23           ; soffset = d*4224 + 128*w
    s_lshl_b32 s25, s3, 10            ; m0 = 1024*w
    s_mov_b32 m0, s25
    v_lshlrev_b32 v5, 4, v0           ; 16*t
    """)
    for i in range(8):
        a(f"buffer_load_dwordx4 v3, s[8:11], s24 offen lds")
        a(f"s_add_u32 m0, m0, 0x1000")
        a(f"s_add_u32 s24, s24, 0x200")
    a(f"""
    s_cmp_lg_u32 s3, 0
    s_cbranch_scc1 k2_cv_skip33
    buffer_load_dwordx4 v3, s[8:11], s24 offen lds
    """)
    a.label("k2_cv_skip33")
    a(f"""
    s_add_u32 s26, s23, 64
    buffer_load_dwordx4 v[8:11], v5, s[8:11], s26 offen
    """)
    a(f"""
    s_and_b32 s27, s3, 1
    s_mul_i32 s27, s27, 192
    s_lshr_b32 s28, s3, 1             ; hl
    s_lshl_b32 s29, s20, 12           ; d*4096
    s_lshl_b32 s30, s28, 21
    s_add_u32 s29, s29, s30           ; soffset
    s_mul_i32 s30, s28, 6144
    s_lshl_b32 s31, s27, 4
    s_add_u32 s30, s30, s31
    s_add_u32 s30, s30, {KHL}         ; m0 base
    s_movk_i32 s32, 683
    s_movk_i32 s33, 96
    s_mov_b32 s34, 0x40000000
    """)
    for j in range(3):
        a(f"""
        v_add_u32 v6, s27, v2
        v_add_u32 v6, {64*j}, v6          ; P
        v_mul_u32_u24 v7, s32, v6
        v_lshrrev_b32 v7, 16, v7          ; P div 96
        v_mul_u32_u24 v12, s33, v7
        v_sub_u32 v6, v6, v12             ; P mod 96
        v_lshl_add_u32 v6, v6, 2, v7      ; g
        v_cmp_gt_u32 vcc, 0x100, v6
        v_lshlrev_b32 v6, 4, v6
        v_mov_b32 v7, s34
        s_mov_b32 m0, s30
        v_cndmask_b32 v6, v7, v6, vcc
        s_add_u32 s30, s30, 0x400
        buffer_load_dwordx4 v6, s[12:15], s29 offen lds
        """)
    a(f"""
    v_and_b32 v4, 31, v2              ; b / a_l
    v_lshrrev_b32 v6, 5, v2           ; kg
    s_mov_b32 s35, 0
    s_cmp_eq_u32 s3, 1
    s_cselect_b32 s35, 48, s35
    s_cmp_eq_u32 s3, 2
    s_cselect_b32 s35, 80, s35
    s_cmp_eq_u32 s3, 3
    s_cselect_b32 s35, 104, s35       ; c_start
    v_lshl_add_u32 v12, v6, 3, v4
    v_add_u32 v12, 1, v12
    v_lshlrev_b32 v12, 4, v12         ; 16*(b+1+8kg)
    s_lshl_b32 s36, s35, 8
    v_add_u32 v12, s36, v12
    v_mul_u32_u24 v13, 96, v6
    v_sub_u32 v13, v13, v4
    v_add_u32 v13, 31, v13
    v_lshlrev_b32 v13, 4, v13
    s_lshl_b32 s36, s35, 3            ; 16*(c/2)
    s_add_u32 s36, s36, {KHL}
    v_add_u32 v13, s36, v13           ; vB
    """)
    ACC1, ACC2, ACC0, ACC3 = 16, 32, 48, 64
    for i in range(64):
        a(f"v_mov_b32 v{16+i}, 0")
    F = [80, 104]
    a("""
    s_waitcnt vmcnt(0) lgkmcnt(0)
    s_barrier
    """)
    def mf(acc, A, B):
        a(f"v_mfma_f32_32x32x16_bf16 v[{acc}:{acc+15}], v[{A}:{A+3}], v[{B}:{B+3}], v[{acc}:{acc+15}]")
    def rd(dst, base, off):
        a(f"ds_read_b128 v[{dst}:{dst+3}], v{base} offset:{off}")
    def single_reads(u, f):
        for cc in range(2):
            c = 2 * u + cc
            rd(f + 12*cc, 12, 256 * c)
            rd(f + 12*cc + 4, 13, 16 * (c // 2) + 3072 * (c & 1))
            rd(f + 12*cc + 8, 13, 16 * (c // 2) + 3072 * (c & 1) + 6144)
    def single_mfma(f):
        mf(ACC1, f, f + 4); mf(ACC2, f, f + 8)
        mf(ACC1, f + 12, f + 16); mf(ACC2, f + 12, f + 20)
    def dual_reads(c, f):
        rd(f, 12, 256 * c + 16384)
        rd(f + 4, 12, 256 * c)
        rd(f + 8, 13, 16 * (c // 2) + 3072 * (c & 1))
        rd(f + 12, 13, 16 * (c // 2) + 3072 * (c & 1) + 6144)
    def dual_mfma(f):
        mf(ACC1, f, f + 8); mf(ACC0, f + 4, f + 8)
        mf(ACC2, f, f + 12); mf(ACC3, f + 4, f + 12)
    a(f"""
    s_cmp_ge_u32 s3, 2
    s_cbranch_scc1 k2_cv_dual_pre
    s_cmp_eq_u32 s3, 0
    s_cselect_b32 s37, 3, 1
    """)
    single_reads(0, F[0])
    a.label("k2_cv_sloop")
    for u in range(8):
        single_reads(u + 1, F[(u + 1) & 1])
        a("s_waitcnt lgkmcnt(6)")
        single_mfma(F[u & 1])
    a(f"""
    v_add_u32 v12, 0x1000, v12
    v_add_u32 v13, 0x80, v13
    s_sub_u32 s37, s37, 1
    s_cmp_lg_u32 s37, 0
    s_cbranch_scc1 k2_cv_sloop
    s_cmp_eq_u32 s3, 0
    s_cbranch_scc1 k2_cv_fin
    """)
    a.label("k2_cv_dual_pre")
    a(f"""
    v_subrev_u32 v12, 0x4000, v12
    s_cmp_eq_u32 s3, 1
    s_cselect_b32 s37, 2, 3
    s_waitcnt lgkmcnt(0)
    """)
    dual_reads(0, F[0])
    a.label("k2_cv_dloop")
    for u in range(8):
        dual_reads(u + 1, F[(u + 1) & 1])
        a("s_waitcnt lgkmcnt(4)")
        dual_mfma(F[u & 1])
    a(f"""
    v_add_u32 v12, 0x800, v12
    v_add_u32 v13, 0x40, v13
    s_sub_u32 s37, s37, 1
    s_cmp_lg_u32 s37, 0
    s_cbranch_scc1 k2_cv_dloop
    """)
    a.label("k2_cv_fin")
    a(f"""
    s_waitcnt lgkmcnt(0)
    s_nop 7
    s_nop 7
    """)
    for i in range(16):
        a(f"v_add_f32 v{ACC1+i}, v{ACC1+i}, v{ACC2+i}")
        a(f"v_add_f32 v{ACC0+i}, v{ACC0+i}, v{ACC3+i}")
    a(f"""
    s_barrier
    v_mul_u32_u24 v14, 144, v4
    v_lshl_add_u32 v14, v6, 4, v14     ; a_l*144 + 16h
    s_mul_i32 s36, s3, 4608
    v_add_u32 v14, s36, v14
    """)
    for q in range(4):
        a(f"ds_write_b128 v14, v[{ACC1+4*q}:{ACC1+4*q+3}] offset:{32*q}")
    a(f"""
    s_cmp_eq_u32 s3, 0
    s_cbranch_scc1 k2_cv_w0
    """)
    for q in range(4):
        a(f"ds_write_b128 v14, v[{ACC0+4*q}:{ACC0+4*q+3}] offset:{32*q + 3*4608}")
    a.label("k2_cv_w0")
    a(f"""
    v_lshrrev_b32 v14, 2, v0
    v_and_b32 v14, 31, v14
    v_mul_u32_u24 v14, 144, v14
    v_and_b32 v15, 3, v0
    v_lshl_add_u32 v14, v15, 5, v14    ; a_l*144 + sub*32
    s_cmp_lt_u32 s3, 2
    s_cselect_b32 s36, {4*4608}, 0
    v_add_u32 v14, s36, v14
    s_waitcnt lgkmcnt(0)
    s_barrier
    """)
    for s in range(3):
        a(f"ds_read_b128 v[{16+8*s}:{19+8*s}], v14 offset:{s*4608}")
        a(f"ds_read_b128 v[{20+8*s}:{23+8*s}], v14 offset:{s*4608+16}")
    a(f"""
    s_cmp_lt_u32 s3, 2
    s_cbranch_scc1 k2_cv_no4
    ds_read_b128 v[40:43], v14 offset:{3*4608}
    ds_read_b128 v[44:47], v14 offset:{3*4608+16}
    s_waitcnt lgkmcnt(0)
    """)
    for i in range(8):
        a(f"v_add_f32 v{16+i}, v{16+i}, v{40+i}")
    a.label("k2_cv_no4")
    a(f"""
    s_waitcnt lgkmcnt(0)
    s_and_b32 s21, s20, 1
    s_lshl_b32 s21, s21, 4
    s_lshr_b32 s22, s22, s21
    s_lshl_b32 s22, s22, 16
    s_mov_b32 s23, 0xffff0000
    s_lshl_b32 s24, s20, 12
    """)
    for i in range(8):
        a(f"v_add_f32 v{24+i}, v{24+i}, v{32+i}")
    for i in range(8):
        a(f"v_add_f32 v{16+i}, v{16+i}, v{24+i}")
    for j in range(4):
        a(f"""
        v_cvt_pk_bf16_f32 v24, v{16+2*j}, v{17+2*j}
        v_lshlrev_b32 v25, 16, v{8+j}
        v_and_b32 v26, s23, v{8+j}
        v_mul_f32 v25, s22, v25
        v_mul_f32 v26, s22, v26
        v_cvt_pk_bf16_f32 v27, v25, v26
        v_lshlrev_b32 v25, 16, v24
        v_and_b32 v26, s23, v24
        v_lshlrev_b32 v28, 16, v27
        v_and_b32 v29, s23, v27
        v_add_f32 v25, v25, v28
        v_add_f32 v26, v26, v29
        v_cvt_pk_bf16_f32 v{32+j}, v25, v26
        """)
    a(f"""
    buffer_store_dwordx4 v[32:35], v5, s[16:19], s24 offen
    s_branch k2_done
    """)

    a.label("k2_gemm")
    a(f"""
    s_load_dwordx2 s[4:5], s[0:1], 80 ; w1
    s_and_b32 s20, s2, 15             ; mt
    s_lshr_b32 s21, s2, 4             ; nt
    s_waitcnt lgkmcnt(0)
    """)
    srd(a, 8, 6, 7, 0x200000)
    srd(a, 12, 4, 5, 512 * 2752)
    srd_off(a, 16, 6, 7, H_OFF, H_SZ)
    ST = 14336
    a(f"""
    v_lshrrev_b32 v3, 2, v2
    s_lshl_b32 s22, s3, 5
    v_add_u32 v3, s22, v3              ; row = 32w + (l>>2)
    v_lshlrev_b32 v3, 10, v3
    v_lshrrev_b32 v4, 4, v2
    v_xor_b32 v4, v4, v2
    v_and_b32 v4, 3, v4
    v_lshl_add_u32 v3, v4, 4, v3       ; voffA
    s_mul_i32 s22, s3, 96
    v_add_u32 v4, s22, v2              ; P = 96w + l
    v_add_u32 v5, 64, v4
    s_movk_i32 s23, 5462               ; 65536/12
    s_movk_i32 s24, 2752
    v_mul_u32_u24 v6, s23, v4
    v_lshrrev_b32 v6, 16, v6           ; row
    v_mul_u32_u24 v7, 12, v6
    v_sub_u32 v4, v4, v7               ; cc
    v_lshlrev_b32 v4, 4, v4
    v_mad_u32_u24 v4, v6, s24, v4      ; voffB0
    v_mul_u32_u24 v6, s23, v5
    v_lshrrev_b32 v6, 16, v6
    v_mul_u32_u24 v7, 12, v6
    v_sub_u32 v5, v5, v7
    v_lshlrev_b32 v5, 4, v5
    v_mad_u32_u24 v5, v6, s24, v5      ; voffB1
    s_lshl_b32 s25, s20, 17
    s_mul_i32 s26, s21, 192
    s_lshl_b32 s27, s3, 11             ; m0 A = 2048w
    s_mul_i32 s28, s3, 1536
    s_add_u32 s28, s28, 8192           ; m0 B
    s_mov_b64 s[30:31], -1
    s_mov_b32 s32, -1
    s_mov_b32 s33, 0
    """)
    def dma(kc):
        st = (kc % 3) * ST
        a(f"""
        s_add_u32 m0, s27, {st}
        s_add_u32 s29, s25, {kc*64 + 16384}
        buffer_load_dwordx4 v3, s[8:11], s25 offen offset:{0} lds
        s_add_u32 m0, s27, {st + 1024}
        s_nop 0
        buffer_load_dwordx4 v3, s[8:11], s29 offen lds
        s_add_u32 m0, s28, {st}
        s_nop 0
        buffer_load_dwordx4 v4, s[12:15], s26 offen lds
        s_add_u32 m0, s28, {st + 1024}
        s_mov_b64 exec, s[32:33]
        buffer_load_dwordx4 v5, s[12:15], s26 offen lds
        s_mov_b64 exec, s[30:31]
        s_add_u32 s25, s25, 64
        s_add_u32 s26, s26, {32*2752}
        """)
    a(f"""
    v_and_b32 v6, 31, v2               ; m
    v_lshrrev_b32 v7, 5, v2            ; kg / h
    s_lshl_b32 s22, s3, 5
    v_add_u32 v8, s22, v6
    v_lshlrev_b32 v8, 6, v8            ; row*64
    v_lshrrev_b32 v9, 2, v6
    v_and_b32 v9, 3, v9                ; (row>>2)&3
    v_xor_b32 v10, v9, v7
    v_lshl_add_u32 v10, v10, 4, v8     ; vAr0
    v_xor_b32 v11, 2, v9
    v_xor_b32 v11, v11, v7
    v_lshl_add_u32 v11, v11, 4, v8
    v_lshlrev_b32 v12, 3, v7           ; 8*kg
    v_bfe_u32 v13, v2, 2, 2
    v_add_u32 v12, v12, v13
    v_mul_u32_u24 v12, 192, v12
    v_bfe_u32 v13, v2, 4, 1
    v_lshl_add_u32 v12, v13, 5, v12    ; + 32*((l>>4)&1)
    v_and_b32 v13, 3, v2
    v_lshl_add_u32 v12, v13, 3, v12    ; + 8*(l&3)
    v_add_u32 v12, 8192, v12           ; vBr
    """)
    ACC = 16
    for i in range(48):
        a(f"v_mov_b32 v{ACC+i}, 0")
    return_dma = dma
    def dma2(kc):
        st = (kc % 3) * ST
        a(f"""
        s_add_u32 m0, s27, {st}
        s_add_u32 s29, s25, 0x4000
        buffer_load_dwordx4 v3, s[8:11], s25 offen lds
        s_add_u32 m0, s27, {st + 1024}
        s_add_u32 s25, s25, 64
        buffer_load_dwordx4 v3, s[8:11], s29 offen lds
        s_add_u32 m0, s28, {st}
        s_nop 0
        buffer_load_dwordx4 v4, s[12:15], s26 offen lds
        s_add_u32 m0, s28, {st + 1024}
        s_mov_b64 exec, s[32:33]
        buffer_load_dwordx4 v5, s[12:15], s26 offen lds
        s_mov_b64 exec, s[30:31]
        s_add_u32 s26, s26, {32*2752}
        """)
    dma2(0); dma2(1)
    FA = 64
    FB = 72
    for kc in range(16):
        st = (kc % 3) * ST
        a(f"s_waitcnt vmcnt({4 if kc < 15 else 0})")
        a("s_barrier")
        if kc + 2 < 16:
            dma2(kc + 2)
        for ks in range(2):
            a(f"ds_read_b128 v[{FA+4*ks}:{FA+4*ks+3}], v{10+ks} offset:{st}")
            for j in range(3):
                b = FB + 12 * ks + 4 * j
                off = st + ks * 16 * 192 + 64 * j
                a(f"ds_read_b64_tr_b16 v[{b}:{b+1}], v12 offset:{off}")
                a(f"ds_read_b64_tr_b16 v[{b+2}:{b+3}], v12 offset:{off + 4*192}")
        for ks in range(2):
            for j in range(3):
                left = (1 - ks) * 7 + (2 - j) * 2
                a(f"s_waitcnt lgkmcnt({left})")
                b = FB + 12 * ks + 4 * j
                a(f"v_mfma_f32_32x32x16_bf16 v[{ACC+16*j}:{ACC+16*j+15}], v[{b}:{b+3}], v[{FA+4*ks}:{FA+4*ks+3}], v[{ACC+16*j}:{ACC+16*j+15}]")
    a(f"""
    s_barrier
    s_lshl_b32 s22, s3, 5
    v_add_u32 v8, s22, v6
    v_mul_u32_u24 v8, 208, v8
    v_lshl_add_u32 v8, v7, 3, v8       ; row*208 + 8h
    s_nop 7
    s_nop 3
    """)
    for j in range(3):
        for q in range(4):
            r = ACC + 16 * j + 4 * q
            a(f"""
            v_max_f32 v{r}, 0, v{r}
            v_max_f32 v{r+1}, 0, v{r+1}
            v_max_f32 v{r+2}, 0, v{r+2}
            v_max_f32 v{r+3}, 0, v{r+3}
            v_cvt_pk_bf16_f32 v{r}, v{r}, v{r+1}
            v_cvt_pk_bf16_f32 v{r+1}, v{r+2}, v{r+3}
            ds_write_b64 v8, v[{r}:{r+1}] offset:{64*j + 16*q}
            """)
    a(f"""
    s_mul_i32 s22, s3, {32*208}
    s_lshl_b32 s25, s20, 7
    s_lshl_b32 s26, s3, 5
    s_add_u32 s25, s25, s26
    s_mul_i32 s25, s25, {H_RS}
    s_mul_i32 s26, s21, 192
    s_add_u32 s25, s25, s26
    s_mul_i32 s26, s21, 96
    s_movk_i32 s27, {H_RS}
    s_movk_i32 s28, 208
    s_mov_b32 s29, 0x40000000
    s_movk_i32 s34, 1376
    s_movk_i32 s35, 1408
    s_waitcnt lgkmcnt(0)
    """)
    for i in range(6):
        a(f"""
        v_add_u32 v9, {64*i}, v2
        v_mul_u32_u24 v10, s23, v9
        v_lshrrev_b32 v10, 16, v10         ; row
        v_mul_u32_u24 v11, 12, v10
        v_sub_u32 v9, v9, v11              ; cc
        v_lshlrev_b32 v11, 4, v9
        v_mad_u32_u24 v12, v10, s28, v11
        v_add_u32 v12, s22, v12
        ds_read_b128 v[{64+4*i}:{67+4*i}], v12
        v_mad_u32_u24 v{90+i}, v10, s27, v11
        v_lshl_add_u32 v{96+i}, v9, 3, s26 ; col
        """)
    for i in range(6):
        a(f"""
        s_waitcnt lgkmcnt({5-i})
        v_cmp_gt_u32 vcc, s34, v{96+i}
        v_mov_b32 v9, s29
        v_cndmask_b32 v{64+4*i}, 0, v{64+4*i}, vcc
        v_cndmask_b32 v{65+4*i}, 0, v{65+4*i}, vcc
        v_cndmask_b32 v{66+4*i}, 0, v{66+4*i}, vcc
        v_cndmask_b32 v{67+4*i}, 0, v{67+4*i}, vcc
        v_cmp_gt_u32 vcc, s35, v{96+i}
        s_nop 1
        v_cndmask_b32 v{90+i}, v9, v{90+i}, vcc
        buffer_store_dwordx4 v[{64+4*i}:{67+4*i}], v{90+i}, s[16:19], s25 offen
        """)
    a.label("k2_done")
    a("s_endpgm")

def add(kernels, launches):
    a = Asm()
    gen_k2(a)
    kernels.append(("k2_kernel", a.text(), 128))
    launches.append(f"; @launch kernel=k2_kernel grid=({N_G1+N_CV},1,1) block=(256,1,1) lds={K2_LDS}")
    try:
        import gen3
        gen3.add(kernels, launches)
    except ImportError:
        pass
```

```python
from gen import *

N_G2 = 256
NST = 4
K3_LDS = 4 * NST * 8192

def gen_k3(a):
    a.label("k3_kernel")
    a(f"""
    s_cmp_ge_u32 s2, {N_G2}
    s_cbranch_scc1 k3_done
    v_lshrrev_b32 v1, 6, v0
    v_and_b32 v2, 63, v0              ; lane
    s_load_dwordx2 s[6:7], s[0:1], 112 ; ws
    s_load_dwordx2 s[4:5], s[0:1], 88  ; w2
    s_load_dwordx2 s[36:37], s[0:1], 0 ; x
    s_load_dwordx2 s[38:39], s[0:1], 96 ; out
    v_readfirstlane_b32 s3, v1
    s_and_b32 s20, s2, 31             ; mt
    s_lshr_b32 s21, s2, 5             ; nt
    v_lshrrev_b32 v3, 2, v2
    s_movk_i32 s22, {H_RS}
    v_mul_u32_u24 v3, s22, v3
    v_lshrrev_b32 v4, 4, v2
    v_xor_b32 v4, v4, v2
    v_and_b32 v4, 3, v4
    v_lshl_add_u32 v3, v4, 4, v3       ; voffA
    v_lshrrev_b32 v4, 3, v2
    v_lshlrev_b32 v4, 10, v4
    v_bfe_u32 v5, v2, 4, 1
    v_lshlrev_b32 v5, 2, v5
    v_and_b32 v6, 7, v2
    v_xor_b32 v5, v5, v6
    v_lshl_add_u32 v4, v5, 4, v4       ; voffB
    s_waitcnt lgkmcnt(0)
    """)
    srd_off(a, 8, 6, 7, H_OFF, H_SZ)
    srd(a, 12, 4, 5, 1376 * 1024)
    srd_off(a, 16, 6, 7, YT_OFF, 0x200000)
    srd(a, 40, 36, 37, 0x200000)
    srd(a, 44, 38, 39, 0x200000)
    a(f"""
    s_mul_i32 s25, s20, {64*H_RS}
    s_mul_i32 s26, s3, 704
    s_add_u32 s25, s25, s26
    s_mul_i32 s26, s3, {352*1024}
    s_lshl_b32 s27, s21, 7
    s_add_u32 s26, s26, s27            ; soffB
    s_lshl_b32 s27, s3, {15 if NST == 4 else 0}
    """)
    def dma(kc):
        st = (kc % NST) * 8192
        for i in range(4):
            a(f"""
            s_add_u32 m0, s27, {st + 1024*i}
            s_add_u32 s28, s25, {kc*64 + i*16*H_RS}
            buffer_load_dwordx4 v3, s[8:11], s28 offen lds
            """)
        for i in range(4):
            a(f"""
            s_add_u32 m0, s27, {st + 4096 + 1024*i}
            s_add_u32 s28, s26, {kc*32768 + i*8192}
            buffer_load_dwordx4 v4, s[12:15], s28 offen lds
            """)
    for kc in range(NST - 1):
        dma(kc)
    AT = 112; XV = 128
    a(f"""
    v_and_b32 v5, 3, v0
    v_lshlrev_b32 v5, 16, v5           ; 16*(t&3)*4096
    v_lshrrev_b32 v6, 2, v0
    v_lshl_add_u32 v5, v6, 1, v5       ; + 2*(t>>2)
    s_lshl_b32 s29, s21, 18            ; n0*4096
    s_lshl_b32 s30, s20, 7
    s_add_u32 s29, s29, s30
    v_lshlrev_b32 v7, 10, v6           ; row*1024
    v_and_b32 v8, 3, v0
    v_lshl_add_u32 v7, v8, 5, v7       ; + 32*(t&3)
    s_lshl_b32 s30, s20, 16
    s_lshl_b32 s31, s21, 7
    s_add_u32 s30, s30, s31
    buffer_load_dwordx4 v[{XV}:{XV+3}], v7, s[40:43], s30 offen
    buffer_load_dwordx4 v[{XV+4}:{XV+7}], v7, s[40:43], s30 offen offset:16
    """)
    for i in range(16):
        a(f"buffer_load_ushort v{AT + i}, v5, s[16:19], s29 offen")
        a(f"s_add_u32 s29, s29, 0x1000")
    NEX = 18
    a(f"""
    v_and_b32 v8, 31, v2               ; idx
    v_lshrrev_b32 v9, 5, v2            ; kg / h
    v_lshlrev_b32 v10, 6, v8
    v_add_u32 v10, s27, v10
    v_bfe_u32 v11, v8, 2, 2
    v_xor_b32 v12, v11, v9
    v_lshl_add_u32 v12, v12, 4, v10    ; vH0
    v_xor_b32 v13, 2, v11
    v_xor_b32 v13, v13, v9
    v_lshl_add_u32 v13, v13, 4, v10    ; vH1
    v_lshlrev_b32 v14, 3, v9
    v_bfe_u32 v15, v2, 2, 2
    v_add_u32 v14, v14, v15
    v_lshlrev_b32 v14, 7, v14          ; row*128
    v_bfe_u32 v15, v2, 4, 1
    v_lshl_add_u32 v14, v15, 5, v14
    v_and_b32 v15, 3, v2
    v_lshl_add_u32 v14, v15, 3, v14
    v_bfe_u32 v15, v2, 3, 1
    v_lshl_add_u32 v14, v15, 6, v14
    v_add_u32 v14, s27, v14
    v_add_u32 v14, 0x1000, v14         ; vW0
    v_xor_b32 v15, 64, v14             ; vW1
    """)
    ACC = 16
    for i in range(64):
        a(f"v_mov_b32 v{ACC+i}, 0")
    FH = 80; FW = 96
    NCH = 11
    for kc in range(NCH):
        st = (kc % NST) * 8192
        later = min(kc + NST - 2, NCH - 1) - kc
        cnt = 8 * later + (NEX if kc < NST - 2 + 0 and False else 0)
        if kc <= NST - 2:
            cnt += NEX
        a(f"s_waitcnt vmcnt({min(cnt, 63)})")
        for ks in range(2):
            for jm in range(2):
                f = FH + 8 * ks + 4 * jm
                a(f"ds_read_b128 v[{f}:{f+3}], v{12+ks} offset:{st + 2048*jm}")
            for jn in range(2):
                f = FW + 8 * ks + 4 * jn
                a(f"ds_read_b64_tr_b16 v[{f}:{f+1}], v{14+jn} offset:{st + ks*2048}")
                a(f"ds_read_b64_tr_b16 v[{f+2}:{f+3}], v{14+jn} offset:{st + ks*2048 + 512}")
        if kc + NST - 1 < NCH:
            dma(kc + NST - 1)
        for ks in range(2):
            a(f"s_waitcnt lgkmcnt({6 if ks == 0 else 0})")
            for jn in range(2):
                for jm in range(2):
                    acc = ACC + 16 * (2 * jn + jm)
                    w = FW + 8 * ks + 4 * jn
                    h = FH + 8 * ks + 4 * jm
                    a(f"v_mfma_f32_32x32x16_bf16 v[{acc}:{acc+15}], v[{w}:{w+3}], v[{h}:{h+3}], v[{acc}:{acc+15}]")
    a(f"""
    s_barrier
    v_mul_u32_u24 v10, 272, v8
    v_lshl_add_u32 v10, v9, 4, v10
    s_mul_i32 s28, s3, 17408
    v_add_u32 v10, s28, v10
    s_nop 7
    s_nop 3
    """)
    for jn in range(2):
        for jm in range(2):
            for q in range(4):
                r = ACC + 16 * (2 * jn + jm) + 4 * q
                a(f"ds_write_b128 v10, v[{r}:{r+3}] offset:{jm*32*272 + jn*128 + q*32}")
    a(f"""
    v_lshrrev_b32 v11, 2, v0
    v_mul_u32_u24 v11, 272, v11
    v_and_b32 v12, 3, v0
    v_lshl_add_u32 v11, v12, 6, v11
    s_mov_b32 s23, 0xffff0000
    s_waitcnt lgkmcnt(0)
    s_barrier
    """)
    for p in range(4):
        for c in range(4):
            r = 16 + 16 * p + 4 * c
            a(f"ds_read_b128 v[{r}:{r+3}], v11 offset:{p*17408 + 16*c}")
    a("s_waitcnt lgkmcnt(8)")
    for i in range(16):
        a(f"v_add_f32 v{16+i}, v{16+i}, v{32+i}")
    a("s_waitcnt lgkmcnt(0)")
    for i in range(16):
        a(f"v_add_f32 v{48+i}, v{48+i}, v{64+i}")
    for i in range(16):
        a(f"v_add_f32 v{16+i}, v{16+i}, v{48+i}")
    a("s_waitcnt vmcnt(0)")
    for j in range(8):
        a(f"""
        v_cvt_pk_bf16_f32 v32, v{16+2*j}, v{17+2*j}
        v_lshlrev_b32 v33, 16, v{XV+j}
        v_and_b32 v34, s23, v{XV+j}
        v_lshlrev_b32 v35, 16, v{AT+2*j}
        v_lshlrev_b32 v36, 16, v{AT+2*j+1}
        v_add_f32 v33, v33, v35
        v_add_f32 v34, v34, v36
        v_cvt_pk_bf16_f32 v33, v33, v34
        v_lshlrev_b32 v35, 16, v32
        v_and_b32 v36, s23, v32
        v_lshlrev_b32 v37, 16, v33
        v_and_b32 v38, s23, v33
        v_add_f32 v35, v35, v37
        v_add_f32 v36, v36, v38
        v_cvt_pk_bf16_f32 v{40+j}, v35, v36
        """)
    a(f"""
    buffer_store_dwordx4 v[40:43], v7, s[44:47], s30 offen
    buffer_store_dwordx4 v[44:47], v7, s[44:47], s30 offen offset:16
    """)
    a.label("k3_done")
    a("s_endpgm")

def add(kernels, launches):
    a = Asm()
    gen_k3(a)
    kernels.append(("k3_kernel", a.text(), 136))
    launches.append(f"; @launch kernel=k3_kernel grid=({N_G2},1,1) block=(256,1,1) lds={K3_LDS}")
```

```python
import sys, re

NAME = "parallel_sum__ssm_conv_s4__dense_activation_relu__prompt"

XN_OFF  = 0x000000
XT_RS   = 4224
XT0_OFF = 0x200000
XT_SZ   = 512 * XT_RS
XT1_OFF = XT0_OFF + XT_SZ
KH_OFF  = XT1_OFF + XT_SZ
KL_OFF  = KH_OFF + 0x200000
YT_OFF  = KL_OFF + 0x200000
H_OFF   = YT_OFF + 0x200000
H_RS    = 2816
H_SZ    = 2048 * H_RS
WS_END  = H_OFF + H_SZ

class Asm:
    def __init__(self):
        self.lines = []
    def __call__(self, s):
        for l in s.strip("\n").split("\n"):
            m = re.search(r"offset:(\d+)", l)
            if m and ("buffer_" in l or "global_" in l) and int(m.group(1)) > 4095:
                raise ValueError("offset too large: " + l)
            if m and "ds_" in l and int(m.group(1)) > 65535:
                raise ValueError("ds offset too large: " + l)
            self.lines.append("    " + l.strip() if l.strip() and not l.strip().endswith(":") else l.strip())
    def label(self, l):
        self.lines.append(l + ":")
    def text(self):
        return "\n".join(self.lines) + "\n"

def srd(a, d, lo, hi, size):
    a(f"""
    s_mov_b32 s{d}, s{lo}
    s_and_b32 s{d+1}, s{hi}, 0xffff
    s_mov_b32 s{d+2}, {size:#x}
    s_mov_b32 s{d+3}, 0x00020000
    """)

def srd_off(a, d, lo, hi, off, size):
    a(f"""
    s_add_u32 s{d}, s{lo}, {off:#x}
    s_addc_u32 s{d+1}, s{hi}, 0
    s_and_b32 s{d+1}, s{d+1}, 0xffff
    s_mov_b32 s{d+2}, {size:#x}
    s_mov_b32 s{d+3}, 0x00020000
    """)

def rho_of_row(i):
    if i < 8: return i
    if i < 12: return 256 + 2 * (i - 8)
    if i < 16: return 512 + 4 * ((i - 12) & 1) + 256 * ((i - 12) >> 1)
    if i < 20: return 1024 + 256 * (i - 16)
    return 2048

N_LN = 65
N_KG = 256
K1_LDS = 40960

def gen_k1(a):
    a.label("k1_kernel")
    a(f"""
    s_cmp_ge_u32 s2, {N_LN + N_KG}
    s_cbranch_scc1 k1_done
    v_lshrrev_b32 v1, 6, v0
    v_and_b32 v2, 63, v0              ; lane
    s_load_dwordx2 s[6:7], s[0:1], 112 ; ws
    v_readfirstlane_b32 s3, v1
    s_cmp_ge_u32 s2, {N_LN}
    s_cbranch_scc1 k1_kgen
    s_load_dwordx2 s[4:5], s[0:1], 0  ; x
    s_waitcnt lgkmcnt(0)
    """)
    srd(a, 8, 4, 5, 0x200000)
    srd(a, 12, 6, 7, 0x200000)
    srd_off(a, 16, 6, 7, XT0_OFF, 2 * XT_SZ)
    a(f"""
    s_lshl_b32 s20, s2, 15            ; 32*s2*1024
    s_sub_u32 s21, s20, 0x8000        ; l0*1024
    s_lshl_b32 s22, s3, 13            ; 8*wave*1024
    s_add_u32 s21, s21, s22
    s_cmp_eq_u32 s2, 0
    s_cselect_b32 s21, 0x10000000, s21
    s_cmp_eq_u32 s3, 0
    s_cselect_b32 s20, s20, 0x10000000
    v_lshlrev_b32 v3, 4, v2           ; lane*16
    v_add_u32 v6, 0x1000, v3
    """)
    D0 = 10
    for r in range(8):
        a(f"buffer_load_dwordx4 v[{D0+4*r}:{D0+4*r+3}], v{3 if r < 4 else 6}, s[8:11], s21 offen offset:{(r&3)*1024}")
    a(f"buffer_load_dwordx4 v[{D0+32}:{D0+35}], v3, s[8:11], s20 offen")
    S0 = 46
    T = 56
    a("s_mov_b32 s23, 0xffff0000")
    def unpack(r, j, lo, hi):
        a(f"v_lshlrev_b32 v{lo}, 16, v{D0+4*r+j}")
        a(f"v_and_b32 v{hi}, s23, v{D0+4*r+j}")
    for r in range(9):
        a(f"s_waitcnt vmcnt({8-r})")
        for j in range(4):
            unpack(r, j, T + 2*j, T + 2*j + 1)
        a(f"v_add_f32 v{T}, v{T}, v{T+1}")
        a(f"v_add_f32 v{T+2}, v{T+2}, v{T+3}")
        a(f"v_add_f32 v{T+4}, v{T+4}, v{T+5}")
        a(f"v_add_f32 v{T+6}, v{T+6}, v{T+7}")
        a(f"v_add_f32 v{T}, v{T}, v{T+2}")
        a(f"v_add_f32 v{T+4}, v{T+4}, v{T+6}")
        a(f"v_add_f32 v{S0+r}, v{T}, v{T+4}")
    def wave_reduce():
        for ctrl in ["row_shr:1", "row_shr:2", "row_shr:4", "row_shr:8"]:
            for r in range(9):
                a(f"v_add_f32_dpp v{S0+r}, v{S0+r}, v{S0+r} {ctrl} row_mask:0xf bank_mask:0xf bound_ctrl:0")
        for r in range(9):
            a(f"v_add_f32_dpp v{S0+r}, v{S0+r}, v{S0+r} row_bcast:15 row_mask:0xa bank_mask:0xf")
        for r in range(9):
            a(f"v_add_f32_dpp v{S0+r}, v{S0+r}, v{S0+r} row_bcast:31 row_mask:0xc bank_mask:0xf")
        a("s_nop 1")
        for r in range(9):
            a(f"v_readlane_b32 s{24+r}, v{S0+r}, 63")
        a("s_nop 1")
    wave_reduce()
    M0 = 72
    a("s_mov_b32 s34, 0x3b000000")
    for r in range(9):
        a(f"v_mov_b32 v{M0+r}, s{24+r}")
        a(f"v_mul_f32 v{M0+r}, s34, v{M0+r}")
    for r in range(9):
        for j in range(4):
            unpack(r, j, T + 2*j, T + 2*j + 1)
        for k in range(8):
            a(f"v_sub_f32 v{T+k}, v{T+k}, v{M0+r}")
        a(f"v_mul_f32 v{S0+r}, v{T}, v{T}")
        a(f"v_mul_f32 v{T+8}, v{T+1}, v{T+1}")
        for k in range(2, 8, 2):
            a(f"v_fmac_f32 v{S0+r}, v{T+k}, v{T+k}")
            a(f"v_fmac_f32 v{T+8}, v{T+k+1}, v{T+k+1}")
        a(f"v_add_f32 v{S0+r}, v{S0+r}, v{T+8}")
    wave_reduce()
    SD = 82
    RI = 92
    a("s_mov_b32 s35, 0x3727c5ac")
    for r in range(9):
        t = T
        a(f"""
        v_mov_b32 v{t}, s{24+r}
        v_mul_f32 v{t}, s34, v{t}
        v_cvt_pk_bf16_f32 v{t}, v{t}, v{t}
        v_and_b32 v{t}, s23, v{t}
        v_add_f32 v{t}, s35, v{t}
        v_cvt_pk_bf16_f32 v{t}, v{t}, v{t}
        v_and_b32 v{t}, s23, v{t}
        v_sqrt_f32 v{t+1}, v{t}
        v_cvt_pk_bf16_f32 v{M0+r}, v{M0+r}, v{M0+r}
        v_rcp_f32 v{t+2}, v{t+1}
        v_and_b32 v{M0+r}, s23, v{M0+r}
        v_fma_f32 v{t+3}, -v{t+1}, v{t+1}, v{t}
        v_mul_f32 v{t+2}, 0.5, v{t+2}
        v_fma_f32 v{t+1}, v{t+3}, v{t+2}, v{t+1}
        v_cvt_pk_bf16_f32 v{t+1}, v{t+1}, v{t+1}
        v_and_b32 v{SD+r}, s23, v{t+1}
        v_rcp_f32 v{RI+r}, v{SD+r}
        """)
    for r in range(9):
        for j in range(4):
            t = T
            unpack(r, j, t, t + 1)
            a(f"""
            v_sub_f32 v{t}, v{t}, v{M0+r}
            v_sub_f32 v{t+1}, v{t+1}, v{M0+r}
            v_cvt_pk_bf16_f32 v{t+2}, v{t}, v{t+1}
            v_lshlrev_b32 v{t}, 16, v{t+2}
            v_and_b32 v{t+1}, s23, v{t+2}
            v_mul_f32 v{t+2}, v{t}, v{RI+r}
            v_mul_f32 v{t+3}, v{t+1}, v{RI+r}
            v_fma_f32 v{t+4}, -v{t+2}, v{SD+r}, v{t}
            v_fma_f32 v{t+5}, -v{t+3}, v{SD+r}, v{t+1}
            v_fma_f32 v{t+2}, v{t+4}, v{RI+r}, v{t+2}
            v_fma_f32 v{t+3}, v{t+5}, v{RI+r}, v{t+3}
            v_cvt_pk_bf16_f32 v{D0+4*r+j}, v{t+2}, v{t+3}
            """)
    a(f"""
    s_lshl_b32 s22, s3, 13
    v_add_u32 v4, s22, v3
    s_lshl_b32 s22, s3, 10
    s_add_u32 s22, s22, 0x8000
    v_add_u32 v5, s22, v3
    """)
    for r in range(8):
        a(f"buffer_store_dwordx4 v[{D0+4*r}:{D0+4*r+3}], v{3 if r < 4 else 6}, s[12:15], s21 offen offset:{(r&3)*1024}")
        a(f"ds_write_b128 v4, v[{D0+4*r}:{D0+4*r+3}] offset:{r*1024}")
    a(f"ds_write_b128 v5, v[{D0+32}:{D0+35}]")
    a("""
    s_waitcnt lgkmcnt(0)
    s_barrier
    """)
    a(f"""
    v_lshlrev_b32 v4, 1, v0           ; 2*t
    s_movk_i32 s22, {XT_RS}
    v_mul_lo_u32 v5, v0, s22          ; t*4224
    s_lshl_b32 s22, s2, 6
    s_add_u32 s24, s22, {XT_SZ:#x}
    s_add_u32 s25, s22, {256*XT_RS:#x}
    s_add_u32 s26, s24, {256*XT_RS:#x}
    """)
    R0 = 10
    for hh in range(2):
        for row in range(33):
            a(f"ds_read_u16 v{R0+row}, v4 offset:{row*1024 + hh*512}")
        a("s_waitcnt lgkmcnt(0)")
        P0 = 44; P1 = 60
        for i in range(16):
            a(f"v_lshl_or_b32 v{P0+i}, v{R0+2*i+1}, 16, v{R0+2*i}")
            a(f"v_lshl_or_b32 v{P1+i}, v{R0+2*i+2}, 16, v{R0+2*i+1}")
        so0 = "s22" if hh == 0 else "s25"
        so1 = "s24" if hh == 0 else "s26"
        for j in range(4):
            a(f"buffer_store_dwordx4 v[{P0+4*j}:{P0+4*j+3}], v5, s[16:19], {so0} offen offset:{16*j}")
            a(f"buffer_store_dwordx4 v[{P1+4*j}:{P1+4*j+3}], v5, s[16:19], {so1} offen offset:{16*j}")
        if hh == 0:
            a("s_nop 1")
    a("s_branch k1_done")

    a.label("k1_kgen")
    a(f"""
    s_load_dwordx8 s[8:15], s[0:1], 8
    s_load_dwordx4 s[16:19], s[0:1], 40
    s_load_dwordx2 s[20:21], s[0:1], 56   ; log_dt
    s_sub_u32 s22, s2, {N_LN}             ; g
    s_lshr_b32 s23, s3, 1                 ; dd
    s_lshl_b32 s24, s22, 1
    s_add_u32 s24, s24, s23               ; d
    s_and_b32 s25, s3, 1                  ; nh
    s_lshl_b32 s26, s24, 8                ; d*256 bytes
    s_lshl_b32 s27, s25, 7
    s_add_u32 s26, s26, s27
    v_lshlrev_b32 v3, 1, v2
    v_add_u32 v3, s26, v3
    s_lshl_b32 s27, s24, 1
    v_mov_b32 v4, s27                     ; 2*d
    s_waitcnt lgkmcnt(0)
    global_load_ushort v10, v3, s[8:9]
    global_load_ushort v11, v3, s[10:11]
    global_load_ushort v12, v3, s[12:13]
    global_load_ushort v13, v3, s[14:15]
    global_load_ushort v14, v3, s[16:17]
    global_load_ushort v15, v3, s[18:19]
    global_load_ushort v16, v4, s[20:21]
    """)
    srd_off(a, 28, 6, 7, KH_OFF, 0x400000)
    a(f"""
    v_and_b32 v5, 31, v2                  ; i / j
    v_lshrrev_b32 v6, 5, v2               ; half
    v_mov_b32 v7, 0x800
    v_lshlrev_b32 v8, 8, v5
    v_subrev_u32 v8, 0xc00, v8            ; 256*i - 3072
    v_cmp_gt_u32 vcc, 20, v5
    s_nop 1
    v_cndmask_b32 v7, v7, v8, vcc
    v_and_b32 v8, 1, v5
    v_lshlrev_b32 v8, 2, v8
    v_bfe_u32 v9, v5, 1, 1
    v_lshl_add_u32 v8, v9, 8, v8
    v_add_u32 v8, 0x200, v8               ; 512 + 4*(i&1) + 256*((i>>1)&1)
    v_cmp_gt_u32 vcc, 16, v5
    s_nop 1
    v_cndmask_b32 v7, v7, v8, vcc
    v_lshlrev_b32 v8, 1, v5
    v_add_u32 v8, 0xf0, v8                ; 240 + 2i
    v_cmp_gt_u32 vcc, 12, v5
    s_nop 1
    v_cndmask_b32 v7, v7, v8, vcc
    v_cmp_gt_u32 vcc, 8, v5
    s_nop 1
    v_cndmask_b32 v7, v7, v5, vcc
    v_cvt_f32_u32 v7, v7                  ; vRho
    v_lshlrev_b32 v8, 3, v5
    v_cvt_f32_u32 v8, v8                  ; vTau
    s_lshl_b32 s32, s3, 10
    s_add_u32 s32, s32, {4*9216}
    v_lshlrev_b32 v9, 4, v2
    v_add_u32 v9, s32, v9
    v_lshlrev_b32 v17, 4, v6
    v_add_u32 v17, s32, v17
    s_mov_b32 s33, 0x3fb8aa3b             ; log2e
    s_mov_b32 s34, 0x3e22f983             ; 1/(2pi)
    s_mov_b32 s35, 0xffff0000
    s_waitcnt vmcnt(0)
    v_lshlrev_b32 v10, 16, v10
    v_lshlrev_b32 v11, 16, v11
    v_lshlrev_b32 v12, 16, v12
    v_lshlrev_b32 v13, 16, v13
    v_lshlrev_b32 v14, 16, v14
    v_lshlrev_b32 v15, 16, v15
    v_lshlrev_b32 v16, 16, v16
    v_mul_f32 v16, s33, v16
    v_exp_f32 v16, v16
    s_nop 0
    v_cvt_pk_bf16_f32 v16, v16, v16
    v_and_b32 v16, s35, v16               ; dt
    v_mul_f32 v10, v16, v10               ; lr
    v_mul_f32 v11, v16, v11               ; li
    v_mul_f32 v12, v16, v12               ; dBr
    v_mul_f32 v13, v16, v13               ; dBi
    v_mul_f32 v20, s33, v10               ; lr2
    v_mul_f32 v21, s34, v11               ; lif
    v_mul_f32 v22, v14, v12
    v_fma_f32 v22, -v15, v13, v22         ; CBr
    v_mul_f32 v23, v14, v13
    v_fma_f32 v23, v15, v12, v23          ; CBi
    ds_write_b128 v9, v[20:23]
    """)
    ACC = 32
    for i in range(16):
        a(f"v_mov_b32 v{ACC+i}, 0")
    a("s_waitcnt lgkmcnt(0)")
    PA = 24
    a(f"ds_read_b128 v[{PA}:{PA+3}], v17")
    for q in range(32):
        p = PA + 4 * (q & 1)
        pn = PA + 4 * ((q + 1) & 1)
        if q < 31:
            a(f"ds_read_b128 v[{pn}:{pn+3}], v17 offset:{32*(q+1)}")
            a("s_waitcnt lgkmcnt(1)")
        else:
            a("s_waitcnt lgkmcnt(0)")
        t = 48 + 12 * (q & 1)
        a(f"""
        v_mul_f32 v{t}, v{p}, v7
        v_mul_f32 v{t+1}, v{p+1}, v7
        v_mul_f32 v{t+6}, v{p}, v8
        v_mul_f32 v{t+7}, v{p+1}, v8
        v_exp_f32 v{t}, v{t}
        v_fract_f32 v{t+1}, v{t+1}
        v_exp_f32 v{t+6}, v{t+6}
        v_fract_f32 v{t+7}, v{t+7}
        v_cos_f32 v{t+2}, v{t+1}
        v_sin_f32 v{t+3}, v{t+1}
        v_cos_f32 v{t+8}, v{t+7}
        v_sin_f32 v{t+9}, v{t+7}
        v_mul_f32 v{t+2}, v{t}, v{t+2}
        v_mul_f32 v{t+3}, v{t}, v{t+3}
        v_mul_f32 v{t+8}, v{t+6}, v{t+8}
        v_mul_f32 v{t+9}, v{t+6}, v{t+9}
        v_mul_f32 v{t+4}, v{p+2}, v{t+2}
        v_mul_f32 v{t+5}, v{p+2}, v{t+3}
        v_fma_f32 v{t+4}, -v{p+3}, v{t+3}, v{t+4}
        v_fma_f32 v{t+5}, -v{p+3}, v{t+2}, -v{t+5}
        s_nop 1
        v_mfma_f32_32x32x2_f32 v[{ACC}:{ACC+15}], v{t+4}, v{t+8}, v[{ACC}:{ACC+15}]
        v_mfma_f32_32x32x2_f32 v[{ACC}:{ACC+15}], v{t+5}, v{t+9}, v[{ACC}:{ACC+15}]
        """)
    a(f"""
    s_mul_i32 s36, s3, 9216
    v_lshlrev_b32 v9, 5, v5
    v_add_u32 v9, s36, v9               ; tbl + 32*j
    s_nop 7
    s_nop 7
    """)
    for r in range(12):
        lo = 8 * (r >> 2) + (r & 3)
        hi = lo + 4
        dl = 4 * (rho_of_row(hi) - rho_of_row(lo))
        a(f"s_movk_i32 s37, {dl}")
        a(f"v_mad_u32_u24 v10, v6, s37, v9")
        a(f"ds_write_b32 v10, v{ACC+r} offset:{4*rho_of_row(lo)}")
    a("""
    s_waitcnt lgkmcnt(0)
    s_barrier
    """)
    a(f"""
    v_lshlrev_b32 v3, 3, v0
    v_sub_u32 v3, 0x7ff, v3              ; jj0 = 2047 - 8t
    s_movk_i32 s36, 0x7fff
    v_lshlrev_b32 v4, 4, v0
    s_lshl_b32 s37, s22, 13              ; g*2*4096
    """)
    for e in range(8):
        a(f"""
        v_subrev_u32 v{10+e}, {e}, v3
        v_cvt_f32_u32 v{10+e}, v{10+e}
        v_bfe_u32 v9, v{10+e}, 16, 1
        v_add3_u32 v{10+e}, v{10+e}, v9, s36
        v_and_b32 v{10+e}, s35, v{10+e}
        v_cvt_u32_f32 v{10+e}, v{10+e}
        v_lshlrev_b32 v{10+e}, 2, v{10+e}
        """)
    for dd in range(2):
        for e in range(8):
            a(f"ds_read_b32 v{20+e}, v{10+e} offset:{(2*dd)*9216}")
            a(f"ds_read_b32 v{28+e}, v{10+e} offset:{(2*dd+1)*9216}")
        a("s_waitcnt lgkmcnt(0)")
        for e in range(8):
            a(f"v_add_f32 v{20+e}, v{20+e}, v{28+e}")
        for e in range(0, 8, 2):
            a(f"v_cvt_pk_bf16_f32 v{36+e//2}, v{20+e}, v{21+e}")
        for e in range(0, 8, 2):
            a(f"v_lshlrev_b32 v{28+e}, 16, v{36+e//2}")
            a(f"v_and_b32 v{29+e}, s35, v{36+e//2}")
        for e in range(8):
            a(f"v_sub_f32 v{20+e}, v{20+e}, v{28+e}")
        for e in range(0, 8, 2):
            a(f"v_cvt_pk_bf16_f32 v{40+e//2}, v{20+e}, v{21+e}")
        a(f"s_add_u32 s38, s37, {dd*4096}")
        a(f"s_add_u32 s39, s38, 0x200000")
        a(f"buffer_store_dwordx4 v[36:39], v4, s[28:31], s38 offen")
        a(f"buffer_store_dwordx4 v[40:43], v4, s[28:31], s39 offen")
        a("s_nop 1")
    a.label("k1_done")
    a("s_endpgm")

def descriptor(name, vgpr, sgpr=102):
    acc = (vgpr + 3) // 4 * 4
    return f""".amdhsa_kernel {name}
  .amdhsa_next_free_vgpr {vgpr}
  .amdhsa_next_free_sgpr {sgpr}
  .amdhsa_accum_offset {acc}
  .amdhsa_group_segment_fixed_size 0
  .amdhsa_kernarg_size 120
  .amdhsa_user_sgpr_count 2
  .amdhsa_user_sgpr_kernarg_segment_ptr 1
  .amdhsa_system_sgpr_workgroup_id_x 1
  .amdhsa_float_denorm_mode_32 3
.end_amdhsa_kernel
"""

def main():
    kernels = []
    launches = []
    a = Asm()
    gen_k1(a)
    kernels.append(("k1_kernel", a.text(), 104))
    launches.append(f"; @launch kernel=k1_kernel grid=({N_LN+N_KG},1,1) block=(256,1,1) lds={K1_LDS}")
    try:
        import gen2
        gen2.add(kernels, launches)
    except ImportError:
        pass
    hdr = open("cdna_kernels/" + NAME + ".s.ref").read().split("\n")
    out = []
    for l in hdr:
        if l.startswith("; @launch"):
            break
        out.append(l)
    out += launches
    out.append('.amdgcn_target "amdgcn-amd-amdhsa--gfx950"')
    out.append(".text")
    for name, text, vg in kernels:
        out.append(f".globl {name}")
        out.append(".p2align 8")
        out.append(f".type {name},@function")
        out.append(text)
    out.append('.section .rodata,"a"')
    for name, text, vg in kernels:
        out.append(".p2align 6")
        out.append(descriptor(name, vg))
    open("cdna_kernels/" + NAME + ".s", "w").write("\n".join(out))

if __name__ == "__main__":
    main()
```

```python
from gen import *

N_G1 = 240
N_CV = 512
K2_LDS = 33792 + 12288 + 3072
UH = 0
KHL = 33792

def gen_k2(a):
    a.label("k2_kernel")
    a(f"""
    s_cmp_ge_u32 s2, {N_G1 + N_CV}
    s_cbranch_scc1 k2_done
    v_lshrrev_b32 v1, 6, v0
    v_and_b32 v2, 63, v0              ; lane
    s_load_dwordx2 s[6:7], s[0:1], 112 ; ws
    v_readfirstlane_b32 s3, v1
    s_cmp_lt_u32 s2, {N_G1}
    s_cbranch_scc1 {'k2_done' if 'k2_nog1' in VAR else 'k2_gemm'}
    {'s_branch k2_done' if 'k2_nocv' in VAR else ''}
    s_load_dwordx2 s[4:5], s[0:1], 64 ; Dskip
    s_load_dwordx8 s[40:47], s[0:1], 8
    s_load_dwordx4 s[48:51], s[0:1], 40
    s_load_dwordx2 s[52:53], s[0:1], 56    ; log_dt
    s_sub_u32 s20, s2, {N_G1}         ; d
    s_lshl_b32 s27, s20, 8                ; d*256 bytes
    s_lshl_b32 s28, s3, 6
    s_add_u32 s27, s27, s28
    v_and_b32 v4, 31, v2                  ; i / j
    v_lshrrev_b32 v6, 5, v2               ; half
    v_lshlrev_b32 v7, 1, v4
    v_add_u32 v7, s27, v7
    s_lshl_b32 s27, s20, 1
    v_mov_b32 v14, s27                    ; 2*d
    s_waitcnt lgkmcnt(0)
    global_load_ushort v80, v7, s[40:41]
    global_load_ushort v81, v7, s[42:43]
    global_load_ushort v82, v7, s[44:45]
    global_load_ushort v83, v7, s[46:47]
    global_load_ushort v84, v7, s[48:49]
    global_load_ushort v85, v7, s[50:51]
    global_load_ushort v86, v14, s[52:53]
    s_and_b32 s21, s20, 0x1fe
    s_lshl_b32 s21, s21, 1
    s_load_dword s22, s[4:5], s21
    """)
    stamp(a, 0)
    srd_off(a, 8, 6, 7, XT0_OFF, XT_SZ + 4096)
    srd_off(a, 16, 6, 7, YT_OFF, 0x200000)
    AS = 256
    UC = False
    a(f"""
    v_lshlrev_b32 v3, 1, v2
    s_mul_i32 s23, s20, {XT_RS}       ; d*4224
    s_lshl_b32 s24, s3, 7
    s_add_u32 s24, s24, s23           ; soffset = d*4224 + 128*w
    s_lshl_b32 s25, s3, 10            ; m0 = 1024*w
    s_mov_b32 m0, s25
    v_lshlrev_b32 v5, 4, v0           ; 16*t
    """)
    for i in range(8):
        a(f"buffer_load_dwordx4 v3, s[8:11], s24 offen lds")
        a(f"s_add_u32 m0, m0, 0x1000")
        a(f"s_add_u32 s24, s24, 0x200")
    a(f"""
    s_cmp_lg_u32 s3, 0
    s_cbranch_scc1 k2_cv_skip33
    buffer_load_dwordx4 v3, s[8:11], s24 offen lds
    """)
    a.label("k2_cv_skip33")
    a(f"""
    s_add_u32 s26, s23, 64
    buffer_load_dwordx4 v[8:11], v5, s[8:11], s26 offen
    """)
    TBL = KHL + 12288
    a(f"""
    v_mov_b32 v12, 0x800
    v_lshlrev_b32 v13, 8, v4
    v_subrev_u32 v13, 0xc00, v13          ; 256*i - 3072
    v_cmp_gt_u32 vcc, 20, v4
    s_nop 1
    v_cndmask_b32 v12, v12, v13, vcc
    v_and_b32 v13, 1, v4
    v_lshlrev_b32 v13, 2, v13
    v_bfe_u32 v14, v4, 1, 1
    v_lshl_add_u32 v13, v14, 8, v13
    v_add_u32 v13, 0x200, v13             ; 512 + 4*(i&1) + 256*((i>>1)&1)
    v_cmp_gt_u32 vcc, 16, v4
    s_nop 1
    v_cndmask_b32 v12, v12, v13, vcc
    v_lshlrev_b32 v13, 1, v4
    v_add_u32 v13, 0xf0, v13              ; 240 + 2i
    v_cmp_gt_u32 vcc, 12, v4
    s_nop 1
    v_cndmask_b32 v12, v12, v13, vcc
    v_cmp_gt_u32 vcc, 8, v4
    s_nop 1
    v_cndmask_b32 v12, v12, v4, vcc
    v_cvt_f32_u32 v12, v12                ; vRho
    v_lshlrev_b32 v13, 3, v4
    v_cvt_f32_u32 v13, v13                ; vTau
    s_lshl_b32 s32, s3, 9
    s_add_u32 s32, s32, {TBL}
    v_lshlrev_b32 v14, 4, v4
    v_add_u32 v14, s32, v14
    v_lshlrev_b32 v15, 4, v6
    v_add_u32 v15, s32, v15
    s_mov_b32 s33, 0x3fb8aa3b             ; log2e
    s_mov_b32 s34, 0x3e22f983             ; 1/(2pi)
    s_mov_b32 s35, 0xffff0000
    s_waitcnt vmcnt(9)
    v_lshlrev_b32 v80, 16, v80
    v_lshlrev_b32 v81, 16, v81
    v_lshlrev_b32 v82, 16, v82
    v_lshlrev_b32 v83, 16, v83
    v_lshlrev_b32 v84, 16, v84
    v_lshlrev_b32 v85, 16, v85
    v_lshlrev_b32 v86, 16, v86
    v_mul_f32 v86, s33, v86
    v_exp_f32 v86, v86
    s_nop 0
    v_cvt_pk_bf16_f32 v86, v86, v86
    v_and_b32 v86, s35, v86               ; dt
    v_mul_f32 v80, v86, v80               ; lr
    v_mul_f32 v81, v86, v81               ; li
    v_mul_f32 v82, v86, v82               ; dBr
    v_mul_f32 v83, v86, v83               ; dBi
    v_mul_f32 v88, s33, v80               ; lr2
    v_mul_f32 v89, s34, v81               ; lif
    v_mul_f32 v90, v84, v82
    v_fma_f32 v90, -v85, v83, v90         ; CBr
    v_mul_f32 v91, v84, v83
    v_fma_f32 v91, v85, v82, v91          ; CBi
    ds_write_b128 v14, v[88:91]
    """)
    KA = 16
    for i in range(16):
        a(f"v_mov_b32 v{KA+i}, 0")
    a("s_waitcnt lgkmcnt(0)")
    PA = 92
    a(f"ds_read_b128 v[{PA}:{PA+3}], v15")
    for q in range(16):
        p = PA + 4 * (q & 1)
        pn = PA + 4 * ((q + 1) & 1)
        if q < 15:
            a(f"ds_read_b128 v[{pn}:{pn+3}], v15 offset:{32*(q+1)}")
            a("s_waitcnt lgkmcnt(1)")
        else:
            a("s_waitcnt lgkmcnt(0)")
        t = 100 + 12 * (q & 1)
        a(f"""
        v_mul_f32 v{t}, v{p}, v12
        v_mul_f32 v{t+1}, v{p+1}, v12
        v_mul_f32 v{t+6}, v{p}, v13
        v_mul_f32 v{t+7}, v{p+1}, v13
        v_exp_f32 v{t}, v{t}
        v_fract_f32 v{t+1}, v{t+1}
        v_exp_f32 v{t+6}, v{t+6}
        v_fract_f32 v{t+7}, v{t+7}
        v_cos_f32 v{t+2}, v{t+1}
        v_sin_f32 v{t+3}, v{t+1}
        v_cos_f32 v{t+8}, v{t+7}
        v_sin_f32 v{t+9}, v{t+7}
        v_mul_f32 v{t+2}, v{t}, v{t+2}
        v_mul_f32 v{t+3}, v{t}, v{t+3}
        v_mul_f32 v{t+8}, v{t+6}, v{t+8}
        v_mul_f32 v{t+9}, v{t+6}, v{t+9}
        v_mul_f32 v{t+4}, v{p+2}, v{t+2}
        v_mul_f32 v{t+5}, v{p+2}, v{t+3}
        v_fma_f32 v{t+4}, -v{p+3}, v{t+3}, v{t+4}
        v_fma_f32 v{t+5}, -v{p+3}, v{t+2}, -v{t+5}
        s_nop 1
        v_mfma_f32_32x32x2_f32 v[{KA}:{KA+15}], v{t+4}, v{t+8}, v[{KA}:{KA+15}]
        v_mfma_f32_32x32x2_f32 v[{KA}:{KA+15}], v{t+5}, v{t+9}, v[{KA}:{KA+15}]
        """)
    a(f"""
    v_lshlrev_b32 v3, 3, v0
    v_sub_u32 v3, 0x7ff, v3              ; jj0 = 2047 - 8t
    s_movk_i32 s36, 0x7fff
    s_movk_i32 s37, 0x100
    s_movk_i32 s38, 0x200
    s_movk_i32 s39, 0x400
    """)
    for e in range(8):
        r = 80 + e
        a(f"""
        v_subrev_u32 v{r}, {e}, v3
        v_cvt_f32_u32 v{r}, v{r}
        v_bfe_u32 v7, v{r}, 16, 1
        v_add3_u32 v{r}, v{r}, v7, s36
        v_and_b32 v{r}, s35, v{r}
        v_cvt_u32_f32 v{r}, v{r}             ; r
        v_and_b32 v7, 7, v{r}                ; row (r<256)
        v_bfe_u32 v14, v{r}, 1, 2
        v_add_u32 v14, 8, v14
        v_cmp_le_u32 vcc, s37, v{r}
        v_bfe_u32 v15, v{r}, 2, 1
        v_cndmask_b32 v7, v7, v14, vcc
        v_bfe_u32 v14, v{r}, 8, 1
        v_lshl_add_u32 v14, v14, 1, v15
        v_add_u32 v14, 12, v14
        v_cmp_le_u32 vcc, s38, v{r}
        v_lshrrev_b32 v15, 8, v{r}
        v_cndmask_b32 v7, v7, v14, vcc
        v_add_u32 v15, 12, v15
        v_cmp_le_u32 vcc, s39, v{r}
        v_bfe_u32 v{r}, v{r}, 3, 5           ; col
        v_cndmask_b32 v7, v7, v15, vcc       ; row
        v_lshlrev_b32 v{r}, 4, v{r}          ; col*16
        v_lshrrev_b32 v14, 3, v7
        v_lshl_add_u32 v{r}, v14, 10, v{r}   ; + q*1024
        v_bfe_u32 v14, v7, 2, 1
        v_lshl_add_u32 v{r}, v14, 9, v{r}    ; + h*512
        v_and_b32 v14, 3, v7
        v_lshl_add_u32 v{r}, v14, 2, v{r}    ; + e*4
        """)
    a(f"""
    s_mul_i32 s36, s3, 3072
    v_lshlrev_b32 v7, 4, v2
    v_add_u32 v7, s36, v7
    ds_write_b128 v7, v[{KA}:{KA+3}] offset:{KHL}
    ds_write_b128 v7, v[{KA+4}:{KA+7}] offset:{KHL+1024}
    ds_write_b128 v7, v[{KA+8}:{KA+11}] offset:{KHL+2048}
    s_waitcnt lgkmcnt(0)
    s_barrier
    s_cmp_eq_u32 s3, 3
    s_cbranch_scc1 k2_cv_nored
    ds_read_b128 v[16:19], v5 offset:{KHL}
    ds_read_b128 v[20:23], v5 offset:{KHL+3072}
    ds_read_b128 v[24:27], v5 offset:{KHL+6144}
    ds_read_b128 v[28:31], v5 offset:{KHL+9216}
    s_waitcnt lgkmcnt(0)
    v_add_f32 v16, v16, v20
    v_add_f32 v17, v17, v21
    v_add_f32 v18, v18, v22
    v_add_f32 v19, v19, v23
    v_add_f32 v24, v24, v28
    v_add_f32 v25, v25, v29
    v_add_f32 v26, v26, v30
    v_add_f32 v27, v27, v31
    v_add_f32 v16, v16, v24
    v_add_f32 v17, v17, v25
    v_add_f32 v18, v18, v26
    v_add_f32 v19, v19, v27
    ds_write_b128 v5, v[16:19] offset:{TBL}
    """)
    a.label("k2_cv_nored")
    a(f"""
    s_waitcnt lgkmcnt(0)
    s_barrier
    """)
    for e in range(8):
        a(f"ds_read_b32 v{16+e}, v{80+e} offset:{TBL}")
    a(f"""
    v_and_b32 v7, 3, v0
    v_mul_u32_u24 v7, 96, v7
    v_lshrrev_b32 v14, 2, v0
    v_add_u32 v7, v7, v14
    v_lshlrev_b32 v7, 4, v7               ; 16*pos(t)
    v_mov_b32 v40, 0
    v_mov_b32 v41, 0
    v_mov_b32 v42, 0
    v_mov_b32 v43, 0
    s_waitcnt lgkmcnt(0)
    """)
    for e in range(0, 8, 2):
        a(f"v_cvt_pk_bf16_f32 v{32+e//2}, v{16+e}, v{17+e}")
    for e in range(0, 8, 2):
        a(f"v_lshlrev_b32 v{24+e}, 16, v{32+e//2}")
        a(f"v_and_b32 v{25+e}, s35, v{32+e//2}")
    for e in range(8):
        a(f"v_sub_f32 v{16+e}, v{16+e}, v{24+e}")
    for e in range(0, 8, 2):
        a(f"v_cvt_pk_bf16_f32 v{36+e//2}, v{16+e}, v{17+e}")
    a(f"""
    ds_write_b128 v7, v[32:35] offset:{KHL}
    ds_write_b128 v7, v[36:39] offset:{KHL+6144}
    s_cmp_ge_u32 s3, 2
    s_cbranch_scc1 k2_cv_nozero
    ds_write_b128 v7, v[40:43] offset:{KHL+1024}
    ds_write_b128 v7, v[40:43] offset:{KHL+6144+1024}
    """)
    a.label("k2_cv_nozero")
    a(f"""
    s_mov_b32 s35, 0
    s_cmp_eq_u32 s3, 1
    s_cselect_b32 s35, 48, s35
    s_cmp_eq_u32 s3, 2
    s_cselect_b32 s35, 80, s35
    s_cmp_eq_u32 s3, 3
    s_cselect_b32 s35, 104, s35       ; c_start
    v_lshl_add_u32 v12, v6, 3, v4
    v_add_u32 v12, 1, v12
    v_lshlrev_b32 v12, 4, v12         ; 16*(b+1+8kg)
    s_lshl_b32 s36, s35, 8
    v_add_u32 v12, s36, v12
    v_mul_u32_u24 v13, 96, v6
    v_sub_u32 v13, v13, v4
    v_add_u32 v13, 31, v13
    v_lshlrev_b32 v13, 4, v13
    s_lshl_b32 s36, s35, 3            ; 16*(c/2)
    s_add_u32 s36, s36, {KHL}
    v_add_u32 v13, s36, v13           ; vB
    """)
    ACC1, ACC2, ACC0, ACC3 = 16, 32, 48, 64
    for i in range(64):
        a(f"v_mov_b32 v{16+i}, 0")
    F = [80, 104]
    a("""
    s_waitcnt vmcnt(0) lgkmcnt(0)
    s_barrier
    """)
    stamp(a, 1)
    def mf(acc, A, B):
        a(f"v_mfma_f32_32x32x16_bf16 v[{acc}:{acc+15}], v[{A}:{A+3}], v[{B}:{B+3}], v[{acc}:{acc+15}]")
    def rd(dst, base, off):
        a(f"ds_read_b128 v[{dst}:{dst+3}], v{base} offset:{off}")
    def single_reads(u, f):
        for cc in range(2):
            c = 2 * u + cc
            rd(f + 12*cc, 12, AS * c)
            rd(f + 12*cc + 4, 13, 16 * (c // 2) + 3072 * (c & 1))
            rd(f + 12*cc + 8, 13, 16 * (c // 2) + 3072 * (c & 1) + 6144)
    def single_mfma(f):
        mf(ACC1, f, f + 4); mf(ACC2, f, f + 8)
        mf(ACC1, f + 12, f + 16); mf(ACC2, f + 12, f + 20)
    def dual_reads(c, f):
        rd(f, 12, AS * c + 64 * AS)
        rd(f + 4, 12, AS * c)
        rd(f + 8, 13, 16 * (c // 2) + 3072 * (c & 1))
        rd(f + 12, 13, 16 * (c // 2) + 3072 * (c & 1) + 6144)
    def dual_mfma(f):
        mf(ACC1, f, f + 8); mf(ACC0, f + 4, f + 8)
        mf(ACC2, f, f + 12); mf(ACC3, f + 4, f + 12)
    a(f"""
    s_cmp_ge_u32 s3, 2
    s_cbranch_scc1 k2_cv_dual_pre
    s_cmp_eq_u32 s3, 0
    s_cselect_b32 s37, 3, 1
    """)
    single_reads(0, F[0])
    a.label("k2_cv_sloop")
    for u in range(8):
        single_reads(u + 1, F[(u + 1) & 1])
        a("s_waitcnt lgkmcnt(6)")
        single_mfma(F[u & 1])
    a(f"""
    v_add_u32 v12, {16*AS}, v12
    v_add_u32 v13, 0x80, v13
    s_sub_u32 s37, s37, 1
    s_cmp_lg_u32 s37, 0
    s_cbranch_scc1 k2_cv_sloop
    s_cmp_eq_u32 s3, 0
    s_cbranch_scc1 k2_cv_fin
    """)
    a.label("k2_cv_dual_pre")
    a(f"""
    v_subrev_u32 v12, {64*AS}, v12
    s_cmp_eq_u32 s3, 1
    s_cselect_b32 s37, 2, 3
    s_waitcnt lgkmcnt(0)
    """)
    dual_reads(0, F[0])
    a.label("k2_cv_dloop")
    for u in range(8):
        dual_reads(u + 1, F[(u + 1) & 1])
        a("s_waitcnt lgkmcnt(4)")
        dual_mfma(F[u & 1])
    a(f"""
    v_add_u32 v12, {8*AS}, v12
    v_add_u32 v13, 0x40, v13
    s_sub_u32 s37, s37, 1
    s_cmp_lg_u32 s37, 0
    s_cbranch_scc1 k2_cv_dloop
    """)
    a.label("k2_cv_fin")
    stamp(a, 2)
    a(f"""
    s_waitcnt lgkmcnt(0)
    s_nop 7
    s_nop 7
    """)
    for i in range(16):
        a(f"v_add_f32 v{ACC1+i}, v{ACC1+i}, v{ACC2+i}")
        a(f"v_add_f32 v{ACC0+i}, v{ACC0+i}, v{ACC3+i}")
    a(f"""
    s_barrier
    v_mul_u32_u24 v14, 144, v4
    v_lshl_add_u32 v14, v6, 4, v14     ; a_l*144 + 16h
    s_mul_i32 s36, s3, 4608
    v_add_u32 v14, s36, v14
    """)
    for q in range(4):
        a(f"ds_write_b128 v14, v[{ACC1+4*q}:{ACC1+4*q+3}] offset:{32*q}")
    a(f"""
    s_cmp_eq_u32 s3, 0
    s_cbranch_scc1 k2_cv_w0
    """)
    for q in range(4):
        a(f"ds_write_b128 v14, v[{ACC0+4*q}:{ACC0+4*q+3}] offset:{32*q + 3*4608}")
    a.label("k2_cv_w0")
    a(f"""
    v_lshrrev_b32 v14, 2, v0
    v_and_b32 v14, 31, v14
    v_mul_u32_u24 v14, 144, v14
    v_and_b32 v15, 3, v0
    v_lshl_add_u32 v14, v15, 5, v14    ; a_l*144 + sub*32
    s_cmp_lt_u32 s3, 2
    s_cselect_b32 s36, {4*4608}, 0
    v_add_u32 v14, s36, v14
    s_waitcnt lgkmcnt(0)
    s_barrier
    """)
    for s in range(3):
        a(f"ds_read_b128 v[{16+8*s}:{19+8*s}], v14 offset:{s*4608}")
        a(f"ds_read_b128 v[{20+8*s}:{23+8*s}], v14 offset:{s*4608+16}")
    a(f"""
    s_cmp_lt_u32 s3, 2
    s_cbranch_scc1 k2_cv_no4
    ds_read_b128 v[40:43], v14 offset:{3*4608}
    ds_read_b128 v[44:47], v14 offset:{3*4608+16}
    s_waitcnt lgkmcnt(0)
    """)
    for i in range(8):
        a(f"v_add_f32 v{16+i}, v{16+i}, v{40+i}")
    a.label("k2_cv_no4")
    a(f"""
    s_waitcnt lgkmcnt(0)
    s_and_b32 s21, s20, 1
    s_lshl_b32 s21, s21, 4
    s_lshr_b32 s22, s22, s21
    s_lshl_b32 s22, s22, 16
    s_mov_b32 s23, 0xffff0000
    s_lshl_b32 s24, s20, 12
    """)
    for i in range(8):
        a(f"v_add_f32 v{24+i}, v{24+i}, v{32+i}")
    for i in range(8):
        a(f"v_add_f32 v{16+i}, v{16+i}, v{24+i}")
    for j in range(4):
        a(f"""
        v_cvt_pk_bf16_f32 v24, v{16+2*j}, v{17+2*j}
        v_lshlrev_b32 v25, 16, v{8+j}
        v_and_b32 v26, s23, v{8+j}
        v_mul_f32 v25, s22, v25
        v_mul_f32 v26, s22, v26
        v_cvt_pk_bf16_f32 v27, v25, v26
        v_lshlrev_b32 v25, 16, v24
        v_and_b32 v26, s23, v24
        v_lshlrev_b32 v28, 16, v27
        v_and_b32 v29, s23, v27
        v_add_f32 v25, v25, v28
        v_add_f32 v26, v26, v29
        v_cvt_pk_bf16_f32 v{32+j}, v25, v26
        """)
    a(f"""
    buffer_store_dwordx4 v[32:35], v5, s[16:19], s24 offen
    """)
    stamp_out(a, 1, 3, "k2_done")
    a("s_branch k2_done")

    a.label("k2_gemm")
    a(f"""
    s_load_dwordx2 s[4:5], s[0:1], 80 ; w1
    s_and_b32 s20, s2, 15             ; mt
    s_lshr_b32 s21, s2, 4             ; nt
    s_waitcnt lgkmcnt(0)
    """)
    stamp(a, 0)
    srd(a, 8, 6, 7, 0x200000)
    srd(a, 12, 4, 5, 512 * 2752)
    srd_off(a, 16, 6, 7, H_OFF, H_SZ)
    ST = 14336
    a(f"""
    v_lshrrev_b32 v3, 2, v2
    s_lshl_b32 s22, s3, 5
    v_add_u32 v3, s22, v3              ; row = 32w + (l>>2)
    v_lshlrev_b32 v3, 10, v3
    v_lshrrev_b32 v4, 4, v2
    v_xor_b32 v4, v4, v2
    v_and_b32 v4, 3, v4
    v_lshl_add_u32 v3, v4, 4, v3       ; voffA
    s_mul_i32 s22, s3, 96
    v_add_u32 v4, s22, v2              ; P = 96w + l
    v_add_u32 v5, 64, v4
    s_movk_i32 s23, 5462               ; 65536/12
    s_movk_i32 s24, 2752
    v_mul_u32_u24 v6, s23, v4
    v_lshrrev_b32 v6, 16, v6           ; row
    v_mul_u32_u24 v7, 12, v6
    v_sub_u32 v4, v4, v7               ; cc
    v_lshlrev_b32 v4, 4, v4
    v_mad_u32_u24 v4, v6, s24, v4      ; voffB0
    v_mul_u32_u24 v6, s23, v5
    v_lshrrev_b32 v6, 16, v6
    v_mul_u32_u24 v7, 12, v6
    v_sub_u32 v5, v5, v7
    v_lshlrev_b32 v5, 4, v5
    v_mad_u32_u24 v5, v6, s24, v5      ; voffB1
    s_lshl_b32 s25, s20, 17
    s_mul_i32 s26, s21, 192
    s_lshl_b32 s27, s3, 11             ; m0 A = 2048w
    s_mul_i32 s28, s3, 1536
    s_add_u32 s28, s28, 8192           ; m0 B
    s_mov_b64 s[30:31], -1
    s_mov_b32 s32, -1
    s_mov_b32 s33, 0
    """)
    def dma(kc):
        st = (kc % 3) * ST
        a(f"""
        s_add_u32 m0, s27, {st}
        s_add_u32 s29, s25, {kc*64 + 16384}
        buffer_load_dwordx4 v3, s[8:11], s25 offen offset:{0} lds
        s_add_u32 m0, s27, {st + 1024}
        s_nop 0
        buffer_load_dwordx4 v3, s[8:11], s29 offen lds
        s_add_u32 m0, s28, {st}
        s_nop 0
        buffer_load_dwordx4 v4, s[12:15], s26 offen lds
        s_add_u32 m0, s28, {st + 1024}
        s_mov_b64 exec, s[32:33]
        buffer_load_dwordx4 v5, s[12:15], s26 offen lds
        s_mov_b64 exec, s[30:31]
        s_add_u32 s25, s25, 64
        s_add_u32 s26, s26, {32*2752}
        """)
    a(f"""
    v_and_b32 v6, 31, v2               ; m
    v_lshrrev_b32 v7, 5, v2            ; kg / h
    s_lshl_b32 s22, s3, 5
    v_add_u32 v8, s22, v6
    v_lshlrev_b32 v8, 6, v8            ; row*64
    v_lshrrev_b32 v9, 2, v6
    v_and_b32 v9, 3, v9                ; (row>>2)&3
    v_xor_b32 v10, v9, v7
    v_lshl_add_u32 v10, v10, 4, v8     ; vAr0
    v_xor_b32 v11, 2, v9
    v_xor_b32 v11, v11, v7
    v_lshl_add_u32 v11, v11, 4, v8
    v_lshlrev_b32 v12, 3, v7           ; 8*kg
    v_bfe_u32 v13, v2, 2, 2
    v_add_u32 v12, v12, v13
    v_mul_u32_u24 v12, 192, v12
    v_bfe_u32 v13, v2, 4, 1
    v_lshl_add_u32 v12, v13, 5, v12    ; + 32*((l>>4)&1)
    v_and_b32 v13, 3, v2
    v_lshl_add_u32 v12, v13, 3, v12    ; + 8*(l&3)
    v_add_u32 v12, 8192, v12           ; vBr
    """)
    ACC = 16
    for i in range(48):
        a(f"v_mov_b32 v{ACC+i}, 0")
    return_dma = dma
    def dma2(kc):
        st = (kc % 3) * ST
        a(f"""
        s_add_u32 m0, s27, {st}
        s_add_u32 s29, s25, 0x4000
        buffer_load_dwordx4 v3, s[8:11], s25 offen lds
        s_add_u32 m0, s27, {st + 1024}
        s_add_u32 s25, s25, 64
        buffer_load_dwordx4 v3, s[8:11], s29 offen lds
        s_add_u32 m0, s28, {st}
        s_nop 0
        buffer_load_dwordx4 v4, s[12:15], s26 offen lds
        s_add_u32 m0, s28, {st + 1024}
        s_mov_b64 exec, s[32:33]
        buffer_load_dwordx4 v5, s[12:15], s26 offen lds
        s_mov_b64 exec, s[30:31]
        s_add_u32 s26, s26, {32*2752}
        """)
    dma2(0); dma2(1)
    FA = 64
    FB = 72
    for kc in range(16):
        st = (kc % 3) * ST
        a(f"s_waitcnt vmcnt({4 if kc < 15 else 0})")
        a("s_barrier")
        if kc == 0: stamp(a, 1)
        if kc + 2 < 16:
            dma2(kc + 2)
        for ks in range(2):
            a(f"ds_read_b128 v[{FA+4*ks}:{FA+4*ks+3}], v{10+ks} offset:{st}")
            for j in range(3):
                b = FB + 12 * ks + 4 * j
                off = st + ks * 16 * 192 + 64 * j
                a(f"ds_read_b64_tr_b16 v[{b}:{b+1}], v12 offset:{off}")
                a(f"ds_read_b64_tr_b16 v[{b+2}:{b+3}], v12 offset:{off + 4*192}")
        for ks in range(2):
            for j in range(3):
                left = (1 - ks) * 7 + (2 - j) * 2
                a(f"s_waitcnt lgkmcnt({left})")
                b = FB + 12 * ks + 4 * j
                a(f"v_mfma_f32_32x32x16_bf16 v[{ACC+16*j}:{ACC+16*j+15}], v[{b}:{b+3}], v[{FA+4*ks}:{FA+4*ks+3}], v[{ACC+16*j}:{ACC+16*j+15}]")
    stamp(a, 2)
    a(f"""
    s_barrier
    s_lshl_b32 s22, s3, 5
    v_add_u32 v8, s22, v6
    v_mul_u32_u24 v8, 208, v8
    v_lshl_add_u32 v8, v7, 3, v8       ; row*208 + 8h
    s_nop 7
    s_nop 3
    """)
    for j in range(3):
        for q in range(4):
            r = ACC + 16 * j + 4 * q
            a(f"""
            v_max_f32 v{r}, 0, v{r}
            v_max_f32 v{r+1}, 0, v{r+1}
            v_max_f32 v{r+2}, 0, v{r+2}
            v_max_f32 v{r+3}, 0, v{r+3}
            v_cvt_pk_bf16_f32 v{r}, v{r}, v{r+1}
            v_cvt_pk_bf16_f32 v{r+1}, v{r+2}, v{r+3}
            ds_write_b64 v8, v[{r}:{r+1}] offset:{64*j + 16*q}
            """)
    a(f"""
    s_mul_i32 s22, s3, {32*208}
    s_lshl_b32 s25, s20, 7
    s_lshl_b32 s26, s3, 5
    s_add_u32 s25, s25, s26
    s_mul_i32 s25, s25, {H_RS}
    s_mul_i32 s26, s21, 192
    s_add_u32 s25, s25, s26
    s_mul_i32 s26, s21, 96
    s_movk_i32 s27, {H_RS}
    s_movk_i32 s28, 208
    s_mov_b32 s29, 0x40000000
    s_movk_i32 s34, 1376
    s_movk_i32 s35, 1408
    s_waitcnt lgkmcnt(0)
    """)
    for i in range(6):
        a(f"""
        v_add_u32 v9, {64*i}, v2
        v_mul_u32_u24 v10, s23, v9
        v_lshrrev_b32 v10, 16, v10         ; row
        v_mul_u32_u24 v11, 12, v10
        v_sub_u32 v9, v9, v11              ; cc
        v_lshlrev_b32 v11, 4, v9
        v_mad_u32_u24 v12, v10, s28, v11
        v_add_u32 v12, s22, v12
        ds_read_b128 v[{64+4*i}:{67+4*i}], v12
        v_mad_u32_u24 v{90+i}, v10, s27, v11
        v_lshl_add_u32 v{96+i}, v9, 3, s26 ; col
        """)
    for i in range(6):
        a(f"""
        s_waitcnt lgkmcnt({5-i})
        v_cmp_gt_u32 vcc, s34, v{96+i}
        v_mov_b32 v9, s29
        v_cndmask_b32 v{64+4*i}, 0, v{64+4*i}, vcc
        v_cndmask_b32 v{65+4*i}, 0, v{65+4*i}, vcc
        v_cndmask_b32 v{66+4*i}, 0, v{66+4*i}, vcc
        v_cndmask_b32 v{67+4*i}, 0, v{67+4*i}, vcc
        v_cmp_gt_u32 vcc, s35, v{96+i}
        s_nop 1
        v_cndmask_b32 v{90+i}, v9, v{90+i}, vcc
        buffer_store_dwordx4 v[{64+4*i}:{67+4*i}], v{90+i}, s[16:19], s25 offen
        """)
    stamp_out(a, 1, 3, "k2_done")
    a.label("k2_done")
    a("s_endpgm")

def add(kernels, launches):
    a = Asm()
    gen_k2(a)
    kernels.append(("k2_kernel", a.text(), 128))
    launches.append(f"; @launch kernel=k2_kernel grid=({N_G1+N_CV},1,1) block=(256,1,1) lds={K2_LDS}")
    try:
        import gen3
        gen3.add(kernels, launches)
    except ImportError:
        pass
```

```python
from gen import *

N_G2 = 256
NST = 4
K3_LDS = 4 * NST * 8192

def gen_k3(a):
    a.label("k3_kernel")
    a(f"""
    s_cmp_ge_u32 s2, {N_G2}
    s_cbranch_scc1 k3_done
    v_lshrrev_b32 v1, 6, v0
    v_and_b32 v2, 63, v0              ; lane
    s_load_dwordx2 s[6:7], s[0:1], 112 ; ws
    s_load_dwordx2 s[4:5], s[0:1], 88  ; w2
    s_load_dwordx2 s[36:37], s[0:1], 0 ; x
    s_load_dwordx2 s[38:39], s[0:1], 96 ; out
    v_readfirstlane_b32 s3, v1
    s_and_b32 s20, s2, 31             ; mt
    s_lshr_b32 s21, s2, 5             ; nt
    v_lshrrev_b32 v3, 2, v2
    s_movk_i32 s22, {H_RS}
    v_mul_u32_u24 v3, s22, v3
    v_lshrrev_b32 v4, 4, v2
    v_xor_b32 v4, v4, v2
    v_and_b32 v4, 3, v4
    v_lshl_add_u32 v3, v4, 4, v3       ; voffA
    v_lshrrev_b32 v4, 3, v2
    v_lshlrev_b32 v4, 10, v4
    v_bfe_u32 v5, v2, 4, 1
    v_lshlrev_b32 v5, 2, v5
    v_and_b32 v6, 7, v2
    v_xor_b32 v5, v5, v6
    v_lshl_add_u32 v4, v5, 4, v4       ; voffB
    s_waitcnt lgkmcnt(0)
    """)
    stamp(a, 0)
    srd_off(a, 8, 6, 7, H_OFF, H_SZ)
    srd(a, 12, 4, 5, 1376 * 1024)
    srd_off(a, 16, 6, 7, YT_OFF, 0x200000)
    srd(a, 40, 36, 37, 0x200000)
    srd(a, 44, 38, 39, 0x200000)
    a(f"""
    s_mul_i32 s25, s20, {64*H_RS}
    s_mul_i32 s26, s3, 704
    s_add_u32 s25, s25, s26
    s_mul_i32 s26, s3, {352*1024}
    s_lshl_b32 s27, s21, 7
    s_add_u32 s26, s26, s27            ; soffB
    s_lshl_b32 s27, s3, {15 if NST == 4 else 0}
    """)
    def dma(kc):
        st = (kc % NST) * 8192
        for i in range(4):
            a(f"""
            s_add_u32 m0, s27, {st + 1024*i}
            s_add_u32 s28, s25, {kc*64 + i*16*H_RS}
            buffer_load_dwordx4 v3, s[8:11], s28 offen lds
            """)
        for i in range(4):
            a(f"""
            s_add_u32 m0, s27, {st + 4096 + 1024*i}
            s_add_u32 s28, s26, {kc*32768 + i*8192}
            buffer_load_dwordx4 v4, s[12:15], s28 offen lds
            """)
    for kc in range(NST - 1):
        dma(kc)
    AT = 112; XV = 128
    a(f"""
    v_and_b32 v5, 3, v0
    v_lshlrev_b32 v5, 16, v5           ; 16*(t&3)*4096
    v_lshrrev_b32 v6, 2, v0
    v_lshl_add_u32 v5, v6, 1, v5       ; + 2*(t>>2)
    s_lshl_b32 s29, s21, 18            ; n0*4096
    s_lshl_b32 s30, s20, 7
    s_add_u32 s29, s29, s30
    v_lshlrev_b32 v7, 10, v6           ; row*1024
    v_and_b32 v8, 3, v0
    v_lshl_add_u32 v7, v8, 5, v7       ; + 32*(t&3)
    s_lshl_b32 s30, s20, 16
    s_lshl_b32 s31, s21, 7
    s_add_u32 s30, s30, s31
    buffer_load_dwordx4 v[{XV}:{XV+3}], v7, s[40:43], s30 offen
    buffer_load_dwordx4 v[{XV+4}:{XV+7}], v7, s[40:43], s30 offen offset:16
    """)
    for i in range(16):
        a(f"buffer_load_ushort v{AT + i}, v5, s[16:19], s29 offen")
        a(f"s_add_u32 s29, s29, 0x1000")
    NEX = 18
    a(f"""
    v_and_b32 v8, 31, v2               ; idx
    v_lshrrev_b32 v9, 5, v2            ; kg / h
    v_lshlrev_b32 v10, 6, v8
    v_add_u32 v10, s27, v10
    v_bfe_u32 v11, v8, 2, 2
    v_xor_b32 v12, v11, v9
    v_lshl_add_u32 v12, v12, 4, v10    ; vH0
    v_xor_b32 v13, 2, v11
    v_xor_b32 v13, v13, v9
    v_lshl_add_u32 v13, v13, 4, v10    ; vH1
    v_lshlrev_b32 v14, 3, v9
    v_bfe_u32 v15, v2, 2, 2
    v_add_u32 v14, v14, v15
    v_lshlrev_b32 v14, 7, v14          ; row*128
    v_bfe_u32 v15, v2, 4, 1
    v_lshl_add_u32 v14, v15, 5, v14
    v_and_b32 v15, 3, v2
    v_lshl_add_u32 v14, v15, 3, v14
    v_bfe_u32 v15, v2, 3, 1
    v_lshl_add_u32 v14, v15, 6, v14
    v_add_u32 v14, s27, v14
    v_add_u32 v14, 0x1000, v14         ; vW0
    v_xor_b32 v15, 64, v14             ; vW1
    """)
    ACC = 16
    for i in range(64):
        a(f"v_mov_b32 v{ACC+i}, 0")
    FH = 80; FW = 96
    NCH = 11
    for kc in range(NCH):
        st = (kc % NST) * 8192
        later = min(kc + NST - 2, NCH - 1) - kc
        cnt = 8 * later + (NEX if kc < NST - 2 + 0 and False else 0)
        if kc <= NST - 2:
            cnt += NEX
        a(f"s_waitcnt vmcnt({min(cnt, 63)})")
        if kc == 0: stamp(a, 1)
        for ks in range(2):
            for jm in range(2):
                f = FH + 8 * ks + 4 * jm
                a(f"ds_read_b128 v[{f}:{f+3}], v{12+ks} offset:{st + 2048*jm}")
            for jn in range(2):
                f = FW + 8 * ks + 4 * jn
                a(f"ds_read_b64_tr_b16 v[{f}:{f+1}], v{14+jn} offset:{st + ks*2048}")
                a(f"ds_read_b64_tr_b16 v[{f+2}:{f+3}], v{14+jn} offset:{st + ks*2048 + 512}")
        if kc + NST - 1 < NCH:
            dma(kc + NST - 1)
        for ks in range(2):
            a(f"s_waitcnt lgkmcnt({6 if ks == 0 else 0})")
            for jn in range(2):
                for jm in range(2):
                    acc = ACC + 16 * (2 * jn + jm)
                    w = FW + 8 * ks + 4 * jn
                    h = FH + 8 * ks + 4 * jm
                    a(f"v_mfma_f32_32x32x16_bf16 v[{acc}:{acc+15}], v[{w}:{w+3}], v[{h}:{h+3}], v[{acc}:{acc+15}]")
    stamp(a, 2)
    a(f"""
    s_barrier
    v_mul_u32_u24 v10, 272, v8
    v_lshl_add_u32 v10, v9, 4, v10
    s_mul_i32 s28, s3, 17408
    v_add_u32 v10, s28, v10
    s_nop 7
    s_nop 3
    """)
    for jn in range(2):
        for jm in range(2):
            for q in range(4):
                r = ACC + 16 * (2 * jn + jm) + 4 * q
                a(f"ds_write_b128 v10, v[{r}:{r+3}] offset:{jm*32*272 + jn*128 + q*32}")
    a(f"""
    v_lshrrev_b32 v11, 2, v0
    v_mul_u32_u24 v11, 272, v11
    v_and_b32 v12, 3, v0
    v_lshl_add_u32 v11, v12, 6, v11
    s_mov_b32 s23, 0xffff0000
    s_waitcnt lgkmcnt(0)
    s_barrier
    """)
    for p in range(4):
        for c in range(4):
            r = 16 + 16 * p + 4 * c
            a(f"ds_read_b128 v[{r}:{r+3}], v11 offset:{p*17408 + 16*c}")
    a("s_waitcnt lgkmcnt(8)")
    for i in range(16):
        a(f"v_add_f32 v{16+i}, v{16+i}, v{32+i}")
    a("s_waitcnt lgkmcnt(0)")
    for i in range(16):
        a(f"v_add_f32 v{48+i}, v{48+i}, v{64+i}")
    for i in range(16):
        a(f"v_add_f32 v{16+i}, v{16+i}, v{48+i}")
    a("s_waitcnt vmcnt(0)")
    for j in range(8):
        a(f"""
        v_cvt_pk_bf16_f32 v32, v{16+2*j}, v{17+2*j}
        v_lshlrev_b32 v33, 16, v{XV+j}
        v_and_b32 v34, s23, v{XV+j}
        v_lshlrev_b32 v35, 16, v{AT+2*j}
        v_lshlrev_b32 v36, 16, v{AT+2*j+1}
        v_add_f32 v33, v33, v35
        v_add_f32 v34, v34, v36
        v_cvt_pk_bf16_f32 v33, v33, v34
        v_lshlrev_b32 v35, 16, v32
        v_and_b32 v36, s23, v32
        v_lshlrev_b32 v37, 16, v33
        v_and_b32 v38, s23, v33
        v_add_f32 v35, v35, v37
        v_add_f32 v36, v36, v38
        v_cvt_pk_bf16_f32 v{40+j}, v35, v36
        """)
    a(f"""
    buffer_store_dwordx4 v[40:43], v7, s[44:47], s30 offen
    buffer_store_dwordx4 v[44:47], v7, s[44:47], s30 offen offset:16
    """)
    stamp_out(a, 2, 3, "k3_done")
    a.label("k3_done")
    a("s_endpgm")

def add(kernels, launches):
    a = Asm()
    gen_k3(a)
    kernels.append(("k3_kernel", a.text(), 136))
    launches.append(f"; @launch kernel=k3_kernel grid=({N_G2},1,1) block=(256,1,1) lds={K3_LDS}")
```

```python
import sys, re, os
VAR = os.environ.get('VAR', '').split(',')

NAME = "parallel_sum__ssm_conv_s4__dense_activation_relu__prompt"

XN_OFF  = 0x000000
XT_RS   = 4224
XT0_OFF = 0x200000
XT_SZ   = 512 * XT_RS
XT1_OFF = XT0_OFF + XT_SZ
KH_OFF  = XT1_OFF + XT_SZ
KL_OFF  = KH_OFF + 0x200000
YT_OFF  = KL_OFF + 0x200000
H_OFF   = YT_OFF + 0x200000
H_RS    = 2816
H_SZ    = 2048 * H_RS
WS_END  = H_OFF + H_SZ

class Asm:
    def __init__(self):
        self.lines = []
    def __call__(self, s):
        for l in s.strip("\n").split("\n"):
            m = re.search(r"offset:(\d+)", l)
            if m and ("buffer_" in l or "global_" in l) and int(m.group(1)) > 4095:
                raise ValueError("offset too large: " + l)
            if m and "ds_" in l and int(m.group(1)) > 65535:
                raise ValueError("ds offset too large: " + l)
            self.lines.append("    " + l.strip() if l.strip() and not l.strip().endswith(":") else l.strip())
    def label(self, l):
        self.lines.append(l + ":")
    def text(self):
        return "\n".join(self.lines) + "\n"

def srd(a, d, lo, hi, size):
    a(f"""
    s_mov_b32 s{d}, s{lo}
    s_and_b32 s{d+1}, s{hi}, 0xffff
    s_mov_b32 s{d+2}, {size:#x}
    s_mov_b32 s{d+3}, 0x00020000
    """)

def srd_off(a, d, lo, hi, off, size):
    a(f"""
    s_add_u32 s{d}, s{lo}, {off:#x}
    s_addc_u32 s{d+1}, s{hi}, 0
    s_and_b32 s{d+1}, s{d+1}, 0xffff
    s_mov_b32 s{d+2}, {size:#x}
    s_mov_b32 s{d+3}, 0x00020000
    """)

def stamp(a, i):
    if 'stamp' not in VAR: return
    a(f"s_memtime s[{60+2*i}:{61+2*i}]")
    if i == 0:
        a("s_memrealtime s[76:77]")
    a("s_waitcnt lgkmcnt(0)")

def stamp_out(a, kidx, n, lab):
    if 'stamp' not in VAR: return
    a(f"""
    s_memtime s[{60+2*n}:{61+2*n}]
    s_memrealtime s[78:79]
    s_cmp_lg_u32 s3, 0
    s_cbranch_scc1 {lab}
    s_add_u32 s80, s6, {0x4000000 + kidx*0x100000:#x}
    s_addc_u32 s81, s7, 0
    s_and_b32 s81, s81, 0xffff
    s_mov_b32 s82, 0x100000
    s_mov_b32 s83, 0x00020000
    s_lshl_b32 s84, s2, 6
    v_mov_b32 v1, 0
    s_waitcnt lgkmcnt(0)
    """)
    for i in list(range(n + 1)) + [8, 9]:
        a(f"v_mov_b32 v2, s{60+2*i}")
        a(f"buffer_store_dword v2, v1, s[80:83], s84 offen offset:{4*i}")

def rho_of_row(i):
    if i < 8: return i
    if i < 12: return 256 + 2 * (i - 8)
    if i < 16: return 512 + 4 * ((i - 12) & 1) + 256 * ((i - 12) >> 1)
    if i < 20: return 1024 + 256 * (i - 16)
    return 2048

N_LN = 257
N_KG = 0
K1_LDS = 8 * 1088
LRS = 1088

def gen_k1(a):
    a.label("k1_kernel")
    a(f"""
    s_cmp_ge_u32 s2, {N_LN + N_KG}
    s_cbranch_scc1 k1_done
    v_lshrrev_b32 v1, 6, v0
    v_and_b32 v2, 63, v0              ; lane
    s_load_dwordx2 s[6:7], s[0:1], 112 ; ws
    v_readfirstlane_b32 s3, v1
    {'s_branch k1_done' if 'k1_noln' in VAR else ''}
    s_load_dwordx2 s[4:5], s[0:1], 0  ; x
    v_lshlrev_b32 v3, 4, v2           ; lane*16
    s_movk_i32 s22, {XT_RS}
    v_mul_lo_u32 v5, v0, s22          ; t*4224
    s_waitcnt lgkmcnt(0)
    """)
    stamp(a, 0)
    srd_off(a, 16, 6, 7, XT0_OFF, XT_SZ)
    a(f"""
    s_cmp_eq_u32 s2, 256
    s_cbranch_scc1 k1_zero
    """)
    srd(a, 8, 4, 5, 0x200000)
    srd(a, 12, 6, 7, 0x200000)
    a(f"""
    s_and_b32 s20, s2, 7
    s_lshl_b32 s20, s20, 5
    s_lshr_b32 s21, s2, 3
    s_add_u32 s20, s20, s21           ; rb
    s_lshl_b32 s21, s20, 13           ; rb*8*1024
    s_lshl_b32 s22, s3, 11
    s_add_u32 s21, s21, s22           ; + 2*wave*1024
    buffer_load_dwordx4 v[10:13], v3, s[8:11], s21 offen
    buffer_load_dwordx4 v[14:17], v3, s[8:11], s21 offen offset:1024
    s_mov_b32 s23, 0xffff0000
    s_mov_b32 s34, 0x3b000000         ; 1/512
    s_mov_b32 s35, 0x3727c5ac         ; 1e-5f
    s_mul_i32 s22, s3, {2*LRS}
    v_add_u32 v4, s22, v3
    v_bfe_u32 v6, v2, 2, 2
    v_mul_u32_u24 v6, {LRS}, v6
    v_lshrrev_b32 v7, 4, v0
    v_lshl_add_u32 v6, v7, 5, v6
    v_and_b32 v7, 3, v2
    v_lshl_add_u32 v6, v7, 3, v6
    s_lshl_b32 s24, s20, 4
    s_add_u32 s24, s24, 64
    s_add_u32 s25, s24, {256*XT_RS:#x}
    """)
    X = [20, 28]
    S = [36, 37]
    for r in range(2):
        a(f"s_waitcnt vmcnt({1-r})")
        for j in range(4):
            a(f"v_lshlrev_b32 v{X[r]+2*j}, 16, v{10+4*r+j}")
            a(f"v_and_b32 v{X[r]+2*j+1}, s23, v{10+4*r+j}")
        t = 40 + 4 * r
        a(f"""
        v_add_f32 v{t}, v{X[r]}, v{X[r]+1}
        v_add_f32 v{t+1}, v{X[r]+2}, v{X[r]+3}
        v_add_f32 v{t+2}, v{X[r]+4}, v{X[r]+5}
        v_add_f32 v{t+3}, v{X[r]+6}, v{X[r]+7}
        v_add_f32 v{t}, v{t}, v{t+1}
        v_add_f32 v{t+2}, v{t+2}, v{t+3}
        v_add_f32 v{S[r]}, v{t}, v{t+2}
        """)
    def wave_reduce():
        for ctrl in ["row_shr:1", "row_shr:2", "row_shr:4", "row_shr:8"]:
            for r in range(2):
                a(f"v_add_f32_dpp v{S[r]}, v{S[r]}, v{S[r]} {ctrl} row_mask:0xf bank_mask:0xf bound_ctrl:0")
            a("s_nop 0")
        for r in range(2):
            a(f"v_add_f32_dpp v{S[r]}, v{S[r]}, v{S[r]} row_bcast:15 row_mask:0xa bank_mask:0xf")
        a("s_nop 0")
        for r in range(2):
            a(f"v_add_f32_dpp v{S[r]}, v{S[r]}, v{S[r]} row_bcast:31 row_mask:0xc bank_mask:0xf")
        a("s_nop 1")
        for r in range(2):
            a(f"v_readlane_b32 s{26+r}, v{S[r]}, 63")
        a("s_nop 1")
    stamp(a, 1)
    wave_reduce()
    M = [38, 39]
    for r in range(2):
        a(f"v_mov_b32 v{M[r]}, s{26+r}")
        a(f"v_mul_f32 v{M[r]}, s34, v{M[r]}")
    for r in range(2):
        t = 40 + 10 * r
        for k in range(8):
            a(f"v_sub_f32 v{t+k}, v{X[r]+k}, v{M[r]}")
        a(f"v_mul_f32 v{S[r]}, v{t}, v{t}")
        a(f"v_mul_f32 v{t+8}, v{t+1}, v{t+1}")
        for k in range(2, 8, 2):
            a(f"v_fmac_f32 v{S[r]}, v{t+k}, v{t+k}")
            a(f"v_fmac_f32 v{t+8}, v{t+k+1}, v{t+k+1}")
        a(f"v_add_f32 v{S[r]}, v{S[r]}, v{t+8}")
    a("s_nop 1")
    wave_reduce()
    RI = [60, 61]
    for r in range(2):
        t = 40 + 4 * r
        a(f"""
        v_mov_b32 v{t}, s{26+r}
        v_mul_f32 v{t}, s34, v{t}
        v_cvt_pk_bf16_f32 v{t}, v{t}, v{t}
        v_and_b32 v{t}, s23, v{t}
        v_add_f32 v{t}, s35, v{t}
        v_cvt_pk_bf16_f32 v{t}, v{t}, v{t}
        v_and_b32 v{t}, s23, v{t}
        v_sqrt_f32 v{t+1}, v{t}
        v_cvt_pk_bf16_f32 v{M[r]}, v{M[r]}, v{M[r]}
        v_rcp_f32 v{t+2}, v{t+1}
        v_and_b32 v{M[r]}, s23, v{M[r]}
        v_fma_f32 v{t+3}, -v{t+1}, v{t+1}, v{t}
        v_mul_f32 v{t+2}, 0.5, v{t+2}
        v_fma_f32 v{t+1}, v{t+3}, v{t+2}, v{t+1}
        v_cvt_pk_bf16_f32 v{t+1}, v{t+1}, v{t+1}
        v_and_b32 v{t+1}, s23, v{t+1}
        v_rcp_f32 v{RI[r]}, v{t+1}
        """)
    for r in range(2):
        for k in range(8):
            a(f"v_sub_f32 v{X[r]+k}, v{X[r]+k}, v{M[r]}")
        for j in range(4):
            a(f"v_cvt_pk_bf16_f32 v{10+4*r+j}, v{X[r]+2*j}, v{X[r]+2*j+1}")
        for j in range(4):
            a(f"v_lshlrev_b32 v{X[r]+2*j}, 16, v{10+4*r+j}")
            a(f"v_and_b32 v{X[r]+2*j+1}, s23, v{10+4*r+j}")
        for k in range(8):
            a(f"v_mul_f32 v{X[r]+k}, v{X[r]+k}, v{RI[r]}")
        for j in range(4):
            a(f"v_cvt_pk_bf16_f32 v{10+4*r+j}, v{X[r]+2*j}, v{X[r]+2*j+1}")
        a(f"ds_write_b128 v4, v[{10+4*r}:{13+4*r}] offset:{r*LRS}")
        a(f"buffer_store_dwordx4 v[{10+4*r}:{13+4*r}], v3, s[12:15], s21 offen offset:{r*1024}")
    a("""
    s_waitcnt lgkmcnt(0)
    s_barrier
    """)
    stamp(a, 2)
    a(f"""
    ds_read_b64_tr_b16 v[20:21], v6
    ds_read_b64_tr_b16 v[22:23], v6 offset:{4*LRS}
    ds_read_b64_tr_b16 v[24:25], v6 offset:512
    ds_read_b64_tr_b16 v[26:27], v6 offset:{4*LRS+512}
    s_waitcnt lgkmcnt(2)
    buffer_store_dwordx4 v[20:23], v5, s[16:19], s24 offen
    s_waitcnt lgkmcnt(0)
    buffer_store_dwordx4 v[24:27], v5, s[16:19], s25 offen
    """)
    stamp_out(a, 0, 3, "k1_done")
    a("s_branch k1_done")
    a.label("k1_zero")
    a(f"""
    v_mov_b32 v10, 0
    v_mov_b32 v11, 0
    v_mov_b32 v12, 0
    v_mov_b32 v13, 0
    s_mov_b32 s24, 0
    s_mov_b32 s25, {256*XT_RS:#x}
    """)
    for j in range(4):
        a(f"buffer_store_dwordx4 v[10:13], v5, s[16:19], s24 offen offset:{16*j}")
        a(f"buffer_store_dwordx4 v[10:13], v5, s[16:19], s25 offen offset:{16*j}")
    a("s_branch k1_done")

    a.label("k1_done")
    a("s_endpgm")

def descriptor(name, vgpr, sgpr=102):
    acc = (vgpr + 3) // 4 * 4
    return f""".amdhsa_kernel {name}
  .amdhsa_next_free_vgpr {vgpr}
  .amdhsa_next_free_sgpr {sgpr}
  .amdhsa_accum_offset {acc}
  .amdhsa_group_segment_fixed_size 0
  .amdhsa_kernarg_size 120
  .amdhsa_user_sgpr_count 2
  .amdhsa_user_sgpr_kernarg_segment_ptr 1
  .amdhsa_system_sgpr_workgroup_id_x 1
  .amdhsa_float_denorm_mode_32 3
.end_amdhsa_kernel
"""

def main():
    kernels = []
    launches = []
    a = Asm()
    gen_k1(a)
    kernels.append(("k1_kernel", a.text(), 64))
    launches.append(f"; @launch kernel=k1_kernel grid=({N_LN+N_KG},1,1) block=(256,1,1) lds={K1_LDS}")
    try:
        import gen2
        gen2.add(kernels, launches)
    except ImportError:
        pass
    hdr = open("cdna_kernels/" + NAME + ".s.ref").read().split("\n")
    out = []
    for l in hdr:
        if l.startswith("; @launch"):
            break
        out.append(l)
    out += launches
    out.append('.amdgcn_target "amdgcn-amd-amdhsa--gfx950"')
    out.append(".text")
    for name, text, vg in kernels:
        out.append(f".globl {name}")
        out.append(".p2align 8")
        out.append(f".type {name},@function")
        out.append(text)
    out.append('.section .rodata,"a"')
    for name, text, vg in kernels:
        out.append(".p2align 6")
        out.append(descriptor(name, vg))
    open(os.environ.get("OUT", "cdna_kernels/" + NAME + ".s"), "w").write("\n".join(out))

if __name__ == "__main__":
    main()
```

```python
from gen import *

N_G1 = 240
N_CV = 512
PS = int(os.environ.get('PS', '4384'))
K2_LDS = max(8 * PS + 12288 + 3072, 26880 + 26752)
UH = 0
KHL = 8 * PS

PR = [int(x) for x in os.environ.get('PR', '2,0,2,2,0,2,0,2').split(',')]
_pl = [0]
def prio2(a, pa, pb):
    if 'noprio' in VAR: return
    if pa == pb:
        a(f"s_setprio {pa}"); return
    _pl[0] += 1
    a(f"""
    s_setprio {pa}
    s_cmp_lt_u32 s20, 256
    s_cbranch_scc1 k2_pr{_pl[0]}
    s_setprio {pb}
    """)
    a.label(f"k2_pr{_pl[0]}")

def gen_k2(a):
    a.label("k2_kernel")
    a(f"""
    s_cmp_ge_u32 s2, {N_G1 + N_CV}
    s_cbranch_scc1 k2_done
    v_lshrrev_b32 v1, 6, v0
    v_and_b32 v2, 63, v0              ; lane
    s_load_dwordx2 s[6:7], s[0:1], 112 ; ws
    v_readfirstlane_b32 s3, v1
    {f's_cmp_ge_u32 s2, {N_CV}' if 'cvfirst' in VAR else f's_cmp_lt_u32 s2, {N_G1}'}
    s_cbranch_scc1 {'k2_done' if 'k2_nog1' in VAR else 'k2_gemm'}
    {'s_branch k2_done' if 'k2_nocv' in VAR else ''}
    s_load_dwordx2 s[4:5], s[0:1], 64 ; Dskip
    s_load_dwordx8 s[40:47], s[0:1], 8
    s_load_dwordx4 s[48:51], s[0:1], 40
    s_load_dwordx2 s[52:53], s[0:1], 56    ; log_dt
    s_sub_u32 s20, s2, {0 if 'cvfirst' in VAR else N_G1}         ; d
    s_lshl_b32 s27, s20, 8                ; d*256 bytes
    s_lshl_b32 s28, s3, 6
    s_add_u32 s27, s27, s28
    v_and_b32 v4, 31, v2                  ; i / j
    v_lshrrev_b32 v6, 5, v2               ; half
    v_lshlrev_b32 v7, 1, v4
    v_add_u32 v7, s27, v7
    s_lshl_b32 s27, s20, 1
    v_mov_b32 v14, s27                    ; 2*d
    s_waitcnt lgkmcnt(0)
    global_load_ushort v80, v7, s[40:41]
    global_load_ushort v81, v7, s[42:43]
    global_load_ushort v82, v7, s[44:45]
    global_load_ushort v83, v7, s[46:47]
    global_load_ushort v84, v7, s[48:49]
    global_load_ushort v85, v7, s[50:51]
    global_load_ushort v86, v14, s[52:53]
    s_and_b32 s21, s20, 0x1fe
    s_lshl_b32 s21, s21, 1
    s_load_dword s22, s[4:5], s21
    """)
    stamp(a, 0)
    prio2(a, PR[0], PR[3])
    srd_off(a, 8, 6, 7, XT0_OFF, XT_SZ + 4096)
    srd_off(a, 16, 6, 7, YT_OFF, 0x200000)
    AS = 32
    srd_off(a, 12, 6, 7, KH_OFF, 8192)
    a(f"""
    s_mul_i32 s23, s20, {XT_RS}       ; d*4224
    s_add_u32 s26, s23, 48            ; xn[-8]
    v_lshlrev_b32 v5, 4, v0           ; 16*t
    v_lshlrev_b32 v3, 5, v0           ; 32*t
    buffer_load_dwordx4 v[32:35], v5, s[8:11], s26 offen
    buffer_load_dwordx4 v[36:39], v5, s[8:11], s26 offen offset:16
    buffer_load_dwordx4 v[60:63], v3, s[12:15], 0 offen
    buffer_load_dwordx4 v[64:67], v3, s[12:15], 0 offen offset:16
    """)
    TBL = KHL + 12288
    WT = 6656
    P = [None] + [92 + 2 * i for i in range(7)]
    G1, G2, G3, G6 = 106, 108, 110, 112
    A = [114, 116, 118, 120]
    M1, M3 = 122, 124
    AR = 40
    NA = [84, 85, 86, 87]
    def cmul2(d, x, y, d2, x2, y2):
        a(f"""
        v_mul_f32 v{d}, v{x}, v{y}
        v_mul_f32 v{d+1}, v{x}, v{y+1}
        v_mul_f32 v{d2}, v{x2}, v{y2}
        v_mul_f32 v{d2+1}, v{x2}, v{y2+1}
        v_fma_f32 v{d}, -v{x+1}, v{y+1}, v{d}
        v_fmac_f32 v{d+1}, v{x+1}, v{y}
        v_fma_f32 v{d2}, -v{x2+1}, v{y2+1}, v{d2}
        v_fmac_f32 v{d2+1}, v{x2+1}, v{y2}
        """)
    a(f"""
    s_mov_b32 s54, 0
    s_mov_b32 s55, -1
    s_mul_i32 s32, s3, {WT}
    v_lshlrev_b32 v12, 12, v6
    v_add_u32 v12, s32, v12
    v_and_b32 v13, 3, v4
    v_lshl_add_u32 v12, v13, 2, v12
    v_lshrrev_b32 v13, 2, v4
    v_lshl_add_u32 v12, v13, 4, v12
    """)
    for c in range(16):
        a(f"v_xor_b32 v{AR+c}, {16*((c>>1)&7) + 128*(c&1)}, v12")
    a(f"""
    v_mov_b32 v13, s32
    v_cndmask_b32 v13, v13, 0, s[54:55]
    v_sub_u32 v56, v12, v13
    v_mov_b32 v14, 0x41000000             ; 8
    v_cndmask_b32 v12, v14, 1.0, s[54:55] ; c1
    v_cndmask_b32 v13, v14, -1.0, s[54:55] ; c1 (phase)
    v_mov_b32 v14, 0x42800000             ; 64
    v_mov_b32 v15, 0x43800000             ; 256
    v_cndmask_b32 v57, v14, v15, s[54:55] ; c2
    v_cndmask_b32 v58, v14, -v15, s[54:55] ; c2 (phase)
    s_mov_b32 s33, 0x3fb8aa3b             ; log2e
    s_mov_b32 s34, 0x3e22f983             ; 1/(2pi)
    s_mov_b32 s35, 0xffff0000
    s_mov_b32 s36, 0x0000bf80
    s_mov_b32 s37, 0x80000000
    s_waitcnt vmcnt(4)
    """)
    stamp(a, 1)
    a(f"""
    v_lshlrev_b32 v86, 16, v86
    v_mul_f32 v86, s33, v86
    v_exp_f32 v86, v86
    v_lshlrev_b32 v80, 16, v80
    v_lshlrev_b32 v81, 16, v81
    v_lshlrev_b32 v82, 16, v82
    v_lshlrev_b32 v83, 16, v83
    v_lshlrev_b32 v84, 16, v84
    v_lshlrev_b32 v85, 16, v85
    v_cvt_pk_bf16_f32 v86, v86, v86
    v_and_b32 v86, s35, v86               ; dt
    v_mul_f32 v80, v86, v80               ; lr
    v_mul_f32 v81, v86, v81               ; li
    v_mul_f32 v82, v86, v82               ; dBr
    v_mul_f32 v83, v86, v83               ; dBi
    v_mul_f32 v88, s33, v80               ; lr2
    v_mul_f32 v89, s34, v81               ; lif
    v_mul_f32 v68, v88, v12
    v_mul_f32 v69, v89, v13
    v_mul_f32 v70, v88, v57
    v_mul_f32 v71, v89, v58
    v_exp_f32 v68, v68
    v_fract_f32 v69, v69
    v_exp_f32 v70, v70
    v_fract_f32 v71, v71
    v_cos_f32 v{P[1]}, v69
    v_sin_f32 v{P[1]+1}, v69
    v_cos_f32 v{G1}, v71
    v_sin_f32 v{G1+1}, v71
    v_mul_f32 v90, v84, v82
    v_fma_f32 v90, -v85, v83, v90         ; CBr
    v_mul_f32 v91, v84, v83
    v_fma_f32 v91, v85, v82, v91          ; CBi
    v_mul_f32 v{P[1]}, v68, v{P[1]}
    v_mul_f32 v{P[1]+1}, v68, v{P[1]+1}
    v_mul_f32 v{G1}, v70, v{G1}
    v_mul_f32 v{G1+1}, v70, v{G1+1}
    v_cndmask_b32 v{A[0]}, 1.0, v90, s[54:55]
    v_cndmask_b32 v{A[0]+1}, 0, -v91, s[54:55]
    """)
    cmul2(P[2], P[1], P[1], G2, G1, G1)
    cmul2(P[3], P[2], P[1], G3, G2, G1)
    cmul2(P[4], P[2], P[2], A[1], A[0], G1)
    cmul2(P[6], P[3], P[3], G6, G3, G3)
    cmul2(P[5], P[4], P[1], A[2], A[0], G2)
    cmul2(P[7], P[4], P[3], A[3], A[0], G3)
    a(f"""
    v_cndmask_b32 v{M1}, v{P[1]}, v{G3}, s[54:55]
    v_cndmask_b32 v{M1+1}, v{P[1]+1}, v{G3+1}, s[54:55]
    v_cndmask_b32 v{M3}, v{P[3]}, v{G6}, s[54:55]
    v_cndmask_b32 v{M3+1}, v{P[3]+1}, v{G6+1}, s[54:55]
    v_xor_b32 v{NA[0]}, s37, v{A[0]+1}
    v_xor_b32 v{NA[1]}, s37, v{A[1]+1}
    v_xor_b32 v{NA[2]}, s37, v{A[2]+1}
    v_xor_b32 v{NA[3]}, s37, v{A[3]+1}
    """)
    def src_of(m, b):
        if b == 0: return None
        if m > 0 and b == 1: return M1
        if m > 0 and b == 3: return M3
        return P[b]
    def pair(p):
        pr = []
        for k in range(2):
            st_ = 2 * p + k
            m, b = KSTEPS[st_]
            pr.append((st_, m, b, 68 + 4 * ((p & 1) * 2 + k)))
        return pr
    def stA(p):
        n = 0
        for (st_, m, b, T) in pair(p):
            y = src_of(m, b)
            if y is not None:
                a(f"v_mul_f32 v{T}, v{A[m]}, v{y}")
                a(f"v_mul_f32 v{T+1}, v{A[m]}, v{y+1}"); n += 2
        for (st_, m, b, T) in pair(p):
            y = src_of(m, b)
            if y is not None:
                a(f"v_fmac_f32 v{T}, v{NA[m]}, v{y+1}")
                a(f"v_fmac_f32 v{T+1}, v{A[m]+1}, v{y}"); n += 2
        return 4
    def stB(p):
        for (st_, m, b, T) in pair(p):
            V = T if b else A[m]
            a(f"v_cvt_pk_bf16_f32 v{T+2}, v{V}, v{V+1}")
        for k, (st_, m, b, T) in enumerate(pair(p)):
            a(f"v_lshlrev_b32 v{88+2*k}, 16, v{T+2}")
            a(f"v_and_b32 v{89+2*k}, s35, v{T+2}")
        for k, (st_, m, b, T) in enumerate(pair(p)):
            V = T if b else A[m]
            a(f"v_sub_f32 v{T}, v{V}, v{88+2*k}")
            a(f"v_sub_f32 v{T+1}, v{V+1}, v{89+2*k}")
    def stC(p):
        for (st_, m, b, T) in pair(p):
            a(f"v_cvt_pk_bf16_f32 v{T+3}, v{T}, v{T+1}")
        for (st_, m, b, T) in pair(p):
            if st_ == 21:
                a("s_mov_b32 exec_hi, 0")
            ar = 56 if st_ == 0 else AR + (st_ & 15)
            a(f"ds_write2st64_b32 v{ar}, v{T+2}, v{T+3} offset0:{st_>>1} offset1:{(st_>>1)+105}")
    stA(0); stB(0)
    for p in range(1, 17):
        if p < 16: stA(p)
        stC(p - 1)
        if p < 16: stB(p)
    a(f"""
    s_mov_b64 exec, -1
    v_min_u32 v12, 20, v4
    v_bfe_u32 v13, v12, 1, 3
    v_xor_b32 v13, v13, v6
    v_lshlrev_b32 v13, 4, v13
    v_lshl_add_u32 v12, v12, 7, v13
    s_add_u32 s33, s32, 4096
    v_add_u32 v44, s33, v12               ; RA[0]
    v_bfe_u32 v13, v4, 1, 3
    v_xor_b32 v13, v13, v6
    v_lshlrev_b32 v13, 4, v13
    v_lshl_add_u32 v12, v4, 7, v13
    v_mov_b32 v14, s32
    v_cmp_eq_u32 vcc, 0, v4
    v_xor_b32 v45, 32, v44
    v_cndmask_b32 v14, v14, 0, vcc
    v_add_u32 v48, v14, v12               ; RB[0]
    v_xor_b32 v46, 64, v44
    v_xor_b32 v47, 96, v44
    v_xor_b32 v49, 32, v48
    v_xor_b32 v50, 64, v48
    v_xor_b32 v51, 96, v48
    s_waitcnt lgkmcnt(0)
    """)
    stamp(a, 2)
    FR = [68 + 4 * i for i in range(15)] + [40]
    for g in range(4):
        a(f"ds_read_b128 v[{FR[4*g]}:{FR[4*g]+3}], v{44+g}")
        a(f"ds_read_b128 v[{FR[4*g+1]}:{FR[4*g+1]+3}], v{48+g} offset:26880")
        a(f"ds_read_b128 v[{FR[4*g+2]}:{FR[4*g+2]+3}], v{44+g} offset:26880")
        a(f"ds_read_b128 v[{FR[4*g+3]}:{FR[4*g+3]+3}], v{48+g}")
    KA = 16
    for g in range(4):
        AH, BL, AL, BH = FR[4*g:4*g+4]
        a(f"s_waitcnt lgkmcnt({14 - 4*g})")
        a(f"v_mfma_f32_32x32x16_bf16 v[{KA}:{KA+15}], v[{AH}:{AH+3}], v[{BL}:{BL+3}], {'0' if g == 0 else f'v[{KA}:{KA+15}]'}")
        a(f"s_waitcnt lgkmcnt({12 - 4*g})")
        a(f"v_mfma_f32_32x32x16_bf16 v[{KA}:{KA+15}], v[{AL}:{AL+3}], v[{BH}:{BH+3}], v[{KA}:{KA+15}]")
        a(f"v_mfma_f32_32x32x16_bf16 v[{KA}:{KA+15}], v[{AH}:{AH+3}], v[{BH}:{BH+3}], v[{KA}:{KA+15}]")
    a(f"""
    v_lshlrev_b32 v7, 4, v2
    v_add_u32 v7, s32, v7
    v_and_b32 v12, 3, v0
    v_mul_u32_u24 v12, 96, v12
    v_lshrrev_b32 v14, 2, v0
    v_add_u32 v12, v12, v14
    v_lshlrev_b32 v12, 4, v12             ; 16*pos(t)
    s_nop 7
    s_nop 4
    ds_write_b128 v7, v[{KA}:{KA+3}] offset:512
    ds_write_b128 v7, v[{KA+4}:{KA+7}] offset:{512+1024}
    ds_write_b128 v7, v[{KA+8}:{KA+11}] offset:{512+2048}
    s_waitcnt lgkmcnt(0)
    s_barrier
    s_cmp_eq_u32 s3, 3
    s_cbranch_scc1 k2_cv_nored
    ds_read_b128 v[16:19], v5 offset:512
    ds_read_b128 v[20:23], v5 offset:{512+WT}
    ds_read_b128 v[24:27], v5 offset:{512+2*WT}
    ds_read_b128 v[28:31], v5 offset:{512+3*WT}
    s_waitcnt lgkmcnt(0)
    v_add_f32 v16, v16, v20
    v_add_f32 v17, v17, v21
    v_add_f32 v18, v18, v22
    v_add_f32 v19, v19, v23
    v_add_f32 v24, v24, v28
    v_add_f32 v25, v25, v29
    v_add_f32 v26, v26, v30
    v_add_f32 v27, v27, v31
    v_add_f32 v16, v16, v24
    v_add_f32 v17, v17, v25
    v_add_f32 v18, v18, v26
    v_add_f32 v19, v19, v27
    ds_write_b128 v5, v[16:19] offset:{TBL}
    """)
    a.label("k2_cv_nored")
    a("s_waitcnt vmcnt(0)")
    for k in range(6):
        a(f"v_alignbit_b32 v{40+k}, v{33+k}, v{32+k}, 16")
        a(f"v_mov_b32 v{48+k}, v{33+k}")
        a(f"v_alignbit_b32 v{54+k}, v{34+k}, v{33+k}, 16")
    for k in range(4):
        a(f"v_mov_b32 v{8+k}, v{36+k}")
    a(f"""
    s_waitcnt lgkmcnt(0)
    s_barrier
    """)
    stamp(a, 3)
    for e in range(8):
        a(f"ds_read_b32 v{16+e}, v{60+e} offset:{TBL}")
    for sidx, r in enumerate([40, 48, 54, 34, 42, 50, 56, 36]):
        a(f"ds_write_b128 v5, v[{r}:{r+3}] offset:{sidx*PS + 48}")
    a(f"""
    v_mov_b32 v40, 0
    v_mov_b32 v41, 0
    v_mov_b32 v42, 0
    v_mov_b32 v43, 0
    s_waitcnt lgkmcnt(8)
    """)
    for e in range(0, 8, 2):
        a(f"v_cvt_pk_bf16_f32 v{32+e//2}, v{16+e}, v{17+e}")
    for e in range(0, 8, 2):
        a(f"v_lshlrev_b32 v{24+e}, 16, v{32+e//2}")
        a(f"v_and_b32 v{25+e}, s35, v{32+e//2}")
    for e in range(8):
        a(f"v_sub_f32 v{16+e}, v{16+e}, v{24+e}")
    for e in range(0, 8, 2):
        a(f"v_cvt_pk_bf16_f32 v{36+e//2}, v{16+e}, v{17+e}")
    a(f"""
    ds_write_b128 v12, v[32:35] offset:{KHL}
    ds_write_b128 v12, v[36:39] offset:{KHL+6144}
    s_cmp_eq_u32 s3, 3
    s_cbranch_scc1 k2_cv_zf
    s_cmp_ge_u32 s3, 2
    s_cbranch_scc1 k2_cv_nozero
    ds_write_b128 v12, v[40:43] offset:{KHL+1024}
    ds_write_b128 v12, v[40:43] offset:{KHL+6144+1024}
    s_branch k2_cv_nozero
    """)
    a.label("k2_cv_zf")
    a(f"""
    v_lshrrev_b32 v16, 3, v2
    v_min_u32 v16, 2, v16
    v_lshlrev_b32 v16, 4, v16
    v_and_b32 v17, 7, v2
    v_mov_b32 v18, {PS}
    v_mad_u32_u24 v16, v17, v18, v16
    ds_write_b128 v16, v[40:43]
    """)
    a.label("k2_cv_nozero")
    a(f"""
    s_lshl_b32 s35, s3, 4             ; c_start
    v_lshrrev_b32 v12, 3, v4
    v_add_u32 v12, v12, v6
    v_lshlrev_b32 v12, 4, v12         ; 16*((b>>3)+kg)
    v_and_b32 v13, 7, v4
    v_mov_b32 v14, {PS}
    v_mad_u32_u24 v12, v13, v14, v12
    s_lshl_b32 s36, s35, 5
    v_add_u32 v12, s36, v12
    v_mul_u32_u24 v13, 96, v6
    v_sub_u32 v13, v13, v4
    v_add_u32 v13, 31, v13
    v_lshlrev_b32 v13, 4, v13
    s_lshl_b32 s36, s35, 3            ; 16*(c/2)
    s_add_u32 s36, s36, {KHL}
    v_add_u32 v13, s36, v13           ; vB
    """)
    ACC1, ACC2, ACC0, ACC3 = 16, 16, 48, 48
    first = set()
    F = [80, 104]
    a("""
    s_waitcnt vmcnt(0) lgkmcnt(0)
    s_barrier
    """)
    stamp(a, 4)
    prio2(a, PR[1], PR[4])
    def mf(acc, A, B):
        c = f"v[{acc}:{acc+15}]" if acc in first else "0"
        first.add(acc)
        a(f"v_mfma_f32_32x32x16_bf16 v[{acc}:{acc+15}], v[{A}:{A+3}], v[{B}:{B+3}], {c}")
    def rd(dst, base, off):
        a(f"ds_read_b128 v[{dst}:{dst+3}], v{base} offset:{off}")
    def boff(c):
        return 16 * (c // 2) + 3072 * (c & 1)
    def ch_reads(c, f):
        rd(f, 12, AS * c)
        rd(f + 4, 13, boff(c))
        rd(f + 8, 13, boff(c + 64))
        rd(f + 12, 13, boff(c) + 6144)
        rd(f + 16, 13, boff(c + 64) + 6144)
        rd(f + 20, 12, AS * (c + 64))
    def ch_mfma(f, last):
        base = 0 if last else 6
        a(f"s_waitcnt lgkmcnt({base + 4})")
        mf(ACC1, f, f + 4)
        a(f"s_waitcnt lgkmcnt({base + 3})")
        mf(ACC0, f, f + 8)
        a(f"s_waitcnt lgkmcnt({base + 2})")
        mf(ACC2, f, f + 12)
        a(f"s_waitcnt lgkmcnt({base + 1})")
        mf(ACC3, f, f + 16)
        a(f"s_waitcnt lgkmcnt({base})")
        mf(ACC1, f + 20, f + 8)
        mf(ACC2, f + 20, f + 16)
    ch_reads(0, F[0])
    for c in range(16):
        if c < 15:
            ch_reads(c + 1, F[(c + 1) & 1])
        ch_mfma(F[c & 1], c == 15)
    a.label("k2_cv_fin")
    stamp(a, 5)
    prio2(a, PR[2], PR[5])
    a(f"""
    s_waitcnt lgkmcnt(0)
    s_nop 7
    s_nop 7
    """)
    a(f"""
    s_barrier
    v_mul_u32_u24 v14, 144, v4
    v_lshl_add_u32 v14, v6, 4, v14     ; a_l*144 + 16h
    s_mul_i32 s36, s3, 4608
    v_add_u32 v14, s36, v14
    """)
    for q in range(4):
        a(f"ds_write_b128 v14, v[{ACC1+4*q}:{ACC1+4*q+3}] offset:{32*q}")
    for q in range(4):
        a(f"ds_write_b128 v14, v[{ACC0+4*q}:{ACC0+4*q+3}] offset:{32*q + 4*4608}")
    a(f"""
    v_lshrrev_b32 v14, 2, v0
    v_and_b32 v14, 31, v14
    v_mul_u32_u24 v14, 144, v14
    v_and_b32 v15, 3, v0
    v_lshl_add_u32 v14, v15, 5, v14    ; a_l*144 + sub*32
    s_cmp_lt_u32 s3, 2
    s_cselect_b32 s36, {4*4608}, 0
    v_add_u32 v14, s36, v14
    s_waitcnt lgkmcnt(0)
    s_barrier
    """)
    for s in range(4):
        a(f"ds_read_b128 v[{16+8*s}:{19+8*s}], v14 offset:{s*4608}")
        a(f"ds_read_b128 v[{20+8*s}:{23+8*s}], v14 offset:{s*4608+16}")
    a("s_waitcnt lgkmcnt(0)")
    for i in range(8):
        a(f"v_add_f32 v{16+i}, v{16+i}, v{40+i}")
    a(f"""
    s_waitcnt lgkmcnt(0)
    s_and_b32 s21, s20, 1
    s_lshl_b32 s21, s21, 4
    s_lshr_b32 s22, s22, s21
    s_lshl_b32 s22, s22, 16
    s_mov_b32 s23, 0xffff0000
    s_lshl_b32 s24, s20, 12
    """)
    for i in range(8):
        a(f"v_add_f32 v{24+i}, v{24+i}, v{32+i}")
    for i in range(8):
        a(f"v_add_f32 v{16+i}, v{16+i}, v{24+i}")
    for j in range(4):
        a(f"""
        v_cvt_pk_bf16_f32 v24, v{16+2*j}, v{17+2*j}
        v_lshlrev_b32 v25, 16, v{8+j}
        v_and_b32 v26, s23, v{8+j}
        v_mul_f32 v25, s22, v25
        v_mul_f32 v26, s22, v26
        v_cvt_pk_bf16_f32 v27, v25, v26
        v_lshlrev_b32 v25, 16, v24
        v_and_b32 v26, s23, v24
        v_lshlrev_b32 v28, 16, v27
        v_and_b32 v29, s23, v27
        v_add_f32 v25, v25, v28
        v_add_f32 v26, v26, v29
        v_cvt_pk_bf16_f32 v{32+j}, v25, v26
        """)
    a(f"""
    buffer_store_dwordx4 v[32:35], v5, s[16:19], s24 offen
    """)
    stamp_out(a, 1, 6, "k2_done")
    a("s_branch k2_done")

    a.label("k2_gemm")
    a(f"""
    s_load_dwordx2 s[4:5], s[0:1], 80 ; w1
    s_and_b32 s20, s2, 15             ; mt
    s_sub_u32 s21, s2, {N_CV if 'cvfirst' in VAR else 0}
    s_lshr_b32 s21, s21, 4             ; nt
    s_waitcnt lgkmcnt(0)
    """)
    stamp(a, 0)
    prio2(a, PR[6], PR[6])
    srd(a, 8, 6, 7, 0x200000)
    srd(a, 12, 4, 5, 512 * 2752)
    srd_off(a, 16, 6, 7, H_OFF, H_SZ)
    ST = 14336
    a(f"""
    v_lshrrev_b32 v3, 2, v2
    s_lshl_b32 s22, s3, 5
    v_add_u32 v3, s22, v3              ; row = 32w + (l>>2)
    v_lshlrev_b32 v3, 10, v3
    v_lshrrev_b32 v4, 4, v2
    v_xor_b32 v4, v4, v2
    v_and_b32 v4, 3, v4
    v_lshl_add_u32 v3, v4, 4, v3       ; voffA
    s_mul_i32 s22, s3, 96
    v_add_u32 v4, s22, v2              ; P = 96w + l
    v_add_u32 v5, 64, v4
    s_movk_i32 s23, 5462               ; 65536/12
    s_movk_i32 s24, 2752
    v_mul_u32_u24 v6, s23, v4
    v_lshrrev_b32 v6, 16, v6           ; row
    v_mul_u32_u24 v7, 12, v6
    v_sub_u32 v4, v4, v7               ; cc
    v_lshlrev_b32 v4, 4, v4
    v_mad_u32_u24 v4, v6, s24, v4      ; voffB0
    v_mul_u32_u24 v6, s23, v5
    v_lshrrev_b32 v6, 16, v6
    v_mul_u32_u24 v7, 12, v6
    v_sub_u32 v5, v5, v7
    v_lshlrev_b32 v5, 4, v5
    v_mad_u32_u24 v5, v6, s24, v5      ; voffB1
    s_lshl_b32 s25, s20, 17
    s_mul_i32 s26, s21, 192
    s_lshl_b32 s27, s3, 11             ; m0 A = 2048w
    s_mul_i32 s28, s3, 1536
    s_add_u32 s28, s28, 8192           ; m0 B
    s_mov_b64 s[30:31], -1
    s_mov_b32 s32, -1
    s_mov_b32 s33, 0
    """)
    def dma(kc):
        st = (kc % 3) * ST
        a(f"""
        s_add_u32 m0, s27, {st}
        s_add_u32 s29, s25, {kc*64 + 16384}
        buffer_load_dwordx4 v3, s[8:11], s25 offen offset:{0} lds
        s_add_u32 m0, s27, {st + 1024}
        s_nop 0
        buffer_load_dwordx4 v3, s[8:11], s29 offen lds
        s_add_u32 m0, s28, {st}
        s_nop 0
        buffer_load_dwordx4 v4, s[12:15], s26 offen lds
        s_add_u32 m0, s28, {st + 1024}
        s_mov_b64 exec, s[32:33]
        buffer_load_dwordx4 v5, s[12:15], s26 offen lds
        s_mov_b64 exec, s[30:31]
        s_add_u32 s25, s25, 64
        s_add_u32 s26, s26, {32*2752}
        """)
    a(f"""
    v_and_b32 v6, 31, v2               ; m
    v_lshrrev_b32 v7, 5, v2            ; kg / h
    s_lshl_b32 s22, s3, 5
    v_add_u32 v8, s22, v6
    v_lshlrev_b32 v8, 6, v8            ; row*64
    v_lshrrev_b32 v9, 2, v6
    v_and_b32 v9, 3, v9                ; (row>>2)&3
    v_xor_b32 v10, v9, v7
    v_lshl_add_u32 v10, v10, 4, v8     ; vAr0
    v_xor_b32 v11, 2, v9
    v_xor_b32 v11, v11, v7
    v_lshl_add_u32 v11, v11, 4, v8
    v_lshlrev_b32 v12, 3, v7           ; 8*kg
    v_bfe_u32 v13, v2, 2, 2
    v_add_u32 v12, v12, v13
    v_mul_u32_u24 v12, 192, v12
    v_bfe_u32 v13, v2, 4, 1
    v_lshl_add_u32 v12, v13, 5, v12    ; + 32*((l>>4)&1)
    v_and_b32 v13, 3, v2
    v_lshl_add_u32 v12, v13, 3, v12    ; + 8*(l&3)
    v_add_u32 v12, 8192, v12           ; vBr
    """)
    ACC = 16
    for i in range(48):
        a(f"v_mov_b32 v{ACC+i}, 0")
    return_dma = dma
    def dma2(kc):
        st = (kc % 3) * ST
        a(f"""
        s_add_u32 m0, s27, {st}
        s_add_u32 s29, s25, 0x4000
        buffer_load_dwordx4 v3, s[8:11], s25 offen lds
        s_add_u32 m0, s27, {st + 1024}
        s_add_u32 s25, s25, 64
        buffer_load_dwordx4 v3, s[8:11], s29 offen lds
        s_add_u32 m0, s28, {st}
        s_nop 0
        buffer_load_dwordx4 v4, s[12:15], s26 offen lds
        s_add_u32 m0, s28, {st + 1024}
        s_mov_b64 exec, s[32:33]
        buffer_load_dwordx4 v5, s[12:15], s26 offen lds
        s_mov_b64 exec, s[30:31]
        s_add_u32 s26, s26, {32*2752}
        """)
    dma2(0); dma2(1)
    FA = 64
    FB = 72
    for kc in range(16):
        st = (kc % 3) * ST
        a(f"s_waitcnt vmcnt({4 if kc < 15 else 0})")
        a("s_barrier")
        if kc == 0: stamp(a, 1)
        if kc + 2 < 16:
            dma2(kc + 2)
        for ks in range(2):
            a(f"ds_read_b128 v[{FA+4*ks}:{FA+4*ks+3}], v{10+ks} offset:{st}")
            for j in range(3):
                b = FB + 12 * ks + 4 * j
                off = st + ks * 16 * 192 + 64 * j
                a(f"ds_read_b64_tr_b16 v[{b}:{b+1}], v12 offset:{off}")
                a(f"ds_read_b64_tr_b16 v[{b+2}:{b+3}], v12 offset:{off + 4*192}")
        for ks in range(2):
            for j in range(3):
                left = (1 - ks) * 7 + (2 - j) * 2
                a(f"s_waitcnt lgkmcnt({left})")
                b = FB + 12 * ks + 4 * j
                a(f"v_mfma_f32_32x32x16_bf16 v[{ACC+16*j}:{ACC+16*j+15}], v[{b}:{b+3}], v[{FA+4*ks}:{FA+4*ks+3}], v[{ACC+16*j}:{ACC+16*j+15}]")
    stamp(a, 2)
    prio2(a, PR[7], PR[7])
    a(f"""
    s_barrier
    s_lshl_b32 s22, s3, 5
    v_add_u32 v8, s22, v6
    v_mul_u32_u24 v8, 208, v8
    v_lshl_add_u32 v8, v7, 3, v8       ; row*208 + 8h
    s_nop 7
    s_nop 3
    """)
    for j in range(3):
        for q in range(4):
            r = ACC + 16 * j + 4 * q
            a(f"""
            v_max_f32 v{r}, 0, v{r}
            v_max_f32 v{r+1}, 0, v{r+1}
            v_max_f32 v{r+2}, 0, v{r+2}
            v_max_f32 v{r+3}, 0, v{r+3}
            v_cvt_pk_bf16_f32 v{r}, v{r}, v{r+1}
            v_cvt_pk_bf16_f32 v{r+1}, v{r+2}, v{r+3}
            ds_write_b64 v8, v[{r}:{r+1}] offset:{64*j + 16*q}
            """)
    a(f"""
    s_mul_i32 s22, s3, {32*208}
    s_lshl_b32 s25, s20, 7
    s_lshl_b32 s26, s3, 5
    s_add_u32 s25, s25, s26
    s_mul_i32 s25, s25, {H_RS}
    s_mul_i32 s26, s21, 192
    s_add_u32 s25, s25, s26
    s_mul_i32 s26, s21, 96
    s_movk_i32 s27, {H_RS}
    s_movk_i32 s28, 208
    s_mov_b32 s29, 0x40000000
    s_movk_i32 s34, 1376
    s_movk_i32 s35, 1408
    s_waitcnt lgkmcnt(0)
    """)
    for i in range(6):
        a(f"""
        v_add_u32 v9, {64*i}, v2
        v_mul_u32_u24 v10, s23, v9
        v_lshrrev_b32 v10, 16, v10         ; row
        v_mul_u32_u24 v11, 12, v10
        v_sub_u32 v9, v9, v11              ; cc
        v_lshlrev_b32 v11, 4, v9
        v_mad_u32_u24 v12, v10, s28, v11
        v_add_u32 v12, s22, v12
        ds_read_b128 v[{64+4*i}:{67+4*i}], v12
        v_mad_u32_u24 v{90+i}, v10, s27, v11
        v_lshl_add_u32 v{96+i}, v9, 3, s26 ; col
        """)
    for i in range(6):
        a(f"""
        s_waitcnt lgkmcnt({5-i})
        v_cmp_gt_u32 vcc, s34, v{96+i}
        v_mov_b32 v9, s29
        v_cndmask_b32 v{64+4*i}, 0, v{64+4*i}, vcc
        v_cndmask_b32 v{65+4*i}, 0, v{65+4*i}, vcc
        v_cndmask_b32 v{66+4*i}, 0, v{66+4*i}, vcc
        v_cndmask_b32 v{67+4*i}, 0, v{67+4*i}, vcc
        v_cmp_gt_u32 vcc, s35, v{96+i}
        s_nop 1
        v_cndmask_b32 v{90+i}, v9, v{90+i}, vcc
        buffer_store_dwordx4 v[{64+4*i}:{67+4*i}], v{90+i}, s[16:19], s25 offen
        """)
    stamp_out(a, 1, 3, "k2_done")
    a.label("k2_done")
    a("s_endpgm")

def add(kernels, launches):
    a = Asm()
    gen_k2(a)
    kernels.append(("k2_kernel", a.text(), 128))
    launches.append(f"; @launch kernel=k2_kernel grid=({N_G1+N_CV},1,1) block=(256,1,1) lds={K2_LDS}")
    try:
        import gen3
        gen3.add(kernels, launches)
    except ImportError:
        pass
```

```python
import sys, re, os
VAR = os.environ.get('VAR', '').split(',')

NAME = "parallel_sum__ssm_conv_s4__dense_activation_relu__prompt"

XN_OFF  = 0x000000
XT_RS   = 4224
XT0_OFF = 0x200000
XT_SZ   = 512 * XT_RS
XT1_OFF = XT0_OFF + XT_SZ
KH_OFF  = XT1_OFF + XT_SZ
KL_OFF  = KH_OFF + 0x200000
YT_OFF  = KL_OFF + 0x200000
H_OFF   = YT_OFF + 0x200000
H_RS    = 2816
H_SZ    = 2048 * H_RS
WS_END  = H_OFF + H_SZ

class Asm:
    def __init__(self):
        self.lines = []
    def __call__(self, s):
        for l in s.strip("\n").split("\n"):
            m = re.search(r"offset:(\d+)", l)
            if m and ("buffer_" in l or "global_" in l) and int(m.group(1)) > 4095:
                raise ValueError("offset too large: " + l)
            if m and "ds_" in l and int(m.group(1)) > 65535:
                raise ValueError("ds offset too large: " + l)
            self.lines.append("    " + l.strip() if l.strip() and not l.strip().endswith(":") else l.strip())
    def label(self, l):
        self.lines.append(l + ":")
    def text(self):
        return "\n".join(self.lines) + "\n"

def srd(a, d, lo, hi, size):
    a(f"""
    s_mov_b32 s{d}, s{lo}
    s_and_b32 s{d+1}, s{hi}, 0xffff
    s_mov_b32 s{d+2}, {size:#x}
    s_mov_b32 s{d+3}, 0x00020000
    """)

def srd_off(a, d, lo, hi, off, size):
    a(f"""
    s_add_u32 s{d}, s{lo}, {off:#x}
    s_addc_u32 s{d+1}, s{hi}, 0
    s_and_b32 s{d+1}, s{d+1}, 0xffff
    s_mov_b32 s{d+2}, {size:#x}
    s_mov_b32 s{d+3}, 0x00020000
    """)

def stamp(a, i):
    if 'stamp' not in VAR: return
    a(f"s_memtime s[{60+2*i}:{61+2*i}]")
    if i == 0:
        a("s_memrealtime s[76:77]")
    a("s_waitcnt lgkmcnt(0)")

def stamp_out(a, kidx, n, lab):
    if 'stamp' not in VAR: return
    a(f"""
    s_memtime s[{60+2*n}:{61+2*n}]
    s_memrealtime s[78:79]
    s_cmp_lg_u32 s3, 0
    s_cbranch_scc1 {lab}
    s_add_u32 s80, s6, {0x4000000 + kidx*0x100000:#x}
    s_addc_u32 s81, s7, 0
    s_and_b32 s81, s81, 0xffff
    s_mov_b32 s82, 0x100000
    s_mov_b32 s83, 0x00020000
    s_lshl_b32 s84, s2, 6
    v_mov_b32 v1, 0
    s_waitcnt lgkmcnt(0)
    """)
    for i in list(range(n + 1)) + [8, 9]:
        a(f"v_mov_b32 v2, s{60+2*i}")
        a(f"buffer_store_dword v2, v1, s[80:83], s84 offen offset:{4*i}")

def rho_of_row(i):
    if i < 8: return i
    if i < 12: return 256 + 2 * (i - 8)
    if i < 16: return 512 + 4 * ((i - 12) & 1) + 256 * ((i - 12) >> 1)
    if i < 20: return 1024 + 256 * (i - 16)
    return 2048

KSTEPS = [(0, b) for b in range(8)] + [(1,0),(1,2),(1,4),(1,6),(1,1),(1,3),(2,0),(2,4),(2,1),(2,3),(3,0),(3,4),(3,1)] \
       + [(1,5),(1,7),(2,2),(2,5),(2,6),(2,7),(3,2),(3,3),(3,5),(3,6),(3,7)]
def rho_of_step(m, b):
    if m == 0 or b not in (1, 3): return 256 * m + b
    return 256 * (m + (3 if b == 1 else 6))
ROWSLOT = {rho_of_step(m, b): s for s, (m, b) in enumerate(KSTEPS[:21])}
COLSLOT = {8 * m + b: s for s, (m, b) in enumerate(KSTEPS)}

N_LN = 257
N_KG = 0
K1_LDS = 8 * 1088
LRS = 1088

def gen_k1(a):
    a.label("k1_kernel")
    a(f"""
    s_cmp_ge_u32 s2, {N_LN + N_KG}
    s_cbranch_scc1 k1_done
    v_lshrrev_b32 v1, 6, v0
    v_and_b32 v2, 63, v0              ; lane
    s_load_dwordx2 s[6:7], s[0:1], 112 ; ws
    v_readfirstlane_b32 s3, v1
    {'s_branch k1_done' if 'k1_noln' in VAR else ''}
    s_load_dwordx2 s[4:5], s[0:1], 0  ; x
    v_lshlrev_b32 v3, 4, v2           ; lane*16
    s_movk_i32 s22, {XT_RS}
    v_mul_lo_u32 v5, v0, s22          ; t*4224
    s_waitcnt lgkmcnt(0)
    """)
    stamp(a, 0)
    srd_off(a, 16, 6, 7, XT0_OFF, XT_SZ)
    a(f"""
    s_cmp_eq_u32 s2, 256
    s_cbranch_scc1 k1_zero
    """)
    srd(a, 8, 4, 5, 0x200000)
    srd(a, 12, 6, 7, 0x200000)
    a(f"""
    s_and_b32 s20, s2, 7
    s_lshl_b32 s20, s20, 5
    s_lshr_b32 s21, s2, 3
    s_add_u32 s20, s20, s21           ; rb
    s_lshl_b32 s21, s20, 13           ; rb*8*1024
    s_lshl_b32 s22, s3, 11
    s_add_u32 s21, s21, s22           ; + 2*wave*1024
    buffer_load_dwordx4 v[10:13], v3, s[8:11], s21 offen
    buffer_load_dwordx4 v[14:17], v3, s[8:11], s21 offen offset:1024
    s_mov_b32 s23, 0xffff0000
    s_mov_b32 s34, 0x3b000000         ; 1/512
    s_mov_b32 s35, 0x3727c5ac         ; 1e-5f
    s_mul_i32 s22, s3, {2*LRS}
    v_add_u32 v4, s22, v3
    v_bfe_u32 v6, v2, 2, 2
    v_mul_u32_u24 v6, {LRS}, v6
    v_lshrrev_b32 v7, 4, v0
    v_lshl_add_u32 v6, v7, 5, v6
    v_and_b32 v7, 3, v2
    v_lshl_add_u32 v6, v7, 3, v6
    s_lshl_b32 s24, s20, 4
    s_add_u32 s24, s24, 64
    s_add_u32 s25, s24, {256*XT_RS:#x}
    """)
    X = [20, 28]
    S = [36, 37]
    for r in range(2):
        a(f"s_waitcnt vmcnt({1-r})")
        for j in range(4):
            a(f"v_lshlrev_b32 v{X[r]+2*j}, 16, v{10+4*r+j}")
            a(f"v_and_b32 v{X[r]+2*j+1}, s23, v{10+4*r+j}")
        t = 40 + 4 * r
        a(f"""
        v_add_f32 v{t}, v{X[r]}, v{X[r]+1}
        v_add_f32 v{t+1}, v{X[r]+2}, v{X[r]+3}
        v_add_f32 v{t+2}, v{X[r]+4}, v{X[r]+5}
        v_add_f32 v{t+3}, v{X[r]+6}, v{X[r]+7}
        v_add_f32 v{t}, v{t}, v{t+1}
        v_add_f32 v{t+2}, v{t+2}, v{t+3}
        v_add_f32 v{S[r]}, v{t}, v{t+2}
        """)
    def wave_reduce():
        for ctrl in ["row_shr:1", "row_shr:2", "row_shr:4", "row_shr:8"]:
            for r in range(2):
                a(f"v_add_f32_dpp v{S[r]}, v{S[r]}, v{S[r]} {ctrl} row_mask:0xf bank_mask:0xf bound_ctrl:0")
            a("s_nop 0")
        for r in range(2):
            a(f"v_add_f32_dpp v{S[r]}, v{S[r]}, v{S[r]} row_bcast:15 row_mask:0xa bank_mask:0xf")
        a("s_nop 0")
        for r in range(2):
            a(f"v_add_f32_dpp v{S[r]}, v{S[r]}, v{S[r]} row_bcast:31 row_mask:0xc bank_mask:0xf")
        a("s_nop 1")
        for r in range(2):
            a(f"v_readlane_b32 s{26+r}, v{S[r]}, 63")
        a("s_nop 1")
    stamp(a, 1)
    wave_reduce()
    M = [38, 39]
    for r in range(2):
        a(f"v_mov_b32 v{M[r]}, s{26+r}")
        a(f"v_mul_f32 v{M[r]}, s34, v{M[r]}")
    for r in range(2):
        t = 40 + 10 * r
        for k in range(8):
            a(f"v_sub_f32 v{t+k}, v{X[r]+k}, v{M[r]}")
        a(f"v_mul_f32 v{S[r]}, v{t}, v{t}")
        a(f"v_mul_f32 v{t+8}, v{t+1}, v{t+1}")
        for k in range(2, 8, 2):
            a(f"v_fmac_f32 v{S[r]}, v{t+k}, v{t+k}")
            a(f"v_fmac_f32 v{t+8}, v{t+k+1}, v{t+k+1}")
        a(f"v_add_f32 v{S[r]}, v{S[r]}, v{t+8}")
    a("s_nop 1")
    wave_reduce()
    RI = [60, 61]
    for r in range(2):
        t = 40 + 4 * r
        a(f"""
        v_mov_b32 v{t}, s{26+r}
        v_mul_f32 v{t}, s34, v{t}
        v_cvt_pk_bf16_f32 v{t}, v{t}, v{t}
        v_and_b32 v{t}, s23, v{t}
        v_add_f32 v{t}, s35, v{t}
        v_cvt_pk_bf16_f32 v{t}, v{t}, v{t}
        v_and_b32 v{t}, s23, v{t}
        v_sqrt_f32 v{t+1}, v{t}
        v_cvt_pk_bf16_f32 v{M[r]}, v{M[r]}, v{M[r]}
        v_rcp_f32 v{t+2}, v{t+1}
        v_and_b32 v{M[r]}, s23, v{M[r]}
        v_fma_f32 v{t+3}, -v{t+1}, v{t+1}, v{t}
        v_mul_f32 v{t+2}, 0.5, v{t+2}
        v_fma_f32 v{t+1}, v{t+3}, v{t+2}, v{t+1}
        v_cvt_pk_bf16_f32 v{t+1}, v{t+1}, v{t+1}
        v_and_b32 v{t+1}, s23, v{t+1}
        v_rcp_f32 v{RI[r]}, v{t+1}
        """)
    for r in range(2):
        for k in range(8):
            a(f"v_sub_f32 v{X[r]+k}, v{X[r]+k}, v{M[r]}")
        for j in range(4):
            a(f"v_cvt_pk_bf16_f32 v{10+4*r+j}, v{X[r]+2*j}, v{X[r]+2*j+1}")
        for j in range(4):
            a(f"v_lshlrev_b32 v{X[r]+2*j}, 16, v{10+4*r+j}")
            a(f"v_and_b32 v{X[r]+2*j+1}, s23, v{10+4*r+j}")
        for k in range(8):
            a(f"v_mul_f32 v{X[r]+k}, v{X[r]+k}, v{RI[r]}")
        for j in range(4):
            a(f"v_cvt_pk_bf16_f32 v{10+4*r+j}, v{X[r]+2*j}, v{X[r]+2*j+1}")
        a(f"ds_write_b128 v4, v[{10+4*r}:{13+4*r}] offset:{r*LRS}")
        a(f"buffer_store_dwordx4 v[{10+4*r}:{13+4*r}], v3, s[12:15], s21 offen offset:{r*1024}")
    a("""
    s_waitcnt lgkmcnt(0)
    s_barrier
    """)
    stamp(a, 2)
    a(f"""
    ds_read_b64_tr_b16 v[20:21], v6
    ds_read_b64_tr_b16 v[22:23], v6 offset:{4*LRS}
    ds_read_b64_tr_b16 v[24:25], v6 offset:512
    ds_read_b64_tr_b16 v[26:27], v6 offset:{4*LRS+512}
    s_waitcnt lgkmcnt(2)
    buffer_store_dwordx4 v[20:23], v5, s[16:19], s24 offen
    s_waitcnt lgkmcnt(0)
    buffer_store_dwordx4 v[24:27], v5, s[16:19], s25 offen
    """)
    stamp_out(a, 0, 3, "k1_done")
    a("s_branch k1_done")
    a.label("k1_zero")
    a(f"""
    v_mov_b32 v10, 0
    v_mov_b32 v11, 0
    v_mov_b32 v12, 0
    v_mov_b32 v13, 0
    s_mov_b32 s24, 0
    s_mov_b32 s25, {256*XT_RS:#x}
    """)
    for j in range(4):
        a(f"buffer_store_dwordx4 v[10:13], v5, s[16:19], s24 offen offset:{16*j}")
        a(f"buffer_store_dwordx4 v[10:13], v5, s[16:19], s25 offen offset:{16*j}")
    srd_off(a, 12, 6, 7, KH_OFF, 8192)
    a(f"""
    v_lshlrev_b32 v3, 3, v0
    v_sub_u32 v3, 0x7ff, v3              ; jj0 = 2047 - 8t
    s_movk_i32 s36, 0x7fff
    s_movk_i32 s37, 0x100
    s_movk_i32 s38, 0x200
    s_movk_i32 s39, 0x400
    s_mov_b32 s35, 0xffff0000
    v_mov_b32 v30, 0
    """)
    for i in range(21):
        sl = ROWSLOT[rho_of_row(i)]
        a(f"v_mov_b32 v31, {(sl >> 3) * 1024 + ((sl >> 2) & 1) * 512 + (sl & 3) * 4}")
        a(f"ds_write_b32 v30, v31 offset:{4*i}")
    for j in range(32):
        a(f"v_mov_b32 v31, {16 * COLSLOT[j]}")
        a(f"ds_write_b32 v30, v31 offset:{128 + 4*j}")
    a("s_waitcnt lgkmcnt(0)")
    for e in range(8):
        r = 20 + e
        a(f"""
        v_subrev_u32 v{r}, {e}, v3
        v_cvt_f32_u32 v{r}, v{r}
        v_bfe_u32 v7, v{r}, 16, 1
        v_add3_u32 v{r}, v{r}, v7, s36
        v_and_b32 v{r}, s35, v{r}
        v_cvt_u32_f32 v{r}, v{r}             ; r
        v_and_b32 v7, 7, v{r}                ; row (r<256)
        v_bfe_u32 v14, v{r}, 1, 2
        v_add_u32 v14, 8, v14
        v_cmp_le_u32 vcc, s37, v{r}
        v_bfe_u32 v15, v{r}, 2, 1
        v_cndmask_b32 v7, v7, v14, vcc
        v_bfe_u32 v14, v{r}, 8, 1
        v_lshl_add_u32 v14, v14, 1, v15
        v_add_u32 v14, 12, v14
        v_cmp_le_u32 vcc, s38, v{r}
        v_lshrrev_b32 v15, 8, v{r}
        v_cndmask_b32 v7, v7, v14, vcc
        v_add_u32 v15, 12, v15
        v_cmp_le_u32 vcc, s39, v{r}
        v_bfe_u32 v{r}, v{r}, 3, 5           ; col
        v_cndmask_b32 v7, v7, v15, vcc       ; row
        v_lshlrev_b32 v{r}, 2, v{r}
        v_lshlrev_b32 v7, 2, v7
        ds_read_b32 v{r}, v{r} offset:128
        ds_read_b32 v7, v7
        s_waitcnt lgkmcnt(0)
        v_add_u32 v{r}, v{r}, v7
        """)
    a(f"""
    v_lshlrev_b32 v3, 5, v0
    buffer_store_dwordx4 v[20:23], v3, s[12:15], 0 offen
    buffer_store_dwordx4 v[24:27], v3, s[12:15], 0 offen offset:16
    """)
    a("s_branch k1_done")

    a.label("k1_done")
    a("s_endpgm")

def descriptor(name, vgpr, sgpr=102):
    acc = (vgpr + 3) // 4 * 4
    return f""".amdhsa_kernel {name}
  .amdhsa_next_free_vgpr {vgpr}
  .amdhsa_next_free_sgpr {sgpr}
  .amdhsa_accum_offset {acc}
  .amdhsa_group_segment_fixed_size 0
  .amdhsa_kernarg_size 120
  .amdhsa_user_sgpr_count 2
  .amdhsa_user_sgpr_kernarg_segment_ptr 1
  .amdhsa_system_sgpr_workgroup_id_x 1
  .amdhsa_float_denorm_mode_32 3
.end_amdhsa_kernel
"""

def main():
    kernels = []
    launches = []
    a = Asm()
    gen_k1(a)
    kernels.append(("k1_kernel", a.text(), 64))
    launches.append(f"; @launch kernel=k1_kernel grid=({N_LN+N_KG},1,1) block=(256,1,1) lds={K1_LDS}")
    try:
        import gen2
        gen2.add(kernels, launches)
    except ImportError:
        pass
    hdr = open("cdna_kernels/" + NAME + ".s.ref").read().split("\n")
    out = []
    for l in hdr:
        if l.startswith("; @launch"):
            break
        out.append(l)
    out += launches
    out.append('.amdgcn_target "amdgcn-amd-amdhsa--gfx950"')
    out.append(".text")
    for name, text, vg in kernels:
        out.append(f".globl {name}")
        out.append(".p2align 8")
        out.append(f".type {name},@function")
        out.append(text)
    out.append('.section .rodata,"a"')
    for name, text, vg in kernels:
        out.append(".p2align 6")
        out.append(descriptor(name, vg))
    open(os.environ.get("OUT", "cdna_kernels/" + NAME + ".s"), "w").write("\n".join(out))

if __name__ == "__main__":
    main()
```

```python
from gen import *

N_G1 = 240
N_CV = 512
PS = int(os.environ.get('PS', '4384'))
K2_LDS = max(8 * PS + 12288 + 3072, 26880 + 26752)
UH = 0
KHL = 8 * PS

PR = [int(x) for x in os.environ.get('PR', '2,0,2,2,0,2,0,2').split(',')]
_pl = [0]
def prio2(a, pa, pb):
    if 'noprio' in VAR: return
    if pa == pb:
        a(f"s_setprio {pa}"); return
    _pl[0] += 1
    a(f"""
    s_setprio {pa}
    s_cmp_lt_u32 s20, 256
    s_cbranch_scc1 k2_pr{_pl[0]}
    s_setprio {pb}
    """)
    a.label(f"k2_pr{_pl[0]}")

def gen_k2(a):
    a.label("k2_kernel")
    a(f"""
    s_cmp_ge_u32 s2, {N_G1 + N_CV}
    s_cbranch_scc1 k2_done
    v_lshrrev_b32 v1, 6, v0
    v_and_b32 v2, 63, v0              ; lane
    s_load_dwordx2 s[6:7], s[0:1], 112 ; ws
    v_readfirstlane_b32 s3, v1
    {f's_cmp_ge_u32 s2, {N_CV}' if 'cvfirst' in VAR else f's_cmp_lt_u32 s2, {N_G1}'}
    s_cbranch_scc1 {'k2_done' if 'k2_nog1' in VAR else 'k2_gemm'}
    {'s_branch k2_done' if 'k2_nocv' in VAR else ''}
    s_load_dwordx2 s[4:5], s[0:1], 64 ; Dskip
    s_load_dwordx8 s[40:47], s[0:1], 8
    s_load_dwordx4 s[48:51], s[0:1], 40
    s_load_dwordx2 s[52:53], s[0:1], 56    ; log_dt
    s_load_dwordx2 s[56:57], s[0:1], 88    ; w2
    s_sub_u32 s20, s2, {0 if 'cvfirst' in VAR else N_G1}         ; d
    s_lshl_b32 s27, s20, 8                ; d*256 bytes
    s_lshl_b32 s28, s3, 6
    s_add_u32 s27, s27, s28
    v_and_b32 v4, 31, v2                  ; i / j
    v_lshrrev_b32 v6, 5, v2               ; half
    v_lshlrev_b32 v7, 1, v4
    v_add_u32 v7, s27, v7
    s_lshl_b32 s27, s20, 1
    v_mov_b32 v14, s27                    ; 2*d
    s_waitcnt lgkmcnt(0)
    global_load_ushort v80, v7, s[40:41]
    global_load_ushort v81, v7, s[42:43]
    global_load_ushort v82, v7, s[44:45]
    global_load_ushort v83, v7, s[46:47]
    global_load_ushort v84, v7, s[48:49]
    global_load_ushort v85, v7, s[50:51]
    global_load_ushort v86, v14, s[52:53]
    s_and_b32 s21, s20, 0x1fe
    s_lshl_b32 s21, s21, 1
    s_load_dword s22, s[4:5], s21
    """)
    stamp(a, 0)
    prio2(a, PR[0], PR[3])
    srd_off(a, 8, 6, 7, XT0_OFF, XT_SZ + 4096)
    srd_off(a, 16, 6, 7, YT_OFF, 0x200000)
    AS = 32
    srd_off(a, 12, 6, 7, KH_OFF, 8192)
    a(f"""
    s_mul_i32 s23, s20, {XT_RS}       ; d*4224
    s_add_u32 s26, s23, 48            ; xn[-8]
    v_lshlrev_b32 v5, 4, v0           ; 16*t
    v_lshlrev_b32 v3, 5, v0           ; 32*t
    buffer_load_dwordx4 v[32:35], v5, s[8:11], s26 offen
    buffer_load_dwordx4 v[36:39], v5, s[8:11], s26 offen offset:16
    buffer_load_dwordx4 v[60:63], v3, s[12:15], 0 offen
    buffer_load_dwordx4 v[64:67], v3, s[12:15], 0 offen offset:16
    """)
    TBL = KHL + 12288
    WT = 6656
    P = [None] + [92 + 2 * i for i in range(7)]
    G1, G2, G3, G6 = 106, 108, 110, 112
    A = [114, 116, 118, 120]
    M1, M3 = 122, 124
    AR = 40
    NA = [84, 85, 86, 87]
    def cmul2(d, x, y, d2, x2, y2):
        a(f"""
        v_mul_f32 v{d}, v{x}, v{y}
        v_mul_f32 v{d+1}, v{x}, v{y+1}
        v_mul_f32 v{d2}, v{x2}, v{y2}
        v_mul_f32 v{d2+1}, v{x2}, v{y2+1}
        v_fma_f32 v{d}, -v{x+1}, v{y+1}, v{d}
        v_fmac_f32 v{d+1}, v{x+1}, v{y}
        v_fma_f32 v{d2}, -v{x2+1}, v{y2+1}, v{d2}
        v_fmac_f32 v{d2+1}, v{x2+1}, v{y2}
        """)
    a(f"""
    s_mov_b32 s54, 0
    s_mov_b32 s55, -1
    s_mul_i32 s32, s3, {WT}
    v_lshlrev_b32 v12, 12, v6
    v_add_u32 v12, s32, v12
    v_and_b32 v13, 3, v4
    v_lshl_add_u32 v12, v13, 2, v12
    v_lshrrev_b32 v13, 2, v4
    v_lshl_add_u32 v12, v13, 4, v12
    """)
    for c in range(16):
        a(f"v_xor_b32 v{AR+c}, {16*((c>>1)&7) + 128*(c&1)}, v12")
    a(f"""
    v_mov_b32 v13, s32
    v_cndmask_b32 v13, v13, 0, s[54:55]
    v_sub_u32 v56, v12, v13
    v_mov_b32 v14, 0x41000000             ; 8
    v_cndmask_b32 v12, v14, 1.0, s[54:55] ; c1
    v_cndmask_b32 v13, v14, -1.0, s[54:55] ; c1 (phase)
    v_mov_b32 v14, 0x42800000             ; 64
    v_mov_b32 v15, 0x43800000             ; 256
    v_cndmask_b32 v57, v14, v15, s[54:55] ; c2
    v_cndmask_b32 v58, v14, -v15, s[54:55] ; c2 (phase)
    s_mov_b32 s33, 0x3fb8aa3b             ; log2e
    s_mov_b32 s34, 0x3e22f983             ; 1/(2pi)
    s_mov_b32 s35, 0xffff0000
    s_mov_b32 s36, 0x0000bf80
    s_mov_b32 s37, 0x80000000
    s_waitcnt vmcnt(4)
    """)
    stamp(a, 1)
    a(f"""
    v_lshlrev_b32 v86, 16, v86
    v_mul_f32 v86, s33, v86
    v_exp_f32 v86, v86
    v_lshlrev_b32 v80, 16, v80
    v_lshlrev_b32 v81, 16, v81
    v_lshlrev_b32 v82, 16, v82
    v_lshlrev_b32 v83, 16, v83
    v_lshlrev_b32 v84, 16, v84
    v_lshlrev_b32 v85, 16, v85
    v_cvt_pk_bf16_f32 v86, v86, v86
    v_and_b32 v86, s35, v86               ; dt
    v_mul_f32 v80, v86, v80               ; lr
    v_mul_f32 v81, v86, v81               ; li
    v_mul_f32 v82, v86, v82               ; dBr
    v_mul_f32 v83, v86, v83               ; dBi
    v_mul_f32 v88, s33, v80               ; lr2
    v_mul_f32 v89, s34, v81               ; lif
    v_mul_f32 v68, v88, v12
    v_mul_f32 v69, v89, v13
    v_mul_f32 v70, v88, v57
    v_mul_f32 v71, v89, v58
    v_exp_f32 v68, v68
    v_fract_f32 v69, v69
    v_exp_f32 v70, v70
    v_fract_f32 v71, v71
    v_cos_f32 v{P[1]}, v69
    v_sin_f32 v{P[1]+1}, v69
    v_cos_f32 v{G1}, v71
    v_sin_f32 v{G1+1}, v71
    v_mul_f32 v90, v84, v82
    v_fma_f32 v90, -v85, v83, v90         ; CBr
    v_mul_f32 v91, v84, v83
    v_fma_f32 v91, v85, v82, v91          ; CBi
    v_mul_f32 v{P[1]}, v68, v{P[1]}
    v_mul_f32 v{P[1]+1}, v68, v{P[1]+1}
    v_mul_f32 v{G1}, v70, v{G1}
    v_mul_f32 v{G1+1}, v70, v{G1+1}
    v_cndmask_b32 v{A[0]}, 1.0, v90, s[54:55]
    v_cndmask_b32 v{A[0]+1}, 0, -v91, s[54:55]
    """)
    cmul2(P[2], P[1], P[1], G2, G1, G1)
    cmul2(P[3], P[2], P[1], G3, G2, G1)
    cmul2(P[4], P[2], P[2], A[1], A[0], G1)
    cmul2(P[6], P[3], P[3], G6, G3, G3)
    cmul2(P[5], P[4], P[1], A[2], A[0], G2)
    cmul2(P[7], P[4], P[3], A[3], A[0], G3)
    a(f"""
    v_cndmask_b32 v{M1}, v{P[1]}, v{G3}, s[54:55]
    v_cndmask_b32 v{M1+1}, v{P[1]+1}, v{G3+1}, s[54:55]
    v_cndmask_b32 v{M3}, v{P[3]}, v{G6}, s[54:55]
    v_cndmask_b32 v{M3+1}, v{P[3]+1}, v{G6+1}, s[54:55]
    v_xor_b32 v{NA[0]}, s37, v{A[0]+1}
    v_xor_b32 v{NA[1]}, s37, v{A[1]+1}
    v_xor_b32 v{NA[2]}, s37, v{A[2]+1}
    v_xor_b32 v{NA[3]}, s37, v{A[3]+1}
    """)
    def src_of(m, b):
        if b == 0: return None
        if m > 0 and b == 1: return M1
        if m > 0 and b == 3: return M3
        return P[b]
    def pair(p):
        pr = []
        for k in range(2):
            st_ = 2 * p + k
            m, b = KSTEPS[st_]
            pr.append((st_, m, b, 68 + 4 * ((p & 1) * 2 + k)))
        return pr
    def stA(p):
        n = 0
        for (st_, m, b, T) in pair(p):
            y = src_of(m, b)
            if y is not None:
                a(f"v_mul_f32 v{T}, v{A[m]}, v{y}")
                a(f"v_mul_f32 v{T+1}, v{A[m]}, v{y+1}"); n += 2
        for (st_, m, b, T) in pair(p):
            y = src_of(m, b)
            if y is not None:
                a(f"v_fmac_f32 v{T}, v{NA[m]}, v{y+1}")
                a(f"v_fmac_f32 v{T+1}, v{A[m]+1}, v{y}"); n += 2
        return 4
    def stB(p):
        for (st_, m, b, T) in pair(p):
            V = T if b else A[m]
            a(f"v_cvt_pk_bf16_f32 v{T+2}, v{V}, v{V+1}")
        for k, (st_, m, b, T) in enumerate(pair(p)):
            a(f"v_lshlrev_b32 v{88+2*k}, 16, v{T+2}")
            a(f"v_and_b32 v{89+2*k}, s35, v{T+2}")
        for k, (st_, m, b, T) in enumerate(pair(p)):
            V = T if b else A[m]
            a(f"v_sub_f32 v{T}, v{V}, v{88+2*k}")
            a(f"v_sub_f32 v{T+1}, v{V+1}, v{89+2*k}")
    def stC(p):
        for (st_, m, b, T) in pair(p):
            a(f"v_cvt_pk_bf16_f32 v{T+3}, v{T}, v{T+1}")
        for (st_, m, b, T) in pair(p):
            if st_ == 21:
                a("s_mov_b32 exec_hi, 0")
            ar = 56 if st_ == 0 else AR + (st_ & 15)
            a(f"ds_write2st64_b32 v{ar}, v{T+2}, v{T+3} offset0:{st_>>1} offset1:{(st_>>1)+105}")
    stA(0); stB(0)
    for p in range(1, 17):
        if p < 16: stA(p)
        stC(p - 1)
        if p < 16: stB(p)
    a(f"""
    s_mov_b64 exec, -1
    v_min_u32 v12, 20, v4
    v_bfe_u32 v13, v12, 1, 3
    v_xor_b32 v13, v13, v6
    v_lshlrev_b32 v13, 4, v13
    v_lshl_add_u32 v12, v12, 7, v13
    s_add_u32 s33, s32, 4096
    v_add_u32 v44, s33, v12               ; RA[0]
    v_bfe_u32 v13, v4, 1, 3
    v_xor_b32 v13, v13, v6
    v_lshlrev_b32 v13, 4, v13
    v_lshl_add_u32 v12, v4, 7, v13
    v_mov_b32 v14, s32
    v_cmp_eq_u32 vcc, 0, v4
    v_xor_b32 v45, 32, v44
    v_cndmask_b32 v14, v14, 0, vcc
    v_add_u32 v48, v14, v12               ; RB[0]
    v_xor_b32 v46, 64, v44
    v_xor_b32 v47, 96, v44
    v_xor_b32 v49, 32, v48
    v_xor_b32 v50, 64, v48
    v_xor_b32 v51, 96, v48
    s_waitcnt lgkmcnt(0)
    """)
    stamp(a, 2)
    FR = [68 + 4 * i for i in range(15)] + [40]
    for g in range(4):
        a(f"ds_read_b128 v[{FR[4*g]}:{FR[4*g]+3}], v{44+g}")
        a(f"ds_read_b128 v[{FR[4*g+1]}:{FR[4*g+1]+3}], v{48+g} offset:26880")
        a(f"ds_read_b128 v[{FR[4*g+2]}:{FR[4*g+2]+3}], v{44+g} offset:26880")
        a(f"ds_read_b128 v[{FR[4*g+3]}:{FR[4*g+3]+3}], v{48+g}")
    KA = 16
    for g in range(4):
        AH, BL, AL, BH = FR[4*g:4*g+4]
        a(f"s_waitcnt lgkmcnt({14 - 4*g})")
        a(f"v_mfma_f32_32x32x16_bf16 v[{KA}:{KA+15}], v[{AH}:{AH+3}], v[{BL}:{BL+3}], {'0' if g == 0 else f'v[{KA}:{KA+15}]'}")
        a(f"s_waitcnt lgkmcnt({12 - 4*g})")
        a(f"v_mfma_f32_32x32x16_bf16 v[{KA}:{KA+15}], v[{AL}:{AL+3}], v[{BH}:{BH+3}], v[{KA}:{KA+15}]")
        a(f"v_mfma_f32_32x32x16_bf16 v[{KA}:{KA+15}], v[{AH}:{AH+3}], v[{BH}:{BH+3}], v[{KA}:{KA+15}]")
    a(f"""
    v_lshlrev_b32 v7, 4, v2
    v_add_u32 v7, s32, v7
    v_and_b32 v12, 3, v0
    v_mul_u32_u24 v12, 96, v12
    v_lshrrev_b32 v14, 2, v0
    v_add_u32 v12, v12, v14
    v_lshlrev_b32 v12, 4, v12             ; 16*pos(t)
    s_nop 7
    s_nop 4
    ds_write_b128 v7, v[{KA}:{KA+3}] offset:512
    ds_write_b128 v7, v[{KA+4}:{KA+7}] offset:{512+1024}
    ds_write_b128 v7, v[{KA+8}:{KA+11}] offset:{512+2048}
    s_waitcnt lgkmcnt(0)
    s_barrier
    s_cmp_eq_u32 s3, 3
    s_cbranch_scc1 k2_cv_nored
    ds_read_b128 v[16:19], v5 offset:512
    ds_read_b128 v[20:23], v5 offset:{512+WT}
    ds_read_b128 v[24:27], v5 offset:{512+2*WT}
    ds_read_b128 v[28:31], v5 offset:{512+3*WT}
    s_waitcnt lgkmcnt(0)
    v_add_f32 v16, v16, v20
    v_add_f32 v17, v17, v21
    v_add_f32 v18, v18, v22
    v_add_f32 v19, v19, v23
    v_add_f32 v24, v24, v28
    v_add_f32 v25, v25, v29
    v_add_f32 v26, v26, v30
    v_add_f32 v27, v27, v31
    v_add_f32 v16, v16, v24
    v_add_f32 v17, v17, v25
    v_add_f32 v18, v18, v26
    v_add_f32 v19, v19, v27
    ds_write_b128 v5, v[16:19] offset:{TBL}
    """)
    a.label("k2_cv_nored")
    a("s_waitcnt vmcnt(0)")
    for k in range(6):
        a(f"v_alignbit_b32 v{40+k}, v{33+k}, v{32+k}, 16")
        a(f"v_mov_b32 v{48+k}, v{33+k}")
        a(f"v_alignbit_b32 v{54+k}, v{34+k}, v{33+k}, 16")
    for k in range(4):
        a(f"v_mov_b32 v{8+k}, v{36+k}")
    a(f"""
    s_waitcnt lgkmcnt(0)
    s_barrier
    """)
    stamp(a, 3)
    for e in range(8):
        a(f"ds_read_b32 v{16+e}, v{60+e} offset:{TBL}")
    for sidx, r in enumerate([40, 48, 54, 34, 42, 50, 56, 36]):
        a(f"ds_write_b128 v5, v[{r}:{r+3}] offset:{sidx*PS + 48}")
    a(f"""
    v_mov_b32 v40, 0
    v_mov_b32 v41, 0
    v_mov_b32 v42, 0
    v_mov_b32 v43, 0
    s_waitcnt lgkmcnt(8)
    """)
    for e in range(0, 8, 2):
        a(f"v_cvt_pk_bf16_f32 v{32+e//2}, v{16+e}, v{17+e}")
    for e in range(0, 8, 2):
        a(f"v_lshlrev_b32 v{24+e}, 16, v{32+e//2}")
        a(f"v_and_b32 v{25+e}, s35, v{32+e//2}")
    for e in range(8):
        a(f"v_sub_f32 v{16+e}, v{16+e}, v{24+e}")
    for e in range(0, 8, 2):
        a(f"v_cvt_pk_bf16_f32 v{36+e//2}, v{16+e}, v{17+e}")
    a(f"""
    ds_write_b128 v12, v[32:35] offset:{KHL}
    ds_write_b128 v12, v[36:39] offset:{KHL+6144}
    s_cmp_eq_u32 s3, 3
    s_cbranch_scc1 k2_cv_zf
    s_cmp_ge_u32 s3, 2
    s_cbranch_scc1 k2_cv_nozero
    ds_write_b128 v12, v[40:43] offset:{KHL+1024}
    ds_write_b128 v12, v[40:43] offset:{KHL+6144+1024}
    s_branch k2_cv_nozero
    """)
    a.label("k2_cv_zf")
    a(f"""
    v_lshrrev_b32 v16, 3, v2
    v_min_u32 v16, 2, v16
    v_lshlrev_b32 v16, 4, v16
    v_and_b32 v17, 7, v2
    v_mov_b32 v18, {PS}
    v_mad_u32_u24 v16, v17, v18, v16
    ds_write_b128 v16, v[40:43]
    """)
    a.label("k2_cv_nozero")
    a(f"""
    s_lshl_b32 s35, s3, 4             ; c_start
    v_lshrrev_b32 v12, 3, v4
    v_add_u32 v12, v12, v6
    v_lshlrev_b32 v12, 4, v12         ; 16*((b>>3)+kg)
    v_and_b32 v13, 7, v4
    v_mov_b32 v14, {PS}
    v_mad_u32_u24 v12, v13, v14, v12
    s_lshl_b32 s36, s35, 5
    v_add_u32 v12, s36, v12
    v_mul_u32_u24 v13, 96, v6
    v_sub_u32 v13, v13, v4
    v_add_u32 v13, 31, v13
    v_lshlrev_b32 v13, 4, v13
    s_lshl_b32 s36, s35, 3            ; 16*(c/2)
    s_add_u32 s36, s36, {KHL}
    v_add_u32 v13, s36, v13           ; vB
    """)
    ACC1, ACC2, ACC0, ACC3 = 16, 16, 48, 48
    first = set()
    F = [80, 104]
    a("""
    s_waitcnt vmcnt(0) lgkmcnt(0)
    s_barrier
    """)
    stamp(a, 4)
    prio2(a, PR[1], PR[4])
    if 'pf2' in VAR:
        srd(a, 56, 56, 57, 1376 * 1024)
        a("""
        s_lshl_b32 s36, s20, 12
        v_add_u32 v72, s36, v5
        buffer_load_dwordx4 v[68:71], v72, s[56:59], 0 offen
        """)
    def mf(acc, A, B):
        c = f"v[{acc}:{acc+15}]" if acc in first else "0"
        first.add(acc)
        a(f"v_mfma_f32_32x32x16_bf16 v[{acc}:{acc+15}], v[{A}:{A+3}], v[{B}:{B+3}], {c}")
    def rd(dst, base, off):
        a(f"ds_read_b128 v[{dst}:{dst+3}], v{base} offset:{off}")
    def boff(c):
        return 16 * (c // 2) + 3072 * (c & 1)
    def ch_reads(c, f):
        rd(f, 12, AS * c)
        rd(f + 4, 13, boff(c))
        rd(f + 8, 13, boff(c + 64))
        rd(f + 12, 13, boff(c) + 6144)
        rd(f + 16, 13, boff(c + 64) + 6144)
        rd(f + 20, 12, AS * (c + 64))
    def ch_mfma(f, last):
        base = 0 if last else 6
        a(f"s_waitcnt lgkmcnt({base + 4})")
        mf(ACC1, f, f + 4)
        a(f"s_waitcnt lgkmcnt({base + 3})")
        mf(ACC0, f, f + 8)
        a(f"s_waitcnt lgkmcnt({base + 2})")
        mf(ACC2, f, f + 12)
        a(f"s_waitcnt lgkmcnt({base + 1})")
        mf(ACC3, f, f + 16)
        a(f"s_waitcnt lgkmcnt({base})")
        mf(ACC1, f + 20, f + 8)
        mf(ACC2, f + 20, f + 16)
    ch_reads(0, F[0])
    for c in range(16):
        if c < 15:
            ch_reads(c + 1, F[(c + 1) & 1])
        ch_mfma(F[c & 1], c == 15)
    a.label("k2_cv_fin")
    stamp(a, 5)
    prio2(a, PR[2], PR[5])
    a(f"""
    s_waitcnt lgkmcnt(0)
    s_nop 7
    s_nop 7
    """)
    a(f"""
    s_barrier
    v_mul_u32_u24 v14, 144, v4
    v_lshl_add_u32 v14, v6, 4, v14     ; a_l*144 + 16h
    s_mul_i32 s36, s3, 4608
    v_add_u32 v14, s36, v14
    """)
    for q in range(4):
        a(f"ds_write_b128 v14, v[{ACC1+4*q}:{ACC1+4*q+3}] offset:{32*q}")
    for q in range(4):
        a(f"ds_write_b128 v14, v[{ACC0+4*q}:{ACC0+4*q+3}] offset:{32*q + 4*4608}")
    a(f"""
    v_lshrrev_b32 v14, 2, v0
    v_and_b32 v14, 31, v14
    v_mul_u32_u24 v14, 144, v14
    v_and_b32 v15, 3, v0
    v_lshl_add_u32 v14, v15, 5, v14    ; a_l*144 + sub*32
    s_cmp_lt_u32 s3, 2
    s_cselect_b32 s36, {4*4608}, 0
    v_add_u32 v14, s36, v14
    s_waitcnt lgkmcnt(0)
    s_barrier
    """)
    for s in range(4):
        a(f"ds_read_b128 v[{16+8*s}:{19+8*s}], v14 offset:{s*4608}")
        a(f"ds_read_b128 v[{20+8*s}:{23+8*s}], v14 offset:{s*4608+16}")
    a("s_waitcnt lgkmcnt(0)")
    for i in range(8):
        a(f"v_add_f32 v{16+i}, v{16+i}, v{40+i}")
    a(f"""
    s_waitcnt lgkmcnt(0)
    s_and_b32 s21, s20, 1
    s_lshl_b32 s21, s21, 4
    s_lshr_b32 s22, s22, s21
    s_lshl_b32 s22, s22, 16
    s_mov_b32 s23, 0xffff0000
    s_lshl_b32 s24, s20, 12
    """)
    for i in range(8):
        a(f"v_add_f32 v{24+i}, v{24+i}, v{32+i}")
    for i in range(8):
        a(f"v_add_f32 v{16+i}, v{16+i}, v{24+i}")
    for j in range(4):
        a(f"""
        v_cvt_pk_bf16_f32 v24, v{16+2*j}, v{17+2*j}
        v_lshlrev_b32 v25, 16, v{8+j}
        v_and_b32 v26, s23, v{8+j}
        v_mul_f32 v25, s22, v25
        v_mul_f32 v26, s22, v26
        v_cvt_pk_bf16_f32 v27, v25, v26
        v_lshlrev_b32 v25, 16, v24
        v_and_b32 v26, s23, v24
        v_lshlrev_b32 v28, 16, v27
        v_and_b32 v29, s23, v27
        v_add_f32 v25, v25, v28
        v_add_f32 v26, v26, v29
        v_cvt_pk_bf16_f32 v{32+j}, v25, v26
        """)
    a(f"""
    buffer_store_dwordx4 v[32:35], v5, s[16:19], s24 offen
    """)
    stamp_out(a, 1, 6, "k2_done")
    a("s_branch k2_done")

    a.label("k2_gemm")
    a(f"""
    s_load_dwordx2 s[4:5], s[0:1], 80 ; w1
    s_and_b32 s20, s2, 15             ; mt
    s_sub_u32 s21, s2, {N_CV if 'cvfirst' in VAR else 0}
    s_lshr_b32 s21, s21, 4             ; nt
    s_waitcnt lgkmcnt(0)
    """)
    stamp(a, 0)
    prio2(a, PR[6], PR[6])
    srd(a, 8, 6, 7, 0x200000)
    srd(a, 12, 4, 5, 512 * 2752)
    srd_off(a, 16, 6, 7, H_OFF, H_SZ)
    ST = 14336
    a(f"""
    v_lshrrev_b32 v3, 2, v2
    s_lshl_b32 s22, s3, 5
    v_add_u32 v3, s22, v3              ; row = 32w + (l>>2)
    v_lshlrev_b32 v3, 10, v3
    v_lshrrev_b32 v4, 4, v2
    v_xor_b32 v4, v4, v2
    v_and_b32 v4, 3, v4
    v_lshl_add_u32 v3, v4, 4, v3       ; voffA
    s_mul_i32 s22, s3, 96
    v_add_u32 v4, s22, v2              ; P = 96w + l
    v_add_u32 v5, 64, v4
    s_movk_i32 s23, 5462               ; 65536/12
    s_movk_i32 s24, 2752
    v_mul_u32_u24 v6, s23, v4
    v_lshrrev_b32 v6, 16, v6           ; row
    v_mul_u32_u24 v7, 12, v6
    v_sub_u32 v4, v4, v7               ; cc
    v_lshlrev_b32 v4, 4, v4
    v_mad_u32_u24 v4, v6, s24, v4      ; voffB0
    v_mul_u32_u24 v6, s23, v5
    v_lshrrev_b32 v6, 16, v6
    v_mul_u32_u24 v7, 12, v6
    v_sub_u32 v5, v5, v7
    v_lshlrev_b32 v5, 4, v5
    v_mad_u32_u24 v5, v6, s24, v5      ; voffB1
    s_lshl_b32 s25, s20, 17
    s_mul_i32 s26, s21, 192
    s_lshl_b32 s27, s3, 11             ; m0 A = 2048w
    s_mul_i32 s28, s3, 1536
    s_add_u32 s28, s28, 8192           ; m0 B
    s_mov_b64 s[30:31], -1
    s_mov_b32 s32, -1
    s_mov_b32 s33, 0
    """)
    def dma(kc):
        st = (kc % 3) * ST
        a(f"""
        s_add_u32 m0, s27, {st}
        s_add_u32 s29, s25, {kc*64 + 16384}
        buffer_load_dwordx4 v3, s[8:11], s25 offen offset:{0} lds
        s_add_u32 m0, s27, {st + 1024}
        s_nop 0
        buffer_load_dwordx4 v3, s[8:11], s29 offen lds
        s_add_u32 m0, s28, {st}
        s_nop 0
        buffer_load_dwordx4 v4, s[12:15], s26 offen lds
        s_add_u32 m0, s28, {st + 1024}
        s_mov_b64 exec, s[32:33]
        buffer_load_dwordx4 v5, s[12:15], s26 offen lds
        s_mov_b64 exec, s[30:31]
        s_add_u32 s25, s25, 64
        s_add_u32 s26, s26, {32*2752}
        """)
    a(f"""
    v_and_b32 v6, 31, v2               ; m
    v_lshrrev_b32 v7, 5, v2            ; kg / h
    s_lshl_b32 s22, s3, 5
    v_add_u32 v8, s22, v6
    v_lshlrev_b32 v8, 6, v8            ; row*64
    v_lshrrev_b32 v9, 2, v6
    v_and_b32 v9, 3, v9                ; (row>>2)&3
    v_xor_b32 v10, v9, v7
    v_lshl_add_u32 v10, v10, 4, v8     ; vAr0
    v_xor_b32 v11, 2, v9
    v_xor_b32 v11, v11, v7
    v_lshl_add_u32 v11, v11, 4, v8
    v_lshlrev_b32 v12, 3, v7           ; 8*kg
    v_bfe_u32 v13, v2, 2, 2
    v_add_u32 v12, v12, v13
    v_mul_u32_u24 v12, 192, v12
    v_bfe_u32 v13, v2, 4, 1
    v_lshl_add_u32 v12, v13, 5, v12    ; + 32*((l>>4)&1)
    v_and_b32 v13, 3, v2
    v_lshl_add_u32 v12, v13, 3, v12    ; + 8*(l&3)
    v_add_u32 v12, 8192, v12           ; vBr
    """)
    ACC = 16
    for i in range(48):
        a(f"v_mov_b32 v{ACC+i}, 0")
    return_dma = dma
    def dma2(kc):
        st = (kc % 3) * ST
        a(f"""
        s_add_u32 m0, s27, {st}
        s_add_u32 s29, s25, 0x4000
        buffer_load_dwordx4 v3, s[8:11], s25 offen lds
        s_add_u32 m0, s27, {st + 1024}
        s_add_u32 s25, s25, 64
        buffer_load_dwordx4 v3, s[8:11], s29 offen lds
        s_add_u32 m0, s28, {st}
        s_nop 0
        buffer_load_dwordx4 v4, s[12:15], s26 offen lds
        s_add_u32 m0, s28, {st + 1024}
        s_mov_b64 exec, s[32:33]
        buffer_load_dwordx4 v5, s[12:15], s26 offen lds
        s_mov_b64 exec, s[30:31]
        s_add_u32 s26, s26, {32*2752}
        """)
    dma2(0); dma2(1)
    FA = 64
    FB = 72
    for kc in range(16):
        st = (kc % 3) * ST
        a(f"s_waitcnt vmcnt({4 if kc < 15 else 0})")
        a("s_barrier")
        if kc == 0: stamp(a, 1)
        if kc + 2 < 16:
            dma2(kc + 2)
        for ks in range(2):
            a(f"ds_read_b128 v[{FA+4*ks}:{FA+4*ks+3}], v{10+ks} offset:{st}")
            for j in range(3):
                b = FB + 12 * ks + 4 * j
                off = st + ks * 16 * 192 + 64 * j
                a(f"ds_read_b64_tr_b16 v[{b}:{b+1}], v12 offset:{off}")
                a(f"ds_read_b64_tr_b16 v[{b+2}:{b+3}], v12 offset:{off + 4*192}")
        for ks in range(2):
            for j in range(3):
                left = (1 - ks) * 7 + (2 - j) * 2
                a(f"s_waitcnt lgkmcnt({left})")
                b = FB + 12 * ks + 4 * j
                a(f"v_mfma_f32_32x32x16_bf16 v[{ACC+16*j}:{ACC+16*j+15}], v[{b}:{b+3}], v[{FA+4*ks}:{FA+4*ks+3}], v[{ACC+16*j}:{ACC+16*j+15}]")
    stamp(a, 2)
    prio2(a, PR[7], PR[7])
    a(f"""
    s_barrier
    s_lshl_b32 s22, s3, 5
    v_add_u32 v8, s22, v6
    v_mul_u32_u24 v8, 208, v8
    v_lshl_add_u32 v8, v7, 3, v8       ; row*208 + 8h
    s_nop 7
    s_nop 3
    """)
    for j in range(3):
        for q in range(4):
            r = ACC + 16 * j + 4 * q
            a(f"""
            v_max_f32 v{r}, 0, v{r}
            v_max_f32 v{r+1}, 0, v{r+1}
            v_max_f32 v{r+2}, 0, v{r+2}
            v_max_f32 v{r+3}, 0, v{r+3}
            v_cvt_pk_bf16_f32 v{r}, v{r}, v{r+1}
            v_cvt_pk_bf16_f32 v{r+1}, v{r+2}, v{r+3}
            ds_write_b64 v8, v[{r}:{r+1}] offset:{64*j + 16*q}
            """)
    a(f"""
    s_mul_i32 s22, s3, {32*208}
    s_lshl_b32 s25, s20, 7
    s_lshl_b32 s26, s3, 5
    s_add_u32 s25, s25, s26
    s_mul_i32 s25, s25, {H_RS}
    s_mul_i32 s26, s21, 192
    s_add_u32 s25, s25, s26
    s_mul_i32 s26, s21, 96
    s_movk_i32 s27, {H_RS}
    s_movk_i32 s28, 208
    s_mov_b32 s29, 0x40000000
    s_movk_i32 s34, 1376
    s_movk_i32 s35, 1408
    s_waitcnt lgkmcnt(0)
    """)
    for i in range(6):
        a(f"""
        v_add_u32 v9, {64*i}, v2
        v_mul_u32_u24 v10, s23, v9
        v_lshrrev_b32 v10, 16, v10         ; row
        v_mul_u32_u24 v11, 12, v10
        v_sub_u32 v9, v9, v11              ; cc
        v_lshlrev_b32 v11, 4, v9
        v_mad_u32_u24 v12, v10, s28, v11
        v_add_u32 v12, s22, v12
        ds_read_b128 v[{64+4*i}:{67+4*i}], v12
        v_mad_u32_u24 v{90+i}, v10, s27, v11
        v_lshl_add_u32 v{96+i}, v9, 3, s26 ; col
        """)
    for i in range(6):
        a(f"""
        s_waitcnt lgkmcnt({5-i})
        v_cmp_gt_u32 vcc, s34, v{96+i}
        v_mov_b32 v9, s29
        v_cndmask_b32 v{64+4*i}, 0, v{64+4*i}, vcc
        v_cndmask_b32 v{65+4*i}, 0, v{65+4*i}, vcc
        v_cndmask_b32 v{66+4*i}, 0, v{66+4*i}, vcc
        v_cndmask_b32 v{67+4*i}, 0, v{67+4*i}, vcc
        v_cmp_gt_u32 vcc, s35, v{96+i}
        s_nop 1
        v_cndmask_b32 v{90+i}, v9, v{90+i}, vcc
        buffer_store_dwordx4 v[{64+4*i}:{67+4*i}], v{90+i}, s[16:19], s25 offen
        """)
    stamp_out(a, 1, 3, "k2_done")
    a.label("k2_done")
    a("s_endpgm")

def add(kernels, launches):
    a = Asm()
    gen_k2(a)
    kernels.append(("k2_kernel", a.text(), 128))
    launches.append(f"; @launch kernel=k2_kernel grid=({N_G1+N_CV},1,1) block=(256,1,1) lds={K2_LDS}")
    try:
        import gen3
        gen3.add(kernels, launches)
    except ImportError:
        pass
```

```python
import sys, re, os
VAR = os.environ.get('VAR', '').split(',')

NAME = "parallel_sum__ssm_conv_s4__dense_activation_relu__prompt"

XN_OFF  = 0x000000
XT_RS   = 4224
XT0_OFF = 0x200000
XT_SZ   = 512 * XT_RS
XT1_OFF = XT0_OFF + XT_SZ
KH_OFF  = XT1_OFF + XT_SZ
KL_OFF  = KH_OFF + 0x200000
YT_OFF  = KL_OFF + 0x200000
H_OFF   = YT_OFF + 0x200000
H_RS    = 2816
H_SZ    = 2048 * H_RS
WS_END  = H_OFF + H_SZ

class Asm:
    def __init__(self):
        self.lines = []
    def __call__(self, s):
        for l in s.strip("\n").split("\n"):
            m = re.search(r"offset:(\d+)", l)
            if m and ("buffer_" in l or "global_" in l) and int(m.group(1)) > 4095:
                raise ValueError("offset too large: " + l)
            if m and "ds_" in l and int(m.group(1)) > 65535:
                raise ValueError("ds offset too large: " + l)
            self.lines.append("    " + l.strip() if l.strip() and not l.strip().endswith(":") else l.strip())
    def label(self, l):
        self.lines.append(l + ":")
    def text(self):
        return "\n".join(self.lines) + "\n"

def srd(a, d, lo, hi, size):
    a(f"""
    s_mov_b32 s{d}, s{lo}
    s_and_b32 s{d+1}, s{hi}, 0xffff
    s_mov_b32 s{d+2}, {size:#x}
    s_mov_b32 s{d+3}, 0x00020000
    """)

def srd_off(a, d, lo, hi, off, size):
    a(f"""
    s_add_u32 s{d}, s{lo}, {off:#x}
    s_addc_u32 s{d+1}, s{hi}, 0
    s_and_b32 s{d+1}, s{d+1}, 0xffff
    s_mov_b32 s{d+2}, {size:#x}
    s_mov_b32 s{d+3}, 0x00020000
    """)

def stamp(a, i):
    if 'stamp' not in VAR: return
    a(f"s_memtime s[{60+2*i}:{61+2*i}]")
    if i == 0:
        a("s_memrealtime s[76:77]")
    a("s_waitcnt lgkmcnt(0)")

def stamp_out(a, kidx, n, lab):
    if 'stamp' not in VAR: return
    a(f"""
    s_memtime s[{60+2*n}:{61+2*n}]
    s_memrealtime s[78:79]
    s_cmp_lg_u32 s3, 0
    s_cbranch_scc1 {lab}
    s_add_u32 s80, s6, {0x4000000 + kidx*0x100000:#x}
    s_addc_u32 s81, s7, 0
    s_and_b32 s81, s81, 0xffff
    s_mov_b32 s82, 0x100000
    s_mov_b32 s83, 0x00020000
    s_lshl_b32 s84, s2, 6
    v_mov_b32 v1, 0
    s_waitcnt lgkmcnt(0)
    """)
    for i in list(range(n + 1)) + [8, 9]:
        a(f"v_mov_b32 v2, s{60+2*i}")
        a(f"buffer_store_dword v2, v1, s[80:83], s84 offen offset:{4*i}")

def rho_of_row(i):
    if i < 8: return i
    if i < 12: return 256 + 2 * (i - 8)
    if i < 16: return 512 + 4 * ((i - 12) & 1) + 256 * ((i - 12) >> 1)
    if i < 20: return 1024 + 256 * (i - 16)
    return 2048

KSTEPS = [(0, b) for b in range(8)] + [(1,0),(1,2),(1,4),(1,6),(1,1),(1,3),(2,0),(2,4),(2,1),(2,3),(3,0),(3,4),(3,1)] \
       + [(1,5),(1,7),(2,2),(2,5),(2,6),(2,7),(3,2),(3,3),(3,5),(3,6),(3,7)]
def rho_of_step(m, b):
    if m == 0 or b not in (1, 3): return 256 * m + b
    return 256 * (m + (3 if b == 1 else 6))
ROWSLOT = {rho_of_step(m, b): s for s, (m, b) in enumerate(KSTEPS[:21])}
COLSLOT = {8 * m + b: s for s, (m, b) in enumerate(KSTEPS)}

N_LN = 257
N_KG = 0
K1_LDS = 8 * 1088
LRS = 1088

def gen_k1(a):
    a.label("k1_kernel")
    a(f"""
    s_cmp_ge_u32 s2, {N_LN + N_KG}
    s_cbranch_scc1 k1_done
    v_lshrrev_b32 v1, 6, v0
    v_and_b32 v2, 63, v0              ; lane
    s_load_dwordx2 s[6:7], s[0:1], 112 ; ws
    v_readfirstlane_b32 s3, v1
    {'s_branch k1_done' if 'k1_noln' in VAR else ''}
    s_load_dwordx2 s[4:5], s[0:1], 0  ; x
    s_load_dwordx8 s[40:47], s[0:1], 8
    s_load_dwordx8 s[48:55], s[0:1], 40
    s_load_dwordx4 s[56:59], s[0:1], 80  ; w1 w2
    v_lshlrev_b32 v3, 4, v2           ; lane*16
    s_movk_i32 s22, {XT_RS}
    v_mul_lo_u32 v5, v0, s22          ; t*4224
    s_waitcnt lgkmcnt(0)
    """)
    stamp(a, 0)
    srd_off(a, 16, 6, 7, XT0_OFF, XT_SZ)
    a(f"""
    s_cmp_eq_u32 s2, 256
    s_cbranch_scc1 k1_zero
    """)
    srd(a, 8, 4, 5, 0x200000)
    srd(a, 12, 6, 7, 0x200000)
    a(f"""
    s_and_b32 s20, s2, 7
    s_lshl_b32 s20, s20, 5
    s_lshr_b32 s21, s2, 3
    s_add_u32 s20, s20, s21           ; rb
    s_lshl_b32 s21, s20, 13           ; rb*8*1024
    s_lshl_b32 s22, s3, 11
    s_add_u32 s21, s21, s22           ; + 2*wave*1024
    buffer_load_dwordx4 v[10:13], v3, s[8:11], s21 offen
    buffer_load_dwordx4 v[14:17], v3, s[8:11], s21 offen offset:1024
    """)
    NPF = 0
    if 'nopf' not in VAR:
        a(f"""
        s_lshl_b32 s22, s2, 12
        v_lshl_add_u32 v64, v0, 4, s22
        v_add_u32 v65, 0x100000, v64
        v_and_b32 v66, 127, v0
        s_lshl_b32 s22, s2, 9
        v_lshl_add_u32 v66, v66, 2, s22
        """)
        WL = [] if 'pf3' in VAR else [56] if 'pf2' in VAR else [56, 58]
        for k, lo in enumerate(WL):
            srd(a, 28, lo, lo + 1, 1376 * 1024)
            a("buffer_load_dwordx4 v[68:71], v64, s[28:31], 0 offen")
            a("buffer_load_dwordx4 v[68:71], v65, s[28:31], 0 offen")
        for lo in [40, 42, 44, 46, 48, 50]:
            srd(a, 28, lo, lo + 1, 512 * 256)
            a("buffer_load_dword v68, v66, s[28:31], 0 offen")
        NPF = 6 + 2 * len(WL)
    a(f"""
    s_mov_b32 s23, 0xffff0000
    s_mov_b32 s34, 0x3b000000         ; 1/512
    s_mov_b32 s35, 0x3727c5ac         ; 1e-5f
    s_mul_i32 s22, s3, {2*LRS}
    v_add_u32 v4, s22, v3
    v_bfe_u32 v6, v2, 2, 2
    v_mul_u32_u24 v6, {LRS}, v6
    v_lshrrev_b32 v7, 4, v0
    v_lshl_add_u32 v6, v7, 5, v6
    v_and_b32 v7, 3, v2
    v_lshl_add_u32 v6, v7, 3, v6
    s_lshl_b32 s24, s20, 4
    s_add_u32 s24, s24, 64
    s_add_u32 s25, s24, {256*XT_RS:#x}
    """)
    X = [20, 28]
    S = [36, 37]
    for r in range(2):
        a(f"s_waitcnt vmcnt({NPF+1-r})")
        for j in range(4):
            a(f"v_lshlrev_b32 v{X[r]+2*j}, 16, v{10+4*r+j}")
            a(f"v_and_b32 v{X[r]+2*j+1}, s23, v{10+4*r+j}")
        t = 40 + 4 * r
        a(f"""
        v_add_f32 v{t}, v{X[r]}, v{X[r]+1}
        v_add_f32 v{t+1}, v{X[r]+2}, v{X[r]+3}
        v_add_f32 v{t+2}, v{X[r]+4}, v{X[r]+5}
        v_add_f32 v{t+3}, v{X[r]+6}, v{X[r]+7}
        v_add_f32 v{t}, v{t}, v{t+1}
        v_add_f32 v{t+2}, v{t+2}, v{t+3}
        v_add_f32 v{S[r]}, v{t}, v{t+2}
        """)
    def wave_reduce():
        for ctrl in ["row_shr:1", "row_shr:2", "row_shr:4", "row_shr:8"]:
            for r in range(2):
                a(f"v_add_f32_dpp v{S[r]}, v{S[r]}, v{S[r]} {ctrl} row_mask:0xf bank_mask:0xf bound_ctrl:0")
            a("s_nop 0")
        for r in range(2):
            a(f"v_add_f32_dpp v{S[r]}, v{S[r]}, v{S[r]} row_bcast:15 row_mask:0xa bank_mask:0xf")
        a("s_nop 0")
        for r in range(2):
            a(f"v_add_f32_dpp v{S[r]}, v{S[r]}, v{S[r]} row_bcast:31 row_mask:0xc bank_mask:0xf")
        a("s_nop 1")
        for r in range(2):
            a(f"v_readlane_b32 s{26+r}, v{S[r]}, 63")
        a("s_nop 1")
    stamp(a, 1)
    wave_reduce()
    M = [38, 39]
    for r in range(2):
        a(f"v_mov_b32 v{M[r]}, s{26+r}")
        a(f"v_mul_f32 v{M[r]}, s34, v{M[r]}")
    for r in range(2):
        t = 40 + 10 * r
        for k in range(8):
            a(f"v_sub_f32 v{t+k}, v{X[r]+k}, v{M[r]}")
        a(f"v_mul_f32 v{S[r]}, v{t}, v{t}")
        a(f"v_mul_f32 v{t+8}, v{t+1}, v{t+1}")
        for k in range(2, 8, 2):
            a(f"v_fmac_f32 v{S[r]}, v{t+k}, v{t+k}")
            a(f"v_fmac_f32 v{t+8}, v{t+k+1}, v{t+k+1}")
        a(f"v_add_f32 v{S[r]}, v{S[r]}, v{t+8}")
    a("s_nop 1")
    wave_reduce()
    RI = [60, 61]
    for r in range(2):
        t = 40 + 4 * r
        a(f"""
        v_mov_b32 v{t}, s{26+r}
        v_mul_f32 v{t}, s34, v{t}
        v_cvt_pk_bf16_f32 v{t}, v{t}, v{t}
        v_and_b32 v{t}, s23, v{t}
        v_add_f32 v{t}, s35, v{t}
        v_cvt_pk_bf16_f32 v{t}, v{t}, v{t}
        v_and_b32 v{t}, s23, v{t}
        v_sqrt_f32 v{t+1}, v{t}
        v_cvt_pk_bf16_f32 v{M[r]}, v{M[r]}, v{M[r]}
        v_rcp_f32 v{t+2}, v{t+1}
        v_and_b32 v{M[r]}, s23, v{M[r]}
        v_fma_f32 v{t+3}, -v{t+1}, v{t+1}, v{t}
        v_mul_f32 v{t+2}, 0.5, v{t+2}
        v_fma_f32 v{t+1}, v{t+3}, v{t+2}, v{t+1}
        v_cvt_pk_bf16_f32 v{t+1}, v{t+1}, v{t+1}
        v_and_b32 v{t+1}, s23, v{t+1}
        v_rcp_f32 v{RI[r]}, v{t+1}
        """)
    for r in range(2):
        for k in range(8):
            a(f"v_sub_f32 v{X[r]+k}, v{X[r]+k}, v{M[r]}")
        for j in range(4):
            a(f"v_cvt_pk_bf16_f32 v{10+4*r+j}, v{X[r]+2*j}, v{X[r]+2*j+1}")
        for j in range(4):
            a(f"v_lshlrev_b32 v{X[r]+2*j}, 16, v{10+4*r+j}")
            a(f"v_and_b32 v{X[r]+2*j+1}, s23, v{10+4*r+j}")
        for k in range(8):
            a(f"v_mul_f32 v{X[r]+k}, v{X[r]+k}, v{RI[r]}")
        for j in range(4):
            a(f"v_cvt_pk_bf16_f32 v{10+4*r+j}, v{X[r]+2*j}, v{X[r]+2*j+1}")
        a(f"ds_write_b128 v4, v[{10+4*r}:{13+4*r}] offset:{r*LRS}")
        a(f"buffer_store_dwordx4 v[{10+4*r}:{13+4*r}], v3, s[12:15], s21 offen offset:{r*1024}")
    a("""
    s_waitcnt lgkmcnt(0)
    s_barrier
    """)
    stamp(a, 2)
    a(f"""
    ds_read_b64_tr_b16 v[20:21], v6
    ds_read_b64_tr_b16 v[22:23], v6 offset:{4*LRS}
    ds_read_b64_tr_b16 v[24:25], v6 offset:512
    ds_read_b64_tr_b16 v[26:27], v6 offset:{4*LRS+512}
    s_waitcnt lgkmcnt(2)
    buffer_store_dwordx4 v[20:23], v5, s[16:19], s24 offen
    s_waitcnt lgkmcnt(0)
    buffer_store_dwordx4 v[24:27], v5, s[16:19], s25 offen
    """)
    stamp_out(a, 0, 3, "k1_done")
    a("s_branch k1_done")
    a.label("k1_zero")
    if 'nopf' not in VAR:
        a("v_lshlrev_b32 v64, 2, v0")
        for lo in [52, 54]:
            srd(a, 28, lo, lo + 1, 1024)
            a("buffer_load_dword v68, v64, s[28:31], 0 offen")
    a(f"""
    v_mov_b32 v10, 0
    v_mov_b32 v11, 0
    v_mov_b32 v12, 0
    v_mov_b32 v13, 0
    s_mov_b32 s24, 0
    s_mov_b32 s25, {256*XT_RS:#x}
    """)
    for j in range(4):
        a(f"buffer_store_dwordx4 v[10:13], v5, s[16:19], s24 offen offset:{16*j}")
        a(f"buffer_store_dwordx4 v[10:13], v5, s[16:19], s25 offen offset:{16*j}")
    srd_off(a, 12, 6, 7, KH_OFF, 8192)
    a(f"""
    v_lshlrev_b32 v3, 3, v0
    v_sub_u32 v3, 0x7ff, v3              ; jj0 = 2047 - 8t
    s_movk_i32 s36, 0x7fff
    s_movk_i32 s37, 0x100
    s_movk_i32 s38, 0x200
    s_movk_i32 s39, 0x400
    s_mov_b32 s35, 0xffff0000
    v_mov_b32 v30, 0
    """)
    for i in range(21):
        sl = ROWSLOT[rho_of_row(i)]
        a(f"v_mov_b32 v31, {(sl >> 3) * 1024 + ((sl >> 2) & 1) * 512 + (sl & 3) * 4}")
        a(f"ds_write_b32 v30, v31 offset:{4*i}")
    for j in range(32):
        a(f"v_mov_b32 v31, {16 * COLSLOT[j]}")
        a(f"ds_write_b32 v30, v31 offset:{128 + 4*j}")
    a("s_waitcnt lgkmcnt(0)")
    for e in range(8):
        r = 20 + e
        a(f"""
        v_subrev_u32 v{r}, {e}, v3
        v_cvt_f32_u32 v{r}, v{r}
        v_bfe_u32 v7, v{r}, 16, 1
        v_add3_u32 v{r}, v{r}, v7, s36
        v_and_b32 v{r}, s35, v{r}
        v_cvt_u32_f32 v{r}, v{r}             ; r
        v_and_b32 v7, 7, v{r}                ; row (r<256)
        v_bfe_u32 v14, v{r}, 1, 2
        v_add_u32 v14, 8, v14
        v_cmp_le_u32 vcc, s37, v{r}
        v_bfe_u32 v15, v{r}, 2, 1
        v_cndmask_b32 v7, v7, v14, vcc
        v_bfe_u32 v14, v{r}, 8, 1
        v_lshl_add_u32 v14, v14, 1, v15
        v_add_u32 v14, 12, v14
        v_cmp_le_u32 vcc, s38, v{r}
        v_lshrrev_b32 v15, 8, v{r}
        v_cndmask_b32 v7, v7, v14, vcc
        v_add_u32 v15, 12, v15
        v_cmp_le_u32 vcc, s39, v{r}
        v_bfe_u32 v{r}, v{r}, 3, 5           ; col
        v_cndmask_b32 v7, v7, v15, vcc       ; row
        v_lshlrev_b32 v{r}, 2, v{r}
        v_lshlrev_b32 v7, 2, v7
        ds_read_b32 v{r}, v{r} offset:128
        ds_read_b32 v7, v7
        s_waitcnt lgkmcnt(0)
        v_add_u32 v{r}, v{r}, v7
        """)
    a(f"""
    v_lshlrev_b32 v3, 5, v0
    buffer_store_dwordx4 v[20:23], v3, s[12:15], 0 offen
    buffer_store_dwordx4 v[24:27], v3, s[12:15], 0 offen offset:16
    """)
    a("s_branch k1_done")

    a.label("k1_done")
    a("s_endpgm")

def descriptor(name, vgpr, sgpr=102):
    acc = (vgpr + 3) // 4 * 4
    return f""".amdhsa_kernel {name}
  .amdhsa_next_free_vgpr {vgpr}
  .amdhsa_next_free_sgpr {sgpr}
  .amdhsa_accum_offset {acc}
  .amdhsa_group_segment_fixed_size 0
  .amdhsa_kernarg_size 120
  .amdhsa_user_sgpr_count 2
  .amdhsa_user_sgpr_kernarg_segment_ptr 1
  .amdhsa_system_sgpr_workgroup_id_x 1
  .amdhsa_float_denorm_mode_32 3
.end_amdhsa_kernel
"""

def main():
    kernels = []
    launches = []
    a = Asm()
    gen_k1(a)
    kernels.append(("k1_kernel", a.text(), 72))
    launches.append(f"; @launch kernel=k1_kernel grid=({N_LN+N_KG},1,1) block=(256,1,1) lds={K1_LDS}")
    try:
        import gen2
        gen2.add(kernels, launches)
    except ImportError:
        pass
    hdr = open("cdna_kernels/" + NAME + ".s.ref").read().split("\n")
    out = []
    for l in hdr:
        if l.startswith("; @launch"):
            break
        out.append(l)
    out += launches
    out.append('.amdgcn_target "amdgcn-amd-amdhsa--gfx950"')
    out.append(".text")
    for name, text, vg in kernels:
        out.append(f".globl {name}")
        out.append(".p2align 8")
        out.append(f".type {name},@function")
        out.append(text)
    out.append('.section .rodata,"a"')
    for name, text, vg in kernels:
        out.append(".p2align 6")
        out.append(descriptor(name, vg))
    open(os.environ.get("OUT", "cdna_kernels/" + NAME + ".s"), "w").write("\n".join(out))

if __name__ == "__main__":
    main()
```

```python
from gen import *

N_G1 = 240
N_CV = 512
PS = int(os.environ.get('PS', '4384'))
K2_LDS = max(8 * PS + 12288 + 3072, 26880 + 26752)
UH = 0
KHL = 8 * PS

PR = [int(x) for x in os.environ.get('PR', '2,0,2,2,0,2,0,2').split(',')]
_pl = [0]
def prio2(a, pa, pb):
    if 'noprio' in VAR: return
    if pa == pb:
        a(f"s_setprio {pa}"); return
    _pl[0] += 1
    a(f"""
    s_setprio {pa}
    s_cmp_lt_u32 s20, 256
    s_cbranch_scc1 k2_pr{_pl[0]}
    s_setprio {pb}
    """)
    a.label(f"k2_pr{_pl[0]}")

def kgen(a):
    LUTB = 26752
    a(f"""
    s_load_dwordx8 s[40:47], s[0:1], 8
    s_load_dwordx4 s[48:51], s[0:1], 40
    s_load_dwordx2 s[52:53], s[0:1], 56    ; log_dt
    s_mov_b32 s20, s2                     ; d
    s_lshl_b32 s27, s20, 8                ; d*256 bytes
    s_lshl_b32 s28, s3, 6
    s_add_u32 s27, s27, s28
    v_and_b32 v4, 31, v2                  ; i / j
    v_lshrrev_b32 v6, 5, v2               ; half
    v_lshlrev_b32 v7, 1, v4
    v_add_u32 v7, s27, v7
    s_lshl_b32 s27, s20, 1
    v_mov_b32 v14, s27                    ; 2*d
    s_waitcnt lgkmcnt(0)
    global_load_ushort v80, v7, s[40:41]
    global_load_ushort v81, v7, s[42:43]
    global_load_ushort v82, v7, s[44:45]
    global_load_ushort v83, v7, s[46:47]
    global_load_ushort v84, v7, s[48:49]
    global_load_ushort v85, v7, s[50:51]
    global_load_ushort v86, v14, s[52:53]
    """)
    stamp(a, 0)
    srd_off(a, 8, 6, 7, XT0_OFF, XT_SZ)
    srd_off(a, 12, 6, 7, KH_OFF, 0x400000)
    def RA(i):
        sl = ROWSLOT[rho_of_row(i)]
        return (sl >> 3) * 1024 + ((sl >> 2) & 1) * 512 + (sl & 3) * 4
    cw = [sum(COLSLOT[4*k+j] << (8*j) for j in range(4)) for k in range(8)]
    r0 = [RA(i) for i in [0, 8, 12, 14, 16, 17, 18, 19, 20]] + [0]
    rw = [r0[2*k] | (r0[2*k+1] << 16) for k in range(5)]
    a("v_mov_b32 v30, 0")
    for k in range(8):
        a(f"v_mov_b32 v{16+k}, {cw[k]:#x}")
    a(f"ds_write_b128 v30, v[16:19] offset:{LUTB}")
    a(f"ds_write_b128 v30, v[20:23] offset:{LUTB+16}")
    for k in range(5):
        a(f"v_mov_b32 v{24+k}, {rw[k]:#x}")
    a(f"""
    ds_write_b128 v30, v[24:27] offset:{LUTB+32}
    ds_write_b32 v30, v28 offset:{LUTB+48}
    v_sub_u32 v3, 0xff, v0               ; q
    v_sub_u32 v14, 0x100, v0             ; q+1
    v_and_b32 v16, 31, v3
    v_and_b32 v17, 31, v14
    v_lshrrev_b32 v18, 5, v3
    v_lshrrev_b32 v19, 5, v14
    v_lshlrev_b32 v18, 1, v18
    v_lshlrev_b32 v19, 1, v19
    ds_read_u8 v16, v16 offset:{LUTB}
    ds_read_u16 v18, v18 offset:{LUTB+32}
    ds_read_u8 v17, v17 offset:{LUTB}
    ds_read_u16 v19, v19 offset:{LUTB+32}
    v_lshlrev_b32 v5, 4, v0              ; 16*t
    v_and_b32 v15, 1, v3
    v_lshlrev_b32 v3, 5, v0              ; 32*t
    v_cmp_eq_u32 vcc, 1, v15             ; q odd
    s_cmp_eq_u32 s3, 2
    s_waitcnt lgkmcnt(0)
    v_lshl_add_u32 v16, v16, 4, v18      ; A0
    v_lshl_add_u32 v17, v17, 4, v19      ; A1
    s_cbranch_scc1 k1_ad_w2
    s_cmp_eq_u32 s3, 3
    s_cbranch_scc1 k1_ad_w3
    """)
    M = 0xffffffff
    for i in range(8):
        e = 7 - i
        if i == 4: a(f"v_cndmask_b32 v{60+e}, v16, v17, vcc")
        else: a(f"v_mov_b32 v{60+e}, v{16 if i < 4 else 17}")
    a("s_branch k1_ad_done")
    a.label("k1_ad_w2")
    a(f"""
    v_add_u32 v18, {(RA(13) - RA(12)) & M:#x}, v16
    s_mov_b32 exec_hi, 0
    v_add_u32 v18, {(RA(15) - RA(14)) & M:#x}, v16
    s_mov_b32 exec_hi, -1
    """)
    for i in range(8):
        a(f"v_mov_b32 v{67-i}, v{[16,16,16,18,18,18,17,17][i]}")
    a("s_branch k1_ad_done")
    a.label("k1_ad_w3")
    for i in range(8):
        a(f"v_add_u32 v{67-i}, {(RA(i) - RA(0)) & M:#x}, v16")
    a("s_mov_b32 exec_hi, 0")
    for i, off in enumerate([0, 0, 2, 4, 4, 4, 6]):
        a(f"v_add_u32 v{67-i}, {(RA(8 + off // 2) - RA(8)) & M:#x}, v16")
    a("v_mov_b32 v60, v17")
    a("s_mov_b32 exec_hi, -1")
    a.label("k1_ad_done")
    a(f"""
    s_cmp_lg_u32 s2, 0
    s_cbranch_scc1 k1_kg_notab
    s_mov_b32 s24, 0x200000
    buffer_store_dwordx4 v[60:63], v3, s[12:15], s24 offen
    buffer_store_dwordx4 v[64:67], v3, s[12:15], s24 offen offset:16
    """)
    a.label("k1_kg_notab")
    TBL = KHL + 12288
    WT = 6656
    P = [None] + [92 + 2 * i for i in range(7)]
    G1, G2, G3, G6 = 106, 108, 110, 112
    A = [114, 116, 118, 120]
    M1, M3 = 122, 124
    AR = 40
    NA = [84, 85, 86, 87]
    def cmul2(d, x, y, d2, x2, y2):
        a(f"""
        v_pk_mul_f32 v[{d}:{d+1}], v[{x}:{x+1}], v[{y}:{y+1}] op_sel:[0,0] op_sel_hi:[0,1]
        v_pk_mul_f32 v[{d2}:{d2+1}], v[{x2}:{x2+1}], v[{y2}:{y2+1}] op_sel:[0,0] op_sel_hi:[0,1]
        v_pk_fma_f32 v[{d}:{d+1}], v[{x}:{x+1}], v[{y}:{y+1}], v[{d}:{d+1}] op_sel:[1,1,0] op_sel_hi:[1,0,1] neg_lo:[1,0,0]
        v_pk_fma_f32 v[{d2}:{d2+1}], v[{x2}:{x2+1}], v[{y2}:{y2+1}], v[{d2}:{d2+1}] op_sel:[1,1,0] op_sel_hi:[1,0,1] neg_lo:[1,0,0]
        """)
    a(f"""
    s_mov_b32 s54, 0
    s_mov_b32 s55, -1
    s_mul_i32 s32, s3, {WT}
    v_lshlrev_b32 v12, 12, v6
    v_add_u32 v12, s32, v12
    v_and_b32 v13, 3, v4
    v_lshl_add_u32 v12, v13, 2, v12
    v_lshrrev_b32 v13, 2, v4
    v_lshl_add_u32 v12, v13, 4, v12
    """)
    for c in range(16):
        a(f"v_xor_b32 v{AR+c}, {16*((c>>1)&7) + 128*(c&1)}, v12")
    a(f"""
    v_mov_b32 v13, s32
    v_cndmask_b32 v13, v13, 0, s[54:55]
    v_sub_u32 v56, v12, v13
    v_mov_b32 v14, 0x41000000             ; 8
    v_cndmask_b32 v12, v14, 1.0, s[54:55] ; c1
    v_cndmask_b32 v13, v14, -1.0, s[54:55] ; c1 (phase)
    v_mov_b32 v14, 0x42800000             ; 64
    v_mov_b32 v15, 0x43800000             ; 256
    v_cndmask_b32 v57, v14, v15, s[54:55] ; c2
    v_cndmask_b32 v58, v14, -v15, s[54:55] ; c2 (phase)
    s_mov_b32 s33, 0x3fb8aa3b             ; log2e
    s_mov_b32 s34, 0x3e22f983             ; 1/(2pi)
    s_mov_b32 s35, 0xffff0000
    s_mov_b32 s36, 0x0000bf80
    s_mov_b32 s37, 0x80000000
    s_waitcnt vmcnt(0)
    """)
    stamp(a, 1)
    a(f"""
    v_lshlrev_b32 v86, 16, v86
    v_mul_f32 v86, s33, v86
    v_exp_f32 v86, v86
    v_lshlrev_b32 v80, 16, v80
    v_lshlrev_b32 v81, 16, v81
    v_lshlrev_b32 v82, 16, v82
    v_lshlrev_b32 v83, 16, v83
    v_lshlrev_b32 v84, 16, v84
    v_lshlrev_b32 v85, 16, v85
    v_cvt_pk_bf16_f32 v86, v86, v86
    v_and_b32 v86, s35, v86               ; dt
    v_mul_f32 v80, v86, v80               ; lr
    v_mul_f32 v81, v86, v81               ; li
    v_mul_f32 v82, v86, v82               ; dBr
    v_mul_f32 v83, v86, v83               ; dBi
    v_mul_f32 v88, s33, v80               ; lr2
    v_mul_f32 v89, s34, v81               ; lif
    v_mul_f32 v68, v88, v12
    v_mul_f32 v69, v89, v13
    v_mul_f32 v70, v88, v57
    v_mul_f32 v71, v89, v58
    v_exp_f32 v68, v68
    v_fract_f32 v69, v69
    v_exp_f32 v70, v70
    v_fract_f32 v71, v71
    v_cos_f32 v{P[1]}, v69
    v_sin_f32 v{P[1]+1}, v69
    v_cos_f32 v{G1}, v71
    v_sin_f32 v{G1+1}, v71
    v_mul_f32 v90, v84, v82
    v_fma_f32 v90, -v85, v83, v90         ; CBr
    v_mul_f32 v91, v84, v83
    v_fma_f32 v91, v85, v82, v91          ; CBi
    v_mul_f32 v{P[1]}, v68, v{P[1]}
    v_mul_f32 v{P[1]+1}, v68, v{P[1]+1}
    v_mul_f32 v{G1}, v70, v{G1}
    v_mul_f32 v{G1+1}, v70, v{G1+1}
    v_cndmask_b32 v{A[0]}, 1.0, v90, s[54:55]
    v_cndmask_b32 v{A[0]+1}, 0, -v91, s[54:55]
    """)
    cmul2(P[2], P[1], P[1], G2, G1, G1)
    cmul2(P[3], P[2], P[1], G3, G2, G1)
    cmul2(P[4], P[2], P[2], A[1], A[0], G1)
    cmul2(P[6], P[3], P[3], G6, G3, G3)
    cmul2(P[5], P[4], P[1], A[2], A[0], G2)
    cmul2(P[7], P[4], P[3], A[3], A[0], G3)
    a(f"""
    v_cndmask_b32 v{M1}, v{P[1]}, v{G3}, s[54:55]
    v_cndmask_b32 v{M1+1}, v{P[1]+1}, v{G3+1}, s[54:55]
    v_cndmask_b32 v{M3}, v{P[3]}, v{G6}, s[54:55]
    v_cndmask_b32 v{M3+1}, v{P[3]+1}, v{G6+1}, s[54:55]
    v_xor_b32 v{NA[0]}, s37, v{A[0]+1}
    v_xor_b32 v{NA[1]}, s37, v{A[1]+1}
    v_xor_b32 v{NA[2]}, s37, v{A[2]+1}
    v_xor_b32 v{NA[3]}, s37, v{A[3]+1}
    """)
    def src_of(m, b):
        if b == 0: return None
        if m > 0 and b == 1: return M1
        if m > 0 and b == 3: return M3
        return P[b]
    def pair(p):
        pr = []
        for k in range(2):
            st_ = 2 * p + k
            m, b = KSTEPS[st_]
            pr.append((st_, m, b, 68 + 4 * ((p & 1) * 2 + k)))
        return pr
    def stA(p):
        n = 0
        for (st_, m, b, T) in pair(p):
            y = src_of(m, b)
            if y is not None:
                a(f"v_pk_mul_f32 v[{T}:{T+1}], v[{A[m]}:{A[m]+1}], v[{y}:{y+1}] op_sel:[0,0] op_sel_hi:[0,1]")
        for (st_, m, b, T) in pair(p):
            y = src_of(m, b)
            if y is not None:
                a(f"v_pk_fma_f32 v[{T}:{T+1}], v[{A[m]}:{A[m]+1}], v[{y}:{y+1}], v[{T}:{T+1}] op_sel:[1,1,0] op_sel_hi:[1,0,1] neg_lo:[1,0,0]")
        return 4
    def stB(p):
        for (st_, m, b, T) in pair(p):
            V = T if b else A[m]
            a(f"v_cvt_pk_bf16_f32 v{T+2}, v{V}, v{V+1}")
        for k, (st_, m, b, T) in enumerate(pair(p)):
            a(f"v_lshlrev_b32 v{88+2*k}, 16, v{T+2}")
            a(f"v_and_b32 v{89+2*k}, s35, v{T+2}")
        for k, (st_, m, b, T) in enumerate(pair(p)):
            V = T if b else A[m]
            a(f"v_pk_add_f32 v[{T}:{T+1}], v[{V}:{V+1}], v[{88+2*k}:{89+2*k}] neg_lo:[0,1] neg_hi:[0,1]")
    def stC(p):
        for (st_, m, b, T) in pair(p):
            a(f"v_cvt_pk_bf16_f32 v{T+3}, v{T}, v{T+1}")
        for (st_, m, b, T) in pair(p):
            if st_ == 21:
                a("s_mov_b32 exec_hi, 0")
            ar = 56 if st_ == 0 else AR + (st_ & 15)
            a(f"ds_write2st64_b32 v{ar}, v{T+2}, v{T+3} offset0:{st_>>1} offset1:{(st_>>1)+105}")
    stA(0); stB(0)
    for p in range(1, 17):
        if p < 16: stA(p)
        stC(p - 1)
        if p < 16: stB(p)
    a(f"""
    s_mov_b64 exec, -1
    v_min_u32 v12, 20, v4
    v_bfe_u32 v13, v12, 1, 3
    v_xor_b32 v13, v13, v6
    v_lshlrev_b32 v13, 4, v13
    v_lshl_add_u32 v12, v12, 7, v13
    s_add_u32 s33, s32, 4096
    v_add_u32 v44, s33, v12               ; RA[0]
    v_bfe_u32 v13, v4, 1, 3
    v_xor_b32 v13, v13, v6
    v_lshlrev_b32 v13, 4, v13
    v_lshl_add_u32 v12, v4, 7, v13
    v_mov_b32 v14, s32
    v_cmp_eq_u32 vcc, 0, v4
    v_xor_b32 v45, 32, v44
    v_cndmask_b32 v14, v14, 0, vcc
    v_add_u32 v48, v14, v12               ; RB[0]
    v_xor_b32 v46, 64, v44
    v_xor_b32 v47, 96, v44
    v_xor_b32 v49, 32, v48
    v_xor_b32 v50, 64, v48
    v_xor_b32 v51, 96, v48
    s_waitcnt lgkmcnt(0)
    """)
    stamp(a, 2)
    FR = [68 + 4 * i for i in range(15)] + [40]
    for g in range(4):
        a(f"ds_read_b128 v[{FR[4*g]}:{FR[4*g]+3}], v{44+g}")
        a(f"ds_read_b128 v[{FR[4*g+1]}:{FR[4*g+1]+3}], v{48+g} offset:26880")
        a(f"ds_read_b128 v[{FR[4*g+2]}:{FR[4*g+2]+3}], v{44+g} offset:26880")
        a(f"ds_read_b128 v[{FR[4*g+3]}:{FR[4*g+3]+3}], v{48+g}")
    KA = 16
    for g in range(4):
        AH, BL, AL, BH = FR[4*g:4*g+4]
        a(f"s_waitcnt lgkmcnt({14 - 4*g})")
        a(f"v_mfma_f32_32x32x16_bf16 v[{KA}:{KA+15}], v[{AH}:{AH+3}], v[{BL}:{BL+3}], {'0' if g == 0 else f'v[{KA}:{KA+15}]'}")
        a(f"s_waitcnt lgkmcnt({12 - 4*g})")
        a(f"v_mfma_f32_32x32x16_bf16 v[{KA}:{KA+15}], v[{AL}:{AL+3}], v[{BH}:{BH+3}], v[{KA}:{KA+15}]")
        a(f"v_mfma_f32_32x32x16_bf16 v[{KA}:{KA+15}], v[{AH}:{AH+3}], v[{BH}:{BH+3}], v[{KA}:{KA+15}]")
    a(f"""
    v_lshlrev_b32 v7, 4, v2
    v_add_u32 v7, s32, v7
    v_and_b32 v12, 3, v0
    v_mul_u32_u24 v12, 96, v12
    v_lshrrev_b32 v14, 2, v0
    v_add_u32 v12, v12, v14
    v_lshlrev_b32 v12, 4, v12             ; 16*pos(t)
    s_nop 7
    s_nop 4
    ds_write_b128 v7, v[{KA}:{KA+3}] offset:512
    ds_write_b128 v7, v[{KA+4}:{KA+7}] offset:{512+1024}
    ds_write_b128 v7, v[{KA+8}:{KA+11}] offset:{512+2048}
    s_waitcnt lgkmcnt(0)
    s_barrier
    s_cmp_eq_u32 s3, 3
    s_cbranch_scc1 k1_kg_nored
    ds_read_b128 v[16:19], v5 offset:512
    ds_read_b128 v[20:23], v5 offset:{512+WT}
    ds_read_b128 v[24:27], v5 offset:{512+2*WT}
    ds_read_b128 v[28:31], v5 offset:{512+3*WT}
    s_waitcnt lgkmcnt(0)
    v_add_f32 v16, v16, v20
    v_add_f32 v17, v17, v21
    v_add_f32 v18, v18, v22
    v_add_f32 v19, v19, v23
    v_add_f32 v24, v24, v28
    v_add_f32 v25, v25, v29
    v_add_f32 v26, v26, v30
    v_add_f32 v27, v27, v31
    v_add_f32 v16, v16, v24
    v_add_f32 v17, v17, v25
    v_add_f32 v18, v18, v26
    v_add_f32 v19, v19, v27
    ds_write_b128 v5, v[16:19] offset:{TBL}
    """)
    a("s_branch k1_kg_red")
    a.label("k1_kg_nored")
    a(f"""
    v_mov_b32 v16, 0
    v_mov_b32 v17, 0
    v_mov_b32 v18, 0
    v_mov_b32 v19, 0
    v_and_b32 v20, 3, v2
    v_lshlrev_b32 v20, 4, v20
    s_mul_i32 s23, s20, {XT_RS}
    s_add_u32 s24, s23, {256*XT_RS:#x}
    buffer_store_dwordx4 v[16:19], v20, s[8:11], s23 offen
    buffer_store_dwordx4 v[16:19], v20, s[8:11], s24 offen
    """)
    a.label("k1_kg_red")
    a(f"""
    s_lshl_b32 s24, s20, 13
    s_waitcnt lgkmcnt(0)
    s_barrier
    """)
    stamp(a, 3)
    for e in range(8):
        a(f"ds_read_b32 v{16+e}, v{60+e} offset:{TBL}")
    a("s_waitcnt lgkmcnt(0)")
    for e in range(0, 8, 2):
        a(f"v_cvt_pk_bf16_f32 v{32+e//2}, v{16+e}, v{17+e}")
    a("buffer_store_dwordx4 v[32:35], v3, s[12:15], s24 offen")
    for e in range(0, 8, 2):
        a(f"v_lshlrev_b32 v{24+e}, 16, v{32+e//2}")
        a(f"v_and_b32 v{25+e}, s35, v{32+e//2}")
    for e in range(8):
        a(f"v_sub_f32 v{16+e}, v{16+e}, v{24+e}")
    for e in range(0, 8, 2):
        a(f"v_cvt_pk_bf16_f32 v{36+e//2}, v{16+e}, v{17+e}")
    a("buffer_store_dwordx4 v[36:39], v3, s[12:15], s24 offen offset:16")
    stamp_out(a, 0, 4, "k1_done")
    a("s_branch k1_done")

def gen_k2(a):
    a.label("k2_kernel")
    a(f"""
    s_cmp_ge_u32 s2, {N_G1 + N_CV}
    s_cbranch_scc1 k2_done
    v_lshrrev_b32 v1, 6, v0
    v_and_b32 v2, 63, v0              ; lane
    s_load_dwordx2 s[6:7], s[0:1], 112 ; ws
    v_readfirstlane_b32 s3, v1
    {f's_cmp_ge_u32 s2, {N_CV}' if 'cvfirst' in VAR else f's_cmp_lt_u32 s2, {N_G1}'}
    s_cbranch_scc1 {'k2_done' if 'k2_nog1' in VAR else 'k2_gemm'}
    {'s_branch k2_done' if 'k2_nocv' in VAR else ''}
    s_cmp_ge_u32 s2, {N_G1 + 256}
    s_cbranch_scc1 k2_cvB
    s_load_dwordx2 s[4:5], s[0:1], 64 ; Dskip
    s_load_dwordx2 s[56:57], s[0:1], 88    ; w2
    s_sub_u32 s20, s2, {0 if 'cvfirst' in VAR else N_G1}         ; d
    v_and_b32 v4, 31, v2                  ; i / j
    v_lshrrev_b32 v6, 5, v2               ; half
    s_and_b32 s21, s20, 0x1fe
    s_lshl_b32 s21, s21, 1
    s_mul_i32 s23, s20, {XT_RS}       ; d*4224
    s_add_u32 s26, s23, 48            ; xn[-8]
    s_lshl_b32 s27, s20, 13           ; d*8192
    v_lshlrev_b32 v5, 4, v0           ; 16*t
    v_lshlrev_b32 v3, 5, v0           ; 32*t
    s_waitcnt lgkmcnt(0)
    s_load_dword s22, s[4:5], s21
    """)
    srd_off(a, 8, 6, 7, XT0_OFF, XT_SZ + 4096)
    srd_off(a, 12, 6, 7, KH_OFF, 0x400000)
    AS = 32
    a(f"""
    buffer_load_dwordx4 v[32:35], v5, s[8:11], s26 offen
    buffer_load_dwordx4 v[36:39], v5, s[8:11], s26 offen offset:16
    buffer_load_dwordx4 v[60:63], v3, s[12:15], s27 offen
    buffer_load_dwordx4 v[64:67], v3, s[12:15], s27 offen offset:16
    """)
    stamp(a, 0)
    prio2(a, PR[0], PR[3])
    srd_off(a, 16, 6, 7, YT_OFF, 0x200000)
    a(f"""
    v_and_b32 v15, 3, v0
    v_mul_u32_u24 v15, 96, v15
    v_lshrrev_b32 v14, 2, v0
    v_add_u32 v15, v15, v14
    v_lshlrev_b32 v15, 4, v15             ; 16*pos(t)
    v_mov_b32 v20, 0
    v_mov_b32 v21, 0
    v_mov_b32 v22, 0
    v_mov_b32 v23, 0
    s_cmp_eq_u32 s3, 3
    s_cbranch_scc1 k2_ca_zf
    s_cmp_ge_u32 s3, 2
    s_cbranch_scc1 k2_ca_nozero
    ds_write_b128 v15, v[20:23] offset:{KHL+1024}
    ds_write_b128 v15, v[20:23] offset:{KHL+6144+1024}
    s_branch k2_ca_nozero
    """)
    a.label("k2_ca_zf")
    a(f"""
    v_lshrrev_b32 v16, 3, v2
    v_min_u32 v16, 2, v16
    v_lshlrev_b32 v16, 4, v16
    v_and_b32 v17, 7, v2
    v_mov_b32 v18, {PS}
    v_mad_u32_u24 v16, v17, v18, v16
    ds_write_b128 v16, v[20:23]
    """)
    a.label("k2_ca_nozero")
    a(f"""
    s_lshl_b32 s35, s3, 4             ; c_start
    v_lshrrev_b32 v12, 3, v4
    v_add_u32 v12, v12, v6
    v_lshlrev_b32 v12, 4, v12         ; 16*((b>>3)+kg)
    v_and_b32 v13, 7, v4
    v_mov_b32 v14, {PS}
    v_mad_u32_u24 v12, v13, v14, v12
    s_lshl_b32 s36, s35, 5
    v_add_u32 v12, s36, v12
    v_mul_u32_u24 v13, 96, v6
    v_sub_u32 v13, v13, v4
    v_add_u32 v13, 31, v13
    v_lshlrev_b32 v13, 4, v13
    s_lshl_b32 s36, s35, 3            ; 16*(c/2)
    s_add_u32 s36, s36, {KHL}
    v_add_u32 v13, s36, v13           ; vB
    """)
    a("s_waitcnt vmcnt(2)")
    stamp(a, 1)
    a(f"ds_write_b128 v5, v[34:37] offset:{3*PS + 48}")
    a(f"ds_write_b128 v5, v[36:39] offset:{7*PS + 48}")
    for k in range(6):
        a(f"v_alignbit_b32 v{40+k}, v{33+k}, v{32+k}, 16")
    a(f"ds_write_b128 v5, v[40:43] offset:{0*PS + 48}")
    a(f"ds_write_b128 v5, v[42:45] offset:{4*PS + 48}")
    for k in range(6):
        a(f"v_mov_b32 v{48+k}, v{33+k}")
    a(f"ds_write_b128 v5, v[48:51] offset:{1*PS + 48}")
    a(f"ds_write_b128 v5, v[50:53] offset:{5*PS + 48}")
    for k in range(6):
        a(f"v_alignbit_b32 v{54+k}, v{34+k}, v{33+k}, 16")
    a(f"ds_write_b128 v5, v[54:57] offset:{2*PS + 48}")
    a(f"ds_write_b128 v5, v[56:59] offset:{6*PS + 48}")
    for k in range(4):
        a(f"v_mov_b32 v{8+k}, v{36+k}")
    a(f"""
    s_waitcnt vmcnt(1)
    ds_write_b128 v15, v[60:63] offset:{KHL}
    s_waitcnt vmcnt(0)
    ds_write_b128 v15, v[64:67] offset:{KHL+6144}
    """)
    stamp(a, 2)
    stamp(a, 3)
    a("s_branch k2_cv_join")
    a.label("k2_cvB")
    a(f"""
    s_load_dwordx2 s[4:5], s[0:1], 64 ; Dskip
    s_load_dwordx8 s[40:47], s[0:1], 8
    s_load_dwordx4 s[48:51], s[0:1], 40
    s_load_dwordx2 s[52:53], s[0:1], 56    ; log_dt
    s_load_dwordx2 s[56:57], s[0:1], 88    ; w2
    s_sub_u32 s20, s2, {0 if 'cvfirst' in VAR else N_G1}         ; d
    s_lshl_b32 s27, s20, 8                ; d*256 bytes
    s_lshl_b32 s28, s3, 6
    s_add_u32 s27, s27, s28
    v_and_b32 v4, 31, v2                  ; i / j
    v_lshrrev_b32 v6, 5, v2               ; half
    v_lshlrev_b32 v7, 1, v4
    v_add_u32 v7, s27, v7
    s_lshl_b32 s27, s20, 1
    v_mov_b32 v14, s27                    ; 2*d
    s_waitcnt lgkmcnt(0)
    global_load_ushort v80, v7, s[40:41]
    global_load_ushort v81, v7, s[42:43]
    global_load_ushort v82, v7, s[44:45]
    global_load_ushort v83, v7, s[46:47]
    global_load_ushort v84, v7, s[48:49]
    global_load_ushort v85, v7, s[50:51]
    global_load_ushort v86, v14, s[52:53]
    s_and_b32 s21, s20, 0x1fe
    s_lshl_b32 s21, s21, 1
    s_load_dword s22, s[4:5], s21
    """)
    stamp(a, 0)
    prio2(a, PR[0], PR[3])
    srd_off(a, 8, 6, 7, XT0_OFF, XT_SZ + 4096)
    srd_off(a, 16, 6, 7, YT_OFF, 0x200000)
    AS = 32
    srd_off(a, 12, 6, 7, KL_OFF, 8192)
    a(f"""
    s_mul_i32 s23, s20, {XT_RS}       ; d*4224
    s_add_u32 s26, s23, 48            ; xn[-8]
    v_lshlrev_b32 v5, 4, v0           ; 16*t
    v_lshlrev_b32 v3, 5, v0           ; 32*t
    buffer_load_dwordx4 v[32:35], v5, s[8:11], s26 offen
    buffer_load_dwordx4 v[36:39], v5, s[8:11], s26 offen offset:16
    buffer_load_dwordx4 v[60:63], v3, s[12:15], 0 offen
    buffer_load_dwordx4 v[64:67], v3, s[12:15], 0 offen offset:16
    """)
    TBL = KHL + 12288
    WT = 6656
    P = [None] + [92 + 2 * i for i in range(7)]
    G1, G2, G3, G6 = 106, 108, 110, 112
    A = [114, 116, 118, 120]
    M1, M3 = 122, 124
    AR = 40
    NA = [84, 85, 86, 87]
    def cmul2(d, x, y, d2, x2, y2):
        a(f"""
        v_mul_f32 v{d}, v{x}, v{y}
        v_mul_f32 v{d+1}, v{x}, v{y+1}
        v_mul_f32 v{d2}, v{x2}, v{y2}
        v_mul_f32 v{d2+1}, v{x2}, v{y2+1}
        v_fma_f32 v{d}, -v{x+1}, v{y+1}, v{d}
        v_fmac_f32 v{d+1}, v{x+1}, v{y}
        v_fma_f32 v{d2}, -v{x2+1}, v{y2+1}, v{d2}
        v_fmac_f32 v{d2+1}, v{x2+1}, v{y2}
        """)
    a(f"""
    s_mov_b32 s54, 0
    s_mov_b32 s55, -1
    s_mul_i32 s32, s3, {WT}
    v_lshlrev_b32 v12, 12, v6
    v_add_u32 v12, s32, v12
    v_and_b32 v13, 3, v4
    v_lshl_add_u32 v12, v13, 2, v12
    v_lshrrev_b32 v13, 2, v4
    v_lshl_add_u32 v12, v13, 4, v12
    """)
    for c in range(16):
        a(f"v_xor_b32 v{AR+c}, {16*((c>>1)&7) + 128*(c&1)}, v12")
    a(f"""
    v_mov_b32 v13, s32
    v_cndmask_b32 v13, v13, 0, s[54:55]
    v_sub_u32 v56, v12, v13
    v_mov_b32 v14, 0x41000000             ; 8
    v_cndmask_b32 v12, v14, 1.0, s[54:55] ; c1
    v_cndmask_b32 v13, v14, -1.0, s[54:55] ; c1 (phase)
    v_mov_b32 v14, 0x42800000             ; 64
    v_mov_b32 v15, 0x43800000             ; 256
    v_cndmask_b32 v57, v14, v15, s[54:55] ; c2
    v_cndmask_b32 v58, v14, -v15, s[54:55] ; c2 (phase)
    s_mov_b32 s33, 0x3fb8aa3b             ; log2e
    s_mov_b32 s34, 0x3e22f983             ; 1/(2pi)
    s_mov_b32 s35, 0xffff0000
    s_mov_b32 s36, 0x0000bf80
    s_mov_b32 s37, 0x80000000
    s_waitcnt vmcnt(4)
    """)
    stamp(a, 1)
    a(f"""
    v_lshlrev_b32 v86, 16, v86
    v_mul_f32 v86, s33, v86
    v_exp_f32 v86, v86
    v_lshlrev_b32 v80, 16, v80
    v_lshlrev_b32 v81, 16, v81
    v_lshlrev_b32 v82, 16, v82
    v_lshlrev_b32 v83, 16, v83
    v_lshlrev_b32 v84, 16, v84
    v_lshlrev_b32 v85, 16, v85
    v_cvt_pk_bf16_f32 v86, v86, v86
    v_and_b32 v86, s35, v86               ; dt
    v_mul_f32 v80, v86, v80               ; lr
    v_mul_f32 v81, v86, v81               ; li
    v_mul_f32 v82, v86, v82               ; dBr
    v_mul_f32 v83, v86, v83               ; dBi
    v_mul_f32 v88, s33, v80               ; lr2
    v_mul_f32 v89, s34, v81               ; lif
    v_mul_f32 v68, v88, v12
    v_mul_f32 v69, v89, v13
    v_mul_f32 v70, v88, v57
    v_mul_f32 v71, v89, v58
    v_exp_f32 v68, v68
    v_fract_f32 v69, v69
    v_exp_f32 v70, v70
    v_fract_f32 v71, v71
    v_cos_f32 v{P[1]}, v69
    v_sin_f32 v{P[1]+1}, v69
    v_cos_f32 v{G1}, v71
    v_sin_f32 v{G1+1}, v71
    v_mul_f32 v90, v84, v82
    v_fma_f32 v90, -v85, v83, v90         ; CBr
    v_mul_f32 v91, v84, v83
    v_fma_f32 v91, v85, v82, v91          ; CBi
    v_mul_f32 v{P[1]}, v68, v{P[1]}
    v_mul_f32 v{P[1]+1}, v68, v{P[1]+1}
    v_mul_f32 v{G1}, v70, v{G1}
    v_mul_f32 v{G1+1}, v70, v{G1+1}
    v_cndmask_b32 v{A[0]}, 1.0, v90, s[54:55]
    v_cndmask_b32 v{A[0]+1}, 0, -v91, s[54:55]
    """)
    cmul2(P[2], P[1], P[1], G2, G1, G1)
    cmul2(P[3], P[2], P[1], G3, G2, G1)
    cmul2(P[4], P[2], P[2], A[1], A[0], G1)
    cmul2(P[6], P[3], P[3], G6, G3, G3)
    cmul2(P[5], P[4], P[1], A[2], A[0], G2)
    cmul2(P[7], P[4], P[3], A[3], A[0], G3)
    a(f"""
    v_cndmask_b32 v{M1}, v{P[1]}, v{G3}, s[54:55]
    v_cndmask_b32 v{M1+1}, v{P[1]+1}, v{G3+1}, s[54:55]
    v_cndmask_b32 v{M3}, v{P[3]}, v{G6}, s[54:55]
    v_cndmask_b32 v{M3+1}, v{P[3]+1}, v{G6+1}, s[54:55]
    v_xor_b32 v{NA[0]}, s37, v{A[0]+1}
    v_xor_b32 v{NA[1]}, s37, v{A[1]+1}
    v_xor_b32 v{NA[2]}, s37, v{A[2]+1}
    v_xor_b32 v{NA[3]}, s37, v{A[3]+1}
    """)
    def src_of(m, b):
        if b == 0: return None
        if m > 0 and b == 1: return M1
        if m > 0 and b == 3: return M3
        return P[b]
    def pair(p):
        pr = []
        for k in range(2):
            st_ = 2 * p + k
            m, b = KSTEPS[st_]
            pr.append((st_, m, b, 68 + 4 * ((p & 1) * 2 + k)))
        return pr
    def stA(p):
        n = 0
        for (st_, m, b, T) in pair(p):
            y = src_of(m, b)
            if y is not None:
                a(f"v_mul_f32 v{T}, v{A[m]}, v{y}")
                a(f"v_mul_f32 v{T+1}, v{A[m]}, v{y+1}"); n += 2
        for (st_, m, b, T) in pair(p):
            y = src_of(m, b)
            if y is not None:
                a(f"v_fmac_f32 v{T}, v{NA[m]}, v{y+1}")
                a(f"v_fmac_f32 v{T+1}, v{A[m]+1}, v{y}"); n += 2
        return 4
    def stB(p):
        for (st_, m, b, T) in pair(p):
            V = T if b else A[m]
            a(f"v_cvt_pk_bf16_f32 v{T+2}, v{V}, v{V+1}")
        for k, (st_, m, b, T) in enumerate(pair(p)):
            a(f"v_lshlrev_b32 v{88+2*k}, 16, v{T+2}")
            a(f"v_and_b32 v{89+2*k}, s35, v{T+2}")
        for k, (st_, m, b, T) in enumerate(pair(p)):
            V = T if b else A[m]
            a(f"v_sub_f32 v{T}, v{V}, v{88+2*k}")
            a(f"v_sub_f32 v{T+1}, v{V+1}, v{89+2*k}")
    def stC(p):
        for (st_, m, b, T) in pair(p):
            a(f"v_cvt_pk_bf16_f32 v{T+3}, v{T}, v{T+1}")
        for (st_, m, b, T) in pair(p):
            if st_ == 21:
                a("s_mov_b32 exec_hi, 0")
            ar = 56 if st_ == 0 else AR + (st_ & 15)
            a(f"ds_write2st64_b32 v{ar}, v{T+2}, v{T+3} offset0:{st_>>1} offset1:{(st_>>1)+105}")
    stA(0); stB(0)
    for p in range(1, 17):
        if p < 16: stA(p)
        stC(p - 1)
        if p < 16: stB(p)
    a(f"""
    s_mov_b64 exec, -1
    v_min_u32 v12, 20, v4
    v_bfe_u32 v13, v12, 1, 3
    v_xor_b32 v13, v13, v6
    v_lshlrev_b32 v13, 4, v13
    v_lshl_add_u32 v12, v12, 7, v13
    s_add_u32 s33, s32, 4096
    v_add_u32 v44, s33, v12               ; RA[0]
    v_bfe_u32 v13, v4, 1, 3
    v_xor_b32 v13, v13, v6
    v_lshlrev_b32 v13, 4, v13
    v_lshl_add_u32 v12, v4, 7, v13
    v_mov_b32 v14, s32
    v_cmp_eq_u32 vcc, 0, v4
    v_xor_b32 v45, 32, v44
    v_cndmask_b32 v14, v14, 0, vcc
    v_add_u32 v48, v14, v12               ; RB[0]
    v_xor_b32 v46, 64, v44
    v_xor_b32 v47, 96, v44
    v_xor_b32 v49, 32, v48
    v_xor_b32 v50, 64, v48
    v_xor_b32 v51, 96, v48
    s_waitcnt lgkmcnt(0)
    """)
    stamp(a, 2)
    FR = [68 + 4 * i for i in range(15)] + [40]
    for g in range(4):
        a(f"ds_read_b128 v[{FR[4*g]}:{FR[4*g]+3}], v{44+g}")
        a(f"ds_read_b128 v[{FR[4*g+1]}:{FR[4*g+1]+3}], v{48+g} offset:26880")
        a(f"ds_read_b128 v[{FR[4*g+2]}:{FR[4*g+2]+3}], v{44+g} offset:26880")
        a(f"ds_read_b128 v[{FR[4*g+3]}:{FR[4*g+3]+3}], v{48+g}")
    KA = 16
    for g in range(4):
        AH, BL, AL, BH = FR[4*g:4*g+4]
        a(f"s_waitcnt lgkmcnt({14 - 4*g})")
        a(f"v_mfma_f32_32x32x16_bf16 v[{KA}:{KA+15}], v[{AH}:{AH+3}], v[{BL}:{BL+3}], {'0' if g == 0 else f'v[{KA}:{KA+15}]'}")
        a(f"s_waitcnt lgkmcnt({12 - 4*g})")
        a(f"v_mfma_f32_32x32x16_bf16 v[{KA}:{KA+15}], v[{AL}:{AL+3}], v[{BH}:{BH+3}], v[{KA}:{KA+15}]")
        a(f"v_mfma_f32_32x32x16_bf16 v[{KA}:{KA+15}], v[{AH}:{AH+3}], v[{BH}:{BH+3}], v[{KA}:{KA+15}]")
    a(f"""
    v_lshlrev_b32 v7, 4, v2
    v_add_u32 v7, s32, v7
    v_and_b32 v12, 3, v0
    v_mul_u32_u24 v12, 96, v12
    v_lshrrev_b32 v14, 2, v0
    v_add_u32 v12, v12, v14
    v_lshlrev_b32 v12, 4, v12             ; 16*pos(t)
    s_nop 7
    s_nop 4
    ds_write_b128 v7, v[{KA}:{KA+3}] offset:512
    ds_write_b128 v7, v[{KA+4}:{KA+7}] offset:{512+1024}
    ds_write_b128 v7, v[{KA+8}:{KA+11}] offset:{512+2048}
    s_waitcnt lgkmcnt(0)
    s_barrier
    s_cmp_eq_u32 s3, 3
    s_cbranch_scc1 k2_cv_nored
    ds_read_b128 v[16:19], v5 offset:512
    ds_read_b128 v[20:23], v5 offset:{512+WT}
    ds_read_b128 v[24:27], v5 offset:{512+2*WT}
    ds_read_b128 v[28:31], v5 offset:{512+3*WT}
    s_waitcnt lgkmcnt(0)
    v_add_f32 v16, v16, v20
    v_add_f32 v17, v17, v21
    v_add_f32 v18, v18, v22
    v_add_f32 v19, v19, v23
    v_add_f32 v24, v24, v28
    v_add_f32 v25, v25, v29
    v_add_f32 v26, v26, v30
    v_add_f32 v27, v27, v31
    v_add_f32 v16, v16, v24
    v_add_f32 v17, v17, v25
    v_add_f32 v18, v18, v26
    v_add_f32 v19, v19, v27
    ds_write_b128 v5, v[16:19] offset:{TBL}
    """)
    a.label("k2_cv_nored")
    a("s_waitcnt vmcnt(0)")
    for k in range(6):
        a(f"v_alignbit_b32 v{40+k}, v{33+k}, v{32+k}, 16")
        a(f"v_mov_b32 v{48+k}, v{33+k}")
        a(f"v_alignbit_b32 v{54+k}, v{34+k}, v{33+k}, 16")
    for k in range(4):
        a(f"v_mov_b32 v{8+k}, v{36+k}")
    a(f"""
    s_waitcnt lgkmcnt(0)
    s_barrier
    """)
    stamp(a, 3)
    for e in range(8):
        a(f"ds_read_b32 v{16+e}, v{60+e} offset:{TBL}")
    for sidx, r in enumerate([40, 48, 54, 34, 42, 50, 56, 36]):
        a(f"ds_write_b128 v5, v[{r}:{r+3}] offset:{sidx*PS + 48}")
    a(f"""
    v_mov_b32 v40, 0
    v_mov_b32 v41, 0
    v_mov_b32 v42, 0
    v_mov_b32 v43, 0
    s_waitcnt lgkmcnt(8)
    """)
    for e in range(0, 8, 2):
        a(f"v_cvt_pk_bf16_f32 v{32+e//2}, v{16+e}, v{17+e}")
    for e in range(0, 8, 2):
        a(f"v_lshlrev_b32 v{24+e}, 16, v{32+e//2}")
        a(f"v_and_b32 v{25+e}, s35, v{32+e//2}")
    for e in range(8):
        a(f"v_sub_f32 v{16+e}, v{16+e}, v{24+e}")
    for e in range(0, 8, 2):
        a(f"v_cvt_pk_bf16_f32 v{36+e//2}, v{16+e}, v{17+e}")
    a(f"""
    ds_write_b128 v12, v[32:35] offset:{KHL}
    ds_write_b128 v12, v[36:39] offset:{KHL+6144}
    s_cmp_eq_u32 s3, 3
    s_cbranch_scc1 k2_cv_zf
    s_cmp_ge_u32 s3, 2
    s_cbranch_scc1 k2_cv_nozero
    ds_write_b128 v12, v[40:43] offset:{KHL+1024}
    ds_write_b128 v12, v[40:43] offset:{KHL+6144+1024}
    s_branch k2_cv_nozero
    """)
    a.label("k2_cv_zf")
    a(f"""
    v_lshrrev_b32 v16, 3, v2
    v_min_u32 v16, 2, v16
    v_lshlrev_b32 v16, 4, v16
    v_and_b32 v17, 7, v2
    v_mov_b32 v18, {PS}
    v_mad_u32_u24 v16, v17, v18, v16
    ds_write_b128 v16, v[40:43]
    """)
    a.label("k2_cv_nozero")
    a(f"""
    s_lshl_b32 s35, s3, 4             ; c_start
    v_lshrrev_b32 v12, 3, v4
    v_add_u32 v12, v12, v6
    v_lshlrev_b32 v12, 4, v12         ; 16*((b>>3)+kg)
    v_and_b32 v13, 7, v4
    v_mov_b32 v14, {PS}
    v_mad_u32_u24 v12, v13, v14, v12
    s_lshl_b32 s36, s35, 5
    v_add_u32 v12, s36, v12
    v_mul_u32_u24 v13, 96, v6
    v_sub_u32 v13, v13, v4
    v_add_u32 v13, 31, v13
    v_lshlrev_b32 v13, 4, v13
    s_lshl_b32 s36, s35, 3            ; 16*(c/2)
    s_add_u32 s36, s36, {KHL}
    v_add_u32 v13, s36, v13           ; vB
    """)
    a.label("k2_cv_join")
    ACC1, ACC2, ACC0, ACC3 = 16, 16, 48, 48
    first = set()
    F = [80, 104]
    a("""
    s_waitcnt vmcnt(0) lgkmcnt(0)
    s_barrier
    """)
    stamp(a, 4)
    prio2(a, PR[1], PR[4])
    if 'nopf' not in VAR and 'pf1' not in VAR:
        srd(a, 56, 56, 57, 1376 * 1024)
        a("""
        s_lshl_b32 s36, s20, 12
        v_add_u32 v72, s36, v5
        buffer_load_dwordx4 v[68:71], v72, s[56:59], 0 offen
        """)
    def mf(acc, A, B):
        c = f"v[{acc}:{acc+15}]" if acc in first else "0"
        first.add(acc)
        a(f"v_mfma_f32_32x32x16_bf16 v[{acc}:{acc+15}], v[{A}:{A+3}], v[{B}:{B+3}], {c}")
    def rd(dst, base, off):
        a(f"ds_read_b128 v[{dst}:{dst+3}], v{base} offset:{off}")
    def boff(c):
        return 16 * (c // 2) + 3072 * (c & 1)
    def ch_reads(c, f):
        rd(f, 12, AS * c)
        rd(f + 4, 13, boff(c))
        rd(f + 8, 13, boff(c + 64))
        rd(f + 12, 13, boff(c) + 6144)
        rd(f + 16, 13, boff(c + 64) + 6144)
        rd(f + 20, 12, AS * (c + 64))
    def ch_mfma(f, last):
        base = 0 if last else 6
        a(f"s_waitcnt lgkmcnt({base + 4})")
        mf(ACC1, f, f + 4)
        a(f"s_waitcnt lgkmcnt({base + 3})")
        mf(ACC0, f, f + 8)
        a(f"s_waitcnt lgkmcnt({base + 2})")
        mf(ACC2, f, f + 12)
        a(f"s_waitcnt lgkmcnt({base + 1})")
        mf(ACC3, f, f + 16)
        a(f"s_waitcnt lgkmcnt({base})")
        mf(ACC1, f + 20, f + 8)
        mf(ACC2, f + 20, f + 16)
    ch_reads(0, F[0])
    for c in range(16):
        if c < 15:
            ch_reads(c + 1, F[(c + 1) & 1])
        ch_mfma(F[c & 1], c == 15)
    a.label("k2_cv_fin")
    stamp(a, 5)
    prio2(a, PR[2], PR[5])
    a(f"""
    s_waitcnt lgkmcnt(0)
    s_nop 7
    s_nop 7
    """)
    a(f"""
    s_barrier
    v_mul_u32_u24 v14, 144, v4
    v_lshl_add_u32 v14, v6, 4, v14     ; a_l*144 + 16h
    s_mul_i32 s36, s3, 4608
    v_add_u32 v14, s36, v14
    """)
    for q in range(4):
        a(f"ds_write_b128 v14, v[{ACC1+4*q}:{ACC1+4*q+3}] offset:{32*q}")
    for q in range(4):
        a(f"ds_write_b128 v14, v[{ACC0+4*q}:{ACC0+4*q+3}] offset:{32*q + 4*4608}")
    a(f"""
    v_lshrrev_b32 v14, 2, v0
    v_and_b32 v14, 31, v14
    v_mul_u32_u24 v14, 144, v14
    v_and_b32 v15, 3, v0
    v_lshl_add_u32 v14, v15, 5, v14    ; a_l*144 + sub*32
    s_cmp_lt_u32 s3, 2
    s_cselect_b32 s36, {4*4608}, 0
    v_add_u32 v14, s36, v14
    s_waitcnt lgkmcnt(0)
    s_barrier
    """)
    for s in range(4):
        a(f"ds_read_b128 v[{16+8*s}:{19+8*s}], v14 offset:{s*4608}")
        a(f"ds_read_b128 v[{20+8*s}:{23+8*s}], v14 offset:{s*4608+16}")
    a("s_waitcnt lgkmcnt(0)")
    for i in range(8):
        a(f"v_add_f32 v{16+i}, v{16+i}, v{40+i}")
    a(f"""
    s_waitcnt lgkmcnt(0)
    s_and_b32 s21, s20, 1
    s_lshl_b32 s21, s21, 4
    s_lshr_b32 s22, s22, s21
    s_lshl_b32 s22, s22, 16
    s_mov_b32 s23, 0xffff0000
    s_lshl_b32 s24, s20, 12
    """)
    for i in range(8):
        a(f"v_add_f32 v{24+i}, v{24+i}, v{32+i}")
    for i in range(8):
        a(f"v_add_f32 v{16+i}, v{16+i}, v{24+i}")
    for j in range(4):
        a(f"""
        v_cvt_pk_bf16_f32 v24, v{16+2*j}, v{17+2*j}
        v_lshlrev_b32 v25, 16, v{8+j}
        v_and_b32 v26, s23, v{8+j}
        v_mul_f32 v25, s22, v25
        v_mul_f32 v26, s22, v26
        v_cvt_pk_bf16_f32 v27, v25, v26
        v_lshlrev_b32 v25, 16, v24
        v_and_b32 v26, s23, v24
        v_lshlrev_b32 v28, 16, v27
        v_and_b32 v29, s23, v27
        v_add_f32 v25, v25, v28
        v_add_f32 v26, v26, v29
        v_cvt_pk_bf16_f32 v{32+j}, v25, v26
        """)
    a(f"""
    buffer_store_dwordx4 v[32:35], v5, s[16:19], s24 offen
    """)
    stamp_out(a, 1, 6, "k2_done")
    a("s_branch k2_done")

    a.label("k2_gemm")
    a(f"""
    s_load_dwordx2 s[4:5], s[0:1], 80 ; w1
    s_and_b32 s20, s2, 15             ; mt
    s_sub_u32 s21, s2, {N_CV if 'cvfirst' in VAR else 0}
    s_lshr_b32 s21, s21, 4             ; nt
    s_waitcnt lgkmcnt(0)
    """)
    stamp(a, 0)
    prio2(a, PR[6], PR[6])
    srd(a, 8, 6, 7, 0x200000)
    srd(a, 12, 4, 5, 512 * 2752)
    srd_off(a, 16, 6, 7, H_OFF, H_SZ)
    ST = 14336
    a(f"""
    v_lshrrev_b32 v3, 2, v2
    s_lshl_b32 s22, s3, 5
    v_add_u32 v3, s22, v3              ; row = 32w + (l>>2)
    v_lshlrev_b32 v3, 10, v3
    v_lshrrev_b32 v4, 4, v2
    v_xor_b32 v4, v4, v2
    v_and_b32 v4, 3, v4
    v_lshl_add_u32 v3, v4, 4, v3       ; voffA
    s_mul_i32 s22, s3, 96
    v_add_u32 v4, s22, v2              ; P = 96w + l
    v_add_u32 v5, 64, v4
    s_movk_i32 s23, 5462               ; 65536/12
    s_movk_i32 s24, 2752
    v_mul_u32_u24 v6, s23, v4
    v_lshrrev_b32 v6, 16, v6           ; row
    v_mul_u32_u24 v7, 12, v6
    v_sub_u32 v4, v4, v7               ; cc
    v_lshlrev_b32 v4, 4, v4
    v_mad_u32_u24 v4, v6, s24, v4      ; voffB0
    v_mul_u32_u24 v6, s23, v5
    v_lshrrev_b32 v6, 16, v6
    v_mul_u32_u24 v7, 12, v6
    v_sub_u32 v5, v5, v7
    v_lshlrev_b32 v5, 4, v5
    v_mad_u32_u24 v5, v6, s24, v5      ; voffB1
    s_lshl_b32 s25, s20, 17
    s_mul_i32 s26, s21, 192
    s_lshl_b32 s27, s3, 11             ; m0 A = 2048w
    s_mul_i32 s28, s3, 1536
    s_add_u32 s28, s28, 8192           ; m0 B
    s_mov_b64 s[30:31], -1
    s_mov_b32 s32, -1
    s_mov_b32 s33, 0
    """)
    def dma(kc):
        st = (kc % 3) * ST
        a(f"""
        s_add_u32 m0, s27, {st}
        s_add_u32 s29, s25, {kc*64 + 16384}
        buffer_load_dwordx4 v3, s[8:11], s25 offen offset:{0} lds
        s_add_u32 m0, s27, {st + 1024}
        s_nop 0
        buffer_load_dwordx4 v3, s[8:11], s29 offen lds
        s_add_u32 m0, s28, {st}
        s_nop 0
        buffer_load_dwordx4 v4, s[12:15], s26 offen lds
        s_add_u32 m0, s28, {st + 1024}
        s_mov_b64 exec, s[32:33]
        buffer_load_dwordx4 v5, s[12:15], s26 offen lds
        s_mov_b64 exec, s[30:31]
        s_add_u32 s25, s25, 64
        s_add_u32 s26, s26, {32*2752}
        """)
    a(f"""
    v_and_b32 v6, 31, v2               ; m
    v_lshrrev_b32 v7, 5, v2            ; kg / h
    s_lshl_b32 s22, s3, 5
    v_add_u32 v8, s22, v6
    v_lshlrev_b32 v8, 6, v8            ; row*64
    v_lshrrev_b32 v9, 2, v6
    v_and_b32 v9, 3, v9                ; (row>>2)&3
    v_xor_b32 v10, v9, v7
    v_lshl_add_u32 v10, v10, 4, v8     ; vAr0
    v_xor_b32 v11, 2, v9
    v_xor_b32 v11, v11, v7
    v_lshl_add_u32 v11, v11, 4, v8
    v_lshlrev_b32 v12, 3, v7           ; 8*kg
    v_bfe_u32 v13, v2, 2, 2
    v_add_u32 v12, v12, v13
    v_mul_u32_u24 v12, 192, v12
    v_bfe_u32 v13, v2, 4, 1
    v_lshl_add_u32 v12, v13, 5, v12    ; + 32*((l>>4)&1)
    v_and_b32 v13, 3, v2
    v_lshl_add_u32 v12, v13, 3, v12    ; + 8*(l&3)
    v_add_u32 v12, 8192, v12           ; vBr
    """)
    ACC = 16
    for i in range(48):
        a(f"v_mov_b32 v{ACC+i}, 0")
    return_dma = dma
    def dma2(kc):
        st = (kc % 3) * ST
        a(f"""
        s_add_u32 m0, s27, {st}
        s_add_u32 s29, s25, 0x4000
        buffer_load_dwordx4 v3, s[8:11], s25 offen lds
        s_add_u32 m0, s27, {st + 1024}
        s_add_u32 s25, s25, 64
        buffer_load_dwordx4 v3, s[8:11], s29 offen lds
        s_add_u32 m0, s28, {st}
        s_nop 0
        buffer_load_dwordx4 v4, s[12:15], s26 offen lds
        s_add_u32 m0, s28, {st + 1024}
        s_mov_b64 exec, s[32:33]
        buffer_load_dwordx4 v5, s[12:15], s26 offen lds
        s_mov_b64 exec, s[30:31]
        s_add_u32 s26, s26, {32*2752}
        """)
    dma2(0); dma2(1)
    FA = 64
    FB = 72
    for kc in range(16):
        st = (kc % 3) * ST
        a(f"s_waitcnt vmcnt({4 if kc < 15 else 0})")
        a("s_barrier")
        if kc == 0: stamp(a, 1)
        if kc + 2 < 16:
            dma2(kc + 2)
        for ks in range(2):
            a(f"ds_read_b128 v[{FA+4*ks}:{FA+4*ks+3}], v{10+ks} offset:{st}")
            for j in range(3):
                b = FB + 12 * ks + 4 * j
                off = st + ks * 16 * 192 + 64 * j
                a(f"ds_read_b64_tr_b16 v[{b}:{b+1}], v12 offset:{off}")
                a(f"ds_read_b64_tr_b16 v[{b+2}:{b+3}], v12 offset:{off + 4*192}")
        for ks in range(2):
            for j in range(3):
                left = (1 - ks) * 7 + (2 - j) * 2
                a(f"s_waitcnt lgkmcnt({left})")
                b = FB + 12 * ks + 4 * j
                a(f"v_mfma_f32_32x32x16_bf16 v[{ACC+16*j}:{ACC+16*j+15}], v[{b}:{b+3}], v[{FA+4*ks}:{FA+4*ks+3}], v[{ACC+16*j}:{ACC+16*j+15}]")
    stamp(a, 2)
    prio2(a, PR[7], PR[7])
    a(f"""
    s_barrier
    s_lshl_b32 s22, s3, 5
    v_add_u32 v8, s22, v6
    v_mul_u32_u24 v8, 208, v8
    v_lshl_add_u32 v8, v7, 3, v8       ; row*208 + 8h
    s_nop 7
    s_nop 3
    """)
    for j in range(3):
        for q in range(4):
            r = ACC + 16 * j + 4 * q
            a(f"""
            v_max_f32 v{r}, 0, v{r}
            v_max_f32 v{r+1}, 0, v{r+1}
            v_max_f32 v{r+2}, 0, v{r+2}
            v_max_f32 v{r+3}, 0, v{r+3}
            v_cvt_pk_bf16_f32 v{r}, v{r}, v{r+1}
            v_cvt_pk_bf16_f32 v{r+1}, v{r+2}, v{r+3}
            ds_write_b64 v8, v[{r}:{r+1}] offset:{64*j + 16*q}
            """)
    a(f"""
    s_mul_i32 s22, s3, {32*208}
    s_lshl_b32 s25, s20, 7
    s_lshl_b32 s26, s3, 5
    s_add_u32 s25, s25, s26
    s_mul_i32 s25, s25, {H_RS}
    s_mul_i32 s26, s21, 192
    s_add_u32 s25, s25, s26
    s_mul_i32 s26, s21, 96
    s_movk_i32 s27, {H_RS}
    s_movk_i32 s28, 208
    s_mov_b32 s29, 0x40000000
    s_movk_i32 s34, 1376
    s_movk_i32 s35, 1408
    s_waitcnt lgkmcnt(0)
    """)
    for i in range(6):
        a(f"""
        v_add_u32 v9, {64*i}, v2
        v_mul_u32_u24 v10, s23, v9
        v_lshrrev_b32 v10, 16, v10         ; row
        v_mul_u32_u24 v11, 12, v10
        v_sub_u32 v9, v9, v11              ; cc
        v_lshlrev_b32 v11, 4, v9
        v_mad_u32_u24 v12, v10, s28, v11
        v_add_u32 v12, s22, v12
        ds_read_b128 v[{64+4*i}:{67+4*i}], v12
        v_mad_u32_u24 v{90+i}, v10, s27, v11
        v_lshl_add_u32 v{96+i}, v9, 3, s26 ; col
        """)
    for i in range(6):
        a(f"""
        s_waitcnt lgkmcnt({5-i})
        v_cmp_gt_u32 vcc, s34, v{96+i}
        v_mov_b32 v9, s29
        v_cndmask_b32 v{64+4*i}, 0, v{64+4*i}, vcc
        v_cndmask_b32 v{65+4*i}, 0, v{65+4*i}, vcc
        v_cndmask_b32 v{66+4*i}, 0, v{66+4*i}, vcc
        v_cndmask_b32 v{67+4*i}, 0, v{67+4*i}, vcc
        v_cmp_gt_u32 vcc, s35, v{96+i}
        s_nop 1
        v_cndmask_b32 v{90+i}, v9, v{90+i}, vcc
        buffer_store_dwordx4 v[{64+4*i}:{67+4*i}], v{90+i}, s[16:19], s25 offen
        """)
    stamp_out(a, 1, 3, "k2_done")
    a.label("k2_done")
    a("s_endpgm")

def add(kernels, launches):
    a = Asm()
    gen_k2(a)
    kernels.append(("k2_kernel", a.text(), 128))
    launches.append(f"; @launch kernel=k2_kernel grid=({N_G1+N_CV},1,1) block=(256,1,1) lds={K2_LDS}")
    try:
        import gen3
        gen3.add(kernels, launches)
    except ImportError:
        pass
```

```python
import sys, re, os
VAR = os.environ.get('VAR', '').split(',')

NAME = "parallel_sum__ssm_conv_s4__dense_activation_relu__prompt"

XN_OFF  = 0x000000
XT_RS   = 4224
XT0_OFF = 0x200000
XT_SZ   = 512 * XT_RS
XT1_OFF = XT0_OFF + XT_SZ
KH_OFF  = XT1_OFF + XT_SZ
KL_OFF  = KH_OFF + 0x200000
YT_OFF  = KL_OFF + 0x200000
H_OFF   = YT_OFF + 0x200000
H_RS    = 2816
H_SZ    = 2048 * H_RS
WS_END  = H_OFF + H_SZ

class Asm:
    def __init__(self):
        self.lines = []
    def __call__(self, s):
        for l in s.strip("\n").split("\n"):
            m = re.search(r"offset:(\d+)", l)
            if m and ("buffer_" in l or "global_" in l) and int(m.group(1)) > 4095:
                raise ValueError("offset too large: " + l)
            if m and "ds_" in l and int(m.group(1)) > 65535:
                raise ValueError("ds offset too large: " + l)
            self.lines.append("    " + l.strip() if l.strip() and not l.strip().endswith(":") else l.strip())
    def label(self, l):
        self.lines.append(l + ":")
    def text(self):
        return "\n".join(self.lines) + "\n"

def srd(a, d, lo, hi, size):
    a(f"""
    s_mov_b32 s{d}, s{lo}
    s_and_b32 s{d+1}, s{hi}, 0xffff
    s_mov_b32 s{d+2}, {size:#x}
    s_mov_b32 s{d+3}, 0x00020000
    """)

def srd_off(a, d, lo, hi, off, size):
    a(f"""
    s_add_u32 s{d}, s{lo}, {off:#x}
    s_addc_u32 s{d+1}, s{hi}, 0
    s_and_b32 s{d+1}, s{d+1}, 0xffff
    s_mov_b32 s{d+2}, {size:#x}
    s_mov_b32 s{d+3}, 0x00020000
    """)

def stamp(a, i):
    if 'stamp' not in VAR: return
    a(f"s_memtime s[{60+2*i}:{61+2*i}]")
    if i == 0:
        a("s_memrealtime s[76:77]")
    a("s_waitcnt lgkmcnt(0)")

def stamp_out(a, kidx, n, lab):
    if 'stamp' not in VAR: return
    a(f"""
    s_memtime s[{60+2*n}:{61+2*n}]
    s_memrealtime s[78:79]
    s_cmp_lg_u32 s3, 0
    s_cbranch_scc1 {lab}
    s_add_u32 s80, s6, {0x4000000 + kidx*0x100000:#x}
    s_addc_u32 s81, s7, 0
    s_and_b32 s81, s81, 0xffff
    s_mov_b32 s82, 0x100000
    s_mov_b32 s83, 0x00020000
    s_lshl_b32 s84, s2, 6
    v_mov_b32 v1, 0
    s_waitcnt lgkmcnt(0)
    """)
    for i in list(range(n + 1)) + [8, 9]:
        a(f"v_mov_b32 v2, s{60+2*i}")
        a(f"buffer_store_dword v2, v1, s[80:83], s84 offen offset:{4*i}")

def rho_of_row(i):
    if i < 8: return i
    if i < 12: return 256 + 2 * (i - 8)
    if i < 16: return 512 + 4 * ((i - 12) & 1) + 256 * ((i - 12) >> 1)
    if i < 20: return 1024 + 256 * (i - 16)
    return 2048

KSTEPS = [(0, b) for b in range(8)] + [(1,0),(1,2),(1,4),(1,6),(1,1),(1,3),(2,0),(2,4),(2,1),(2,3),(3,0),(3,4),(3,1)] \
       + [(1,5),(1,7),(2,2),(2,5),(2,6),(2,7),(3,2),(3,3),(3,5),(3,6),(3,7)]
def rho_of_step(m, b):
    if m == 0 or b not in (1, 3): return 256 * m + b
    return 256 * (m + (3 if b == 1 else 6))
ROWSLOT = {rho_of_step(m, b): s for s, (m, b) in enumerate(KSTEPS[:21])}
COLSLOT = {8 * m + b: s for s, (m, b) in enumerate(KSTEPS)}

N_LN = 256
N_KG = 256
K1_LDS = 53632
LRS = 1088

def gen_k1(a):
    a.label("k1_kernel")
    a(f"""
    s_cmp_ge_u32 s2, {N_LN + N_KG}
    s_cbranch_scc1 k1_done
    v_lshrrev_b32 v1, 6, v0
    v_and_b32 v2, 63, v0              ; lane
    s_load_dwordx2 s[6:7], s[0:1], 112 ; ws
    v_readfirstlane_b32 s3, v1
    s_cmp_lt_u32 s2, {N_KG}
    s_cbranch_scc1 k1_kg
    {'s_branch k1_done' if 'k1_noln' in VAR else ''}
    s_load_dwordx2 s[4:5], s[0:1], 0  ; x
    s_load_dwordx8 s[40:47], s[0:1], 8
    s_load_dwordx4 s[48:51], s[0:1], 40
    v_lshlrev_b32 v3, 4, v2           ; lane*16
    s_movk_i32 s22, {XT_RS}
    v_mul_lo_u32 v5, v0, s22          ; t*4224
    s_waitcnt lgkmcnt(0)
    """)
    stamp(a, 0)
    srd_off(a, 16, 6, 7, XT0_OFF, XT_SZ)
    srd(a, 8, 4, 5, 0x200000)
    srd(a, 12, 6, 7, 0x200000)
    a(f"""
    s_and_b32 s20, s2, 7
    s_lshl_b32 s20, s20, 5
    s_sub_u32 s21, s2, {N_KG}
    s_lshr_b32 s21, s21, 3
    s_add_u32 s20, s20, s21           ; rb
    s_lshl_b32 s21, s20, 13           ; rb*8*1024
    s_lshl_b32 s22, s3, 11
    s_add_u32 s21, s21, s22           ; + 2*wave*1024
    buffer_load_dwordx4 v[10:13], v3, s[8:11], s21 offen
    buffer_load_dwordx4 v[14:17], v3, s[8:11], s21 offen offset:1024
    """)
    NPF = 0
    if 'nopf' not in VAR:
        a(f"""
        s_lshl_b32 s22, s2, 8                ; (256 + i) * 256
        v_lshl_add_u32 v66, v2, 2, s22
        """)
        for lo in [40, 42, 44, 46, 48, 50]:
            srd(a, 28, lo, lo + 1, 512 * 256)
            a("buffer_load_dword v68, v66, s[28:31], 0 offen")
        NPF = 6
    a(f"""
    s_mov_b32 s23, 0xffff0000
    s_mov_b32 s34, 0x3b000000         ; 1/512
    s_mov_b32 s35, 0x3727c5ac         ; 1e-5f
    s_mul_i32 s22, s3, {2*LRS}
    v_add_u32 v4, s22, v3
    v_bfe_u32 v6, v2, 2, 2
    v_mul_u32_u24 v6, {LRS}, v6
    v_lshrrev_b32 v7, 4, v0
    v_lshl_add_u32 v6, v7, 5, v6
    v_and_b32 v7, 3, v2
    v_lshl_add_u32 v6, v7, 3, v6
    s_lshl_b32 s24, s20, 4
    s_add_u32 s24, s24, 64
    s_add_u32 s25, s24, {256*XT_RS:#x}
    """)
    X = [20, 28]
    S = [36, 37]
    for r in range(2):
        a(f"s_waitcnt vmcnt({NPF+1-r})")
        for j in range(4):
            a(f"v_lshlrev_b32 v{X[r]+2*j}, 16, v{10+4*r+j}")
            a(f"v_and_b32 v{X[r]+2*j+1}, s23, v{10+4*r+j}")
        t = 40 + 4 * r
        a(f"""
        v_add_f32 v{t}, v{X[r]}, v{X[r]+1}
        v_add_f32 v{t+1}, v{X[r]+2}, v{X[r]+3}
        v_add_f32 v{t+2}, v{X[r]+4}, v{X[r]+5}
        v_add_f32 v{t+3}, v{X[r]+6}, v{X[r]+7}
        v_add_f32 v{t}, v{t}, v{t+1}
        v_add_f32 v{t+2}, v{t+2}, v{t+3}
        v_add_f32 v{S[r]}, v{t}, v{t+2}
        """)
    def wave_reduce():
        for ctrl in ["row_shr:1", "row_shr:2", "row_shr:4", "row_shr:8"]:
            for r in range(2):
                a(f"v_add_f32_dpp v{S[r]}, v{S[r]}, v{S[r]} {ctrl} row_mask:0xf bank_mask:0xf bound_ctrl:0")
            a("s_nop 0")
        for r in range(2):
            a(f"v_add_f32_dpp v{S[r]}, v{S[r]}, v{S[r]} row_bcast:15 row_mask:0xa bank_mask:0xf")
        a("s_nop 0")
        for r in range(2):
            a(f"v_add_f32_dpp v{S[r]}, v{S[r]}, v{S[r]} row_bcast:31 row_mask:0xc bank_mask:0xf")
        a("s_nop 1")
        for r in range(2):
            a(f"v_readlane_b32 s{26+r}, v{S[r]}, 63")
        a("s_nop 1")
    stamp(a, 1)
    wave_reduce()
    M = [38, 39]
    for r in range(2):
        a(f"v_mov_b32 v{M[r]}, s{26+r}")
        a(f"v_mul_f32 v{M[r]}, s34, v{M[r]}")
    for r in range(2):
        t = 40 + 10 * r
        for k in range(8):
            a(f"v_sub_f32 v{t+k}, v{X[r]+k}, v{M[r]}")
        a(f"v_mul_f32 v{S[r]}, v{t}, v{t}")
        a(f"v_mul_f32 v{t+8}, v{t+1}, v{t+1}")
        for k in range(2, 8, 2):
            a(f"v_fmac_f32 v{S[r]}, v{t+k}, v{t+k}")
            a(f"v_fmac_f32 v{t+8}, v{t+k+1}, v{t+k+1}")
        a(f"v_add_f32 v{S[r]}, v{S[r]}, v{t+8}")
    a("s_nop 1")
    wave_reduce()
    RI = [60, 61]
    for r in range(2):
        t = 40 + 4 * r
        a(f"""
        v_mov_b32 v{t}, s{26+r}
        v_mul_f32 v{t}, s34, v{t}
        v_cvt_pk_bf16_f32 v{t}, v{t}, v{t}
        v_and_b32 v{t}, s23, v{t}
        v_add_f32 v{t}, s35, v{t}
        v_cvt_pk_bf16_f32 v{t}, v{t}, v{t}
        v_and_b32 v{t}, s23, v{t}
        v_sqrt_f32 v{t+1}, v{t}
        v_cvt_pk_bf16_f32 v{M[r]}, v{M[r]}, v{M[r]}
        v_rcp_f32 v{t+2}, v{t+1}
        v_and_b32 v{M[r]}, s23, v{M[r]}
        v_fma_f32 v{t+3}, -v{t+1}, v{t+1}, v{t}
        v_mul_f32 v{t+2}, 0.5, v{t+2}
        v_fma_f32 v{t+1}, v{t+3}, v{t+2}, v{t+1}
        v_cvt_pk_bf16_f32 v{t+1}, v{t+1}, v{t+1}
        v_and_b32 v{t+1}, s23, v{t+1}
        v_rcp_f32 v{RI[r]}, v{t+1}
        """)
    for r in range(2):
        for k in range(8):
            a(f"v_sub_f32 v{X[r]+k}, v{X[r]+k}, v{M[r]}")
        for j in range(4):
            a(f"v_cvt_pk_bf16_f32 v{10+4*r+j}, v{X[r]+2*j}, v{X[r]+2*j+1}")
        for j in range(4):
            a(f"v_lshlrev_b32 v{X[r]+2*j}, 16, v{10+4*r+j}")
            a(f"v_and_b32 v{X[r]+2*j+1}, s23, v{10+4*r+j}")
        for k in range(8):
            a(f"v_mul_f32 v{X[r]+k}, v{X[r]+k}, v{RI[r]}")
        for j in range(4):
            a(f"v_cvt_pk_bf16_f32 v{10+4*r+j}, v{X[r]+2*j}, v{X[r]+2*j+1}")
        a(f"ds_write_b128 v4, v[{10+4*r}:{13+4*r}] offset:{r*LRS}")
        a(f"buffer_store_dwordx4 v[{10+4*r}:{13+4*r}], v3, s[12:15], s21 offen offset:{r*1024}")
    a("""
    s_waitcnt lgkmcnt(0)
    s_barrier
    """)
    stamp(a, 2)
    a(f"""
    ds_read_b64_tr_b16 v[20:21], v6
    ds_read_b64_tr_b16 v[22:23], v6 offset:{4*LRS}
    ds_read_b64_tr_b16 v[24:25], v6 offset:512
    ds_read_b64_tr_b16 v[26:27], v6 offset:{4*LRS+512}
    s_waitcnt lgkmcnt(2)
    buffer_store_dwordx4 v[20:23], v5, s[16:19], s24 offen
    s_waitcnt lgkmcnt(0)
    buffer_store_dwordx4 v[24:27], v5, s[16:19], s25 offen
    """)
    stamp_out(a, 0, 3, "k1_done")
    a("s_branch k1_done")
    a.label("k1_kg")
    import gen2
    gen2.kgen(a)
    a.label("k1_done")
    a("s_endpgm")

def descriptor(name, vgpr, sgpr=102):
    acc = (vgpr + 3) // 4 * 4
    return f""".amdhsa_kernel {name}
  .amdhsa_next_free_vgpr {vgpr}
  .amdhsa_next_free_sgpr {sgpr}
  .amdhsa_accum_offset {acc}
  .amdhsa_group_segment_fixed_size 0
  .amdhsa_kernarg_size 120
  .amdhsa_user_sgpr_count 2
  .amdhsa_user_sgpr_kernarg_segment_ptr 1
  .amdhsa_system_sgpr_workgroup_id_x 1
  .amdhsa_float_denorm_mode_32 3
.end_amdhsa_kernel
"""

def main():
    kernels = []
    launches = []
    a = Asm()
    gen_k1(a)
    kernels.append(("k1_kernel", a.text(), 128))
    launches.append(f"; @launch kernel=k1_kernel grid=({N_LN+N_KG},1,1) block=(256,1,1) lds={K1_LDS}")
    try:
        import gen2
        gen2.add(kernels, launches)
    except ImportError:
        pass
    hdr = open("cdna_kernels/" + NAME + ".s.ref").read().split("\n")
    out = []
    for l in hdr:
        if l.startswith("; @launch"):
            break
        out.append(l)
    out += launches
    out.append('.amdgcn_target "amdgcn-amd-amdhsa--gfx950"')
    out.append(".text")
    for name, text, vg in kernels:
        out.append(f".globl {name}")
        out.append(".p2align 8")
        out.append(f".type {name},@function")
        out.append(text)
    out.append('.section .rodata,"a"')
    for name, text, vg in kernels:
        out.append(".p2align 6")
        out.append(descriptor(name, vg))
    open(os.environ.get("OUT", "cdna_kernels/" + NAME + ".s"), "w").write("\n".join(out))

if __name__ == "__main__":
    main()
```

```python
from gen import *

N_G1 = 240
N_CV = 512
PS = int(os.environ.get('PS', '4384'))
K2_LDS = max(8 * PS + 12288 + 3072, 26880 + 26752)
UH = 0
KHL = 8 * PS

PR = [int(x) for x in os.environ.get('PR', '2,0,2,2,0,2,0,2').split(',')]
_pl = [0]
def prio2(a, pa, pb):
    if 'noprio' in VAR: return
    if pa == pb:
        a(f"s_setprio {pa}"); return
    _pl[0] += 1
    a(f"""
    s_setprio {pa}
    s_cmp_lt_u32 s20, 256
    s_cbranch_scc1 k2_pr{_pl[0]}
    s_setprio {pb}
    """)
    a.label(f"k2_pr{_pl[0]}")

def kgen(a):
    LUTB = 26752
    a(f"""
    s_load_dwordx8 s[40:47], s[0:1], 8
    s_load_dwordx4 s[48:51], s[0:1], 40
    s_load_dwordx2 s[52:53], s[0:1], 56    ; log_dt
    s_mov_b32 s20, s2                     ; d
    s_lshl_b32 s27, s20, 8                ; d*256 bytes
    s_lshl_b32 s28, s3, 6
    s_add_u32 s27, s27, s28
    v_and_b32 v4, 31, v2                  ; i / j
    v_lshrrev_b32 v6, 5, v2               ; half
    v_lshlrev_b32 v7, 1, v4
    v_add_u32 v7, s27, v7
    s_lshl_b32 s27, s20, 1
    v_mov_b32 v14, s27                    ; 2*d
    s_waitcnt lgkmcnt(0)
    global_load_ushort v80, v7, s[40:41]
    global_load_ushort v81, v7, s[42:43]
    global_load_ushort v82, v7, s[44:45]
    global_load_ushort v83, v7, s[46:47]
    global_load_ushort v84, v7, s[48:49]
    global_load_ushort v85, v7, s[50:51]
    global_load_ushort v86, v14, s[52:53]
    """)
    stamp(a, 0)
    srd_off(a, 8, 6, 7, XT0_OFF, XT_SZ)
    srd_off(a, 12, 6, 7, KH_OFF, 0x400000)
    def RA(i):
        sl = ROWSLOT[rho_of_row(i)]
        return (sl >> 3) * 1024 + ((sl >> 2) & 1) * 512 + (sl & 3) * 4
    cw = [sum(COLSLOT[4*k+j] << (8*j) for j in range(4)) for k in range(8)]
    r0 = [RA(i) for i in [0, 8, 12, 14, 16, 17, 18, 19, 20]] + [0]
    rw = [r0[2*k] | (r0[2*k+1] << 16) for k in range(5)]
    a("v_mov_b32 v30, 0")
    for k in range(8):
        a(f"v_mov_b32 v{16+k}, {cw[k]:#x}")
    a(f"ds_write_b128 v30, v[16:19] offset:{LUTB}")
    a(f"ds_write_b128 v30, v[20:23] offset:{LUTB+16}")
    for k in range(5):
        a(f"v_mov_b32 v{24+k}, {rw[k]:#x}")
    a(f"""
    ds_write_b128 v30, v[24:27] offset:{LUTB+32}
    ds_write_b32 v30, v28 offset:{LUTB+48}
    v_sub_u32 v3, 0xff, v0               ; q
    v_sub_u32 v14, 0x100, v0             ; q+1
    v_and_b32 v16, 31, v3
    v_and_b32 v17, 31, v14
    v_lshrrev_b32 v18, 5, v3
    v_lshrrev_b32 v19, 5, v14
    v_lshlrev_b32 v18, 1, v18
    v_lshlrev_b32 v19, 1, v19
    ds_read_u8 v16, v16 offset:{LUTB}
    ds_read_u16 v18, v18 offset:{LUTB+32}
    ds_read_u8 v17, v17 offset:{LUTB}
    ds_read_u16 v19, v19 offset:{LUTB+32}
    v_lshlrev_b32 v5, 4, v0              ; 16*t
    v_and_b32 v15, 1, v3
    v_lshlrev_b32 v3, 5, v0              ; 32*t
    v_cmp_eq_u32 vcc, 1, v15             ; q odd
    s_cmp_eq_u32 s3, 2
    s_waitcnt lgkmcnt(0)
    v_lshl_add_u32 v16, v16, 4, v18      ; A0
    v_lshl_add_u32 v17, v17, 4, v19      ; A1
    s_cbranch_scc1 k1_ad_w2
    s_cmp_eq_u32 s3, 3
    s_cbranch_scc1 k1_ad_w3
    """)
    M = 0xffffffff
    for i in range(8):
        e = 7 - i
        if i == 4: a(f"v_cndmask_b32 v{60+e}, v16, v17, vcc")
        else: a(f"v_mov_b32 v{60+e}, v{16 if i < 4 else 17}")
    a("s_branch k1_ad_done")
    a.label("k1_ad_w2")
    a(f"""
    v_add_u32 v18, {(RA(13) - RA(12)) & M:#x}, v16
    s_mov_b32 exec_hi, 0
    v_add_u32 v18, {(RA(15) - RA(14)) & M:#x}, v16
    s_mov_b32 exec_hi, -1
    """)
    for i in range(8):
        a(f"v_mov_b32 v{67-i}, v{[16,16,16,18,18,18,17,17][i]}")
    a("s_branch k1_ad_done")
    a.label("k1_ad_w3")
    for i in range(8):
        a(f"v_add_u32 v{67-i}, {(RA(i) - RA(0)) & M:#x}, v16")
    a("s_mov_b32 exec_hi, 0")
    for i, off in enumerate([0, 0, 2, 4, 4, 4, 6]):
        a(f"v_add_u32 v{67-i}, {(RA(8 + off // 2) - RA(8)) & M:#x}, v16")
    a("v_mov_b32 v60, v17")
    a("s_mov_b32 exec_hi, -1")
    a.label("k1_ad_done")
    a(f"""
    s_cmp_lg_u32 s2, 0
    s_cbranch_scc1 k1_kg_notab
    {'s_branch k1_kg_notab' if N_KG == 512 else ''}
    """)
    srd_off(a, 28, 6, 7, TB_OFF, 0x8000)
    a(f"""
    v_mov_b32 v16, 0
    v_mov_b32 v17, 0
    v_mov_b32 v18, 0
    v_mov_b32 v19, 0
    s_movk_i32 s24, 0x4000
    buffer_store_dwordx4 v[60:63], v3, s[28:31], 0 offen
    buffer_store_dwordx4 v[64:67], v3, s[28:31], 0 offen offset:16
    buffer_store_dwordx4 v[16:19], v5, s[28:31], s24 offen
    """)
    a.label("k1_kg_notab")
    TBL = KHL + 12288
    WT = 6656
    P = [None] + [92 + 2 * i for i in range(7)]
    G1, G2, G3, G6 = 106, 108, 110, 112
    A = [114, 116, 118, 120]
    M1, M3 = 122, 124
    AR = 40
    NA = [84, 85, 86, 87]
    def cmul2(d, x, y, d2, x2, y2):
        a(f"""
        v_pk_mul_f32 v[{d}:{d+1}], v[{x}:{x+1}], v[{y}:{y+1}] op_sel:[0,0] op_sel_hi:[0,1]
        v_pk_mul_f32 v[{d2}:{d2+1}], v[{x2}:{x2+1}], v[{y2}:{y2+1}] op_sel:[0,0] op_sel_hi:[0,1]
        v_pk_fma_f32 v[{d}:{d+1}], v[{x}:{x+1}], v[{y}:{y+1}], v[{d}:{d+1}] op_sel:[1,1,0] op_sel_hi:[1,0,1] neg_lo:[1,0,0]
        v_pk_fma_f32 v[{d2}:{d2+1}], v[{x2}:{x2+1}], v[{y2}:{y2+1}], v[{d2}:{d2+1}] op_sel:[1,1,0] op_sel_hi:[1,0,1] neg_lo:[1,0,0]
        """)
    a(f"""
    s_mov_b32 s54, 0
    s_mov_b32 s55, -1
    s_mul_i32 s32, s3, {WT}
    v_lshlrev_b32 v12, 12, v6
    v_add_u32 v12, s32, v12
    v_and_b32 v13, 3, v4
    v_lshl_add_u32 v12, v13, 2, v12
    v_lshrrev_b32 v13, 2, v4
    v_lshl_add_u32 v12, v13, 4, v12
    """)
    for c in range(16):
        a(f"v_xor_b32 v{AR+c}, {16*((c>>1)&7) + 128*(c&1)}, v12")
    a(f"""
    v_mov_b32 v13, s32
    v_cndmask_b32 v13, v13, 0, s[54:55]
    v_sub_u32 v56, v12, v13
    v_mov_b32 v14, 0x41000000             ; 8
    v_cndmask_b32 v12, v14, 1.0, s[54:55] ; c1
    v_cndmask_b32 v13, v14, -1.0, s[54:55] ; c1 (phase)
    v_mov_b32 v14, 0x42800000             ; 64
    v_mov_b32 v15, 0x43800000             ; 256
    v_cndmask_b32 v57, v14, v15, s[54:55] ; c2
    v_cndmask_b32 v58, v14, -v15, s[54:55] ; c2 (phase)
    s_mov_b32 s33, 0x3fb8aa3b             ; log2e
    s_mov_b32 s34, 0x3e22f983             ; 1/(2pi)
    s_mov_b32 s35, 0xffff0000
    s_mov_b32 s36, 0x0000bf80
    s_mov_b32 s37, 0x80000000
    s_waitcnt vmcnt(0)
    """)
    stamp(a, 1)
    a(f"""
    v_lshlrev_b32 v86, 16, v86
    v_mul_f32 v86, s33, v86
    v_exp_f32 v86, v86
    v_lshlrev_b32 v80, 16, v80
    v_lshlrev_b32 v81, 16, v81
    v_lshlrev_b32 v82, 16, v82
    v_lshlrev_b32 v83, 16, v83
    v_lshlrev_b32 v84, 16, v84
    v_lshlrev_b32 v85, 16, v85
    v_cvt_pk_bf16_f32 v86, v86, v86
    v_and_b32 v86, s35, v86               ; dt
    v_mul_f32 v80, v86, v80               ; lr
    v_mul_f32 v81, v86, v81               ; li
    v_mul_f32 v82, v86, v82               ; dBr
    v_mul_f32 v83, v86, v83               ; dBi
    v_mul_f32 v88, s33, v80               ; lr2
    v_mul_f32 v89, s34, v81               ; lif
    v_mul_f32 v68, v88, v12
    v_mul_f32 v69, v89, v13
    v_mul_f32 v70, v88, v57
    v_mul_f32 v71, v89, v58
    v_exp_f32 v68, v68
    v_fract_f32 v69, v69
    v_exp_f32 v70, v70
    v_fract_f32 v71, v71
    v_cos_f32 v{P[1]}, v69
    v_sin_f32 v{P[1]+1}, v69
    v_cos_f32 v{G1}, v71
    v_sin_f32 v{G1+1}, v71
    v_mul_f32 v90, v84, v82
    v_fma_f32 v90, -v85, v83, v90         ; CBr
    v_mul_f32 v91, v84, v83
    v_fma_f32 v91, v85, v82, v91          ; CBi
    v_mul_f32 v{P[1]}, v68, v{P[1]}
    v_mul_f32 v{P[1]+1}, v68, v{P[1]+1}
    v_mul_f32 v{G1}, v70, v{G1}
    v_mul_f32 v{G1+1}, v70, v{G1+1}
    v_cndmask_b32 v{A[0]}, 1.0, v90, s[54:55]
    v_cndmask_b32 v{A[0]+1}, 0, -v91, s[54:55]
    """)
    cmul2(P[2], P[1], P[1], G2, G1, G1)
    cmul2(P[3], P[2], P[1], G3, G2, G1)
    cmul2(P[4], P[2], P[2], A[1], A[0], G1)
    cmul2(P[6], P[3], P[3], G6, G3, G3)
    cmul2(P[5], P[4], P[1], A[2], A[0], G2)
    cmul2(P[7], P[4], P[3], A[3], A[0], G3)
    a(f"""
    v_cndmask_b32 v{M1}, v{P[1]}, v{G3}, s[54:55]
    v_cndmask_b32 v{M1+1}, v{P[1]+1}, v{G3+1}, s[54:55]
    v_cndmask_b32 v{M3}, v{P[3]}, v{G6}, s[54:55]
    v_cndmask_b32 v{M3+1}, v{P[3]+1}, v{G6+1}, s[54:55]
    v_xor_b32 v{NA[0]}, s37, v{A[0]+1}
    v_xor_b32 v{NA[1]}, s37, v{A[1]+1}
    v_xor_b32 v{NA[2]}, s37, v{A[2]+1}
    v_xor_b32 v{NA[3]}, s37, v{A[3]+1}
    """)
    def src_of(m, b):
        if b == 0: return None
        if m > 0 and b == 1: return M1
        if m > 0 and b == 3: return M3
        return P[b]
    def pair(p):
        pr = []
        for k in range(2):
            st_ = 2 * p + k
            m, b = KSTEPS[st_]
            pr.append((st_, m, b, 68 + 4 * ((p & 1) * 2 + k)))
        return pr
    def stA(p):
        n = 0
        for (st_, m, b, T) in pair(p):
            y = src_of(m, b)
            if y is not None:
                a(f"v_pk_mul_f32 v[{T}:{T+1}], v[{A[m]}:{A[m]+1}], v[{y}:{y+1}] op_sel:[0,0] op_sel_hi:[0,1]")
        for (st_, m, b, T) in pair(p):
            y = src_of(m, b)
            if y is not None:
                a(f"v_pk_fma_f32 v[{T}:{T+1}], v[{A[m]}:{A[m]+1}], v[{y}:{y+1}], v[{T}:{T+1}] op_sel:[1,1,0] op_sel_hi:[1,0,1] neg_lo:[1,0,0]")
        return 4
    def stB(p):
        for (st_, m, b, T) in pair(p):
            V = T if b else A[m]
            a(f"v_cvt_pk_bf16_f32 v{T+2}, v{V}, v{V+1}")
        for k, (st_, m, b, T) in enumerate(pair(p)):
            a(f"v_lshlrev_b32 v{88+2*k}, 16, v{T+2}")
            a(f"v_and_b32 v{89+2*k}, s35, v{T+2}")
        for k, (st_, m, b, T) in enumerate(pair(p)):
            V = T if b else A[m]
            a(f"v_pk_add_f32 v[{T}:{T+1}], v[{V}:{V+1}], v[{88+2*k}:{89+2*k}] neg_lo:[0,1] neg_hi:[0,1]")
    def stC(p):
        for (st_, m, b, T) in pair(p):
            a(f"v_cvt_pk_bf16_f32 v{T+3}, v{T}, v{T+1}")
        for (st_, m, b, T) in pair(p):
            if st_ == 21:
                a("s_mov_b32 exec_hi, 0")
            ar = 56 if st_ == 0 else AR + (st_ & 15)
            a(f"ds_write2st64_b32 v{ar}, v{T+2}, v{T+3} offset0:{st_>>1} offset1:{(st_>>1)+105}")
    stA(0); stB(0)
    for p in range(1, 17):
        if p < 16: stA(p)
        stC(p - 1)
        if p < 16: stB(p)
    a(f"""
    s_mov_b64 exec, -1
    v_min_u32 v12, 20, v4
    v_bfe_u32 v13, v12, 1, 3
    v_xor_b32 v13, v13, v6
    v_lshlrev_b32 v13, 4, v13
    v_lshl_add_u32 v12, v12, 7, v13
    s_add_u32 s33, s32, 4096
    v_add_u32 v44, s33, v12               ; RA[0]
    v_bfe_u32 v13, v4, 1, 3
    v_xor_b32 v13, v13, v6
    v_lshlrev_b32 v13, 4, v13
    v_lshl_add_u32 v12, v4, 7, v13
    v_mov_b32 v14, s32
    v_cmp_eq_u32 vcc, 0, v4
    v_xor_b32 v45, 32, v44
    v_cndmask_b32 v14, v14, 0, vcc
    v_add_u32 v48, v14, v12               ; RB[0]
    v_xor_b32 v46, 64, v44
    v_xor_b32 v47, 96, v44
    v_xor_b32 v49, 32, v48
    v_xor_b32 v50, 64, v48
    v_xor_b32 v51, 96, v48
    s_waitcnt lgkmcnt(0)
    """)
    stamp(a, 2)
    FR = [68 + 4 * i for i in range(15)] + [40]
    for g in range(4):
        a(f"ds_read_b128 v[{FR[4*g]}:{FR[4*g]+3}], v{44+g}")
        a(f"ds_read_b128 v[{FR[4*g+1]}:{FR[4*g+1]+3}], v{48+g} offset:26880")
        a(f"ds_read_b128 v[{FR[4*g+2]}:{FR[4*g+2]+3}], v{44+g} offset:26880")
        a(f"ds_read_b128 v[{FR[4*g+3]}:{FR[4*g+3]+3}], v{48+g}")
    KA = 16
    for g in range(4):
        AH, BL, AL, BH = FR[4*g:4*g+4]
        a(f"s_waitcnt lgkmcnt({14 - 4*g})")
        a(f"v_mfma_f32_32x32x16_bf16 v[{KA}:{KA+15}], v[{AH}:{AH+3}], v[{BL}:{BL+3}], {'0' if g == 0 else f'v[{KA}:{KA+15}]'}")
        a(f"s_waitcnt lgkmcnt({12 - 4*g})")
        a(f"v_mfma_f32_32x32x16_bf16 v[{KA}:{KA+15}], v[{AL}:{AL+3}], v[{BH}:{BH+3}], v[{KA}:{KA+15}]")
        a(f"v_mfma_f32_32x32x16_bf16 v[{KA}:{KA+15}], v[{AH}:{AH+3}], v[{BH}:{BH+3}], v[{KA}:{KA+15}]")
    a(f"""
    v_lshlrev_b32 v7, 4, v2
    v_add_u32 v7, s32, v7
    v_and_b32 v12, 3, v0
    v_mul_u32_u24 v12, 96, v12
    v_lshrrev_b32 v14, 2, v0
    v_add_u32 v12, v12, v14
    v_lshlrev_b32 v12, 4, v12             ; 16*pos(t)
    s_nop 7
    s_nop 4
    ds_write_b128 v7, v[{KA}:{KA+3}] offset:512
    ds_write_b128 v7, v[{KA+4}:{KA+7}] offset:{512+1024}
    ds_write_b128 v7, v[{KA+8}:{KA+11}] offset:{512+2048}
    s_waitcnt lgkmcnt(0)
    s_barrier
    s_cmp_eq_u32 s3, 3
    s_cbranch_scc1 k1_kg_nored
    ds_read_b128 v[16:19], v5 offset:512
    ds_read_b128 v[20:23], v5 offset:{512+WT}
    ds_read_b128 v[24:27], v5 offset:{512+2*WT}
    ds_read_b128 v[28:31], v5 offset:{512+3*WT}
    s_waitcnt lgkmcnt(0)
    v_add_f32 v16, v16, v20
    v_add_f32 v17, v17, v21
    v_add_f32 v18, v18, v22
    v_add_f32 v19, v19, v23
    v_add_f32 v24, v24, v28
    v_add_f32 v25, v25, v29
    v_add_f32 v26, v26, v30
    v_add_f32 v27, v27, v31
    v_add_f32 v16, v16, v24
    v_add_f32 v17, v17, v25
    v_add_f32 v18, v18, v26
    v_add_f32 v19, v19, v27
    ds_write_b128 v5, v[16:19] offset:{TBL}
    """)
    a("s_branch k1_kg_red")
    a.label("k1_kg_nored")
    a(f"""
    v_mov_b32 v16, 0
    v_mov_b32 v17, 0
    v_mov_b32 v18, 0
    v_mov_b32 v19, 0
    v_and_b32 v20, 3, v2
    v_lshlrev_b32 v20, 4, v20
    s_mul_i32 s23, s20, {XT_RS}
    s_add_u32 s24, s23, {256*XT_RS:#x}
    buffer_store_dwordx4 v[16:19], v20, s[8:11], s23 offen
    {'buffer_store_dwordx4 v[16:19], v20, s[8:11], s24 offen' if N_KG == 256 else ''}
    """)
    a.label("k1_kg_red")
    a(f"""
    s_lshl_b32 s24, s20, 13
    s_waitcnt lgkmcnt(0)
    s_barrier
    """)
    stamp(a, 3)
    for e in range(8):
        a(f"ds_read_b32 v{16+e}, v{60+e} offset:{TBL}")
    a("s_waitcnt lgkmcnt(0)")
    for e in range(0, 8, 2):
        a(f"v_cvt_pk_bf16_f32 v{32+e//2}, v{16+e}, v{17+e}")
    a("buffer_store_dwordx4 v[32:35], v3, s[12:15], s24 offen")
    for e in range(0, 8, 2):
        a(f"v_lshlrev_b32 v{24+e}, 16, v{32+e//2}")
        a(f"v_and_b32 v{25+e}, s35, v{32+e//2}")
    for e in range(8):
        a(f"v_sub_f32 v{16+e}, v{16+e}, v{24+e}")
    for e in range(0, 8, 2):
        a(f"v_cvt_pk_bf16_f32 v{36+e//2}, v{16+e}, v{17+e}")
    a("buffer_store_dwordx4 v[36:39], v3, s[12:15], s24 offen offset:16")
    stamp_out(a, 0, 4, "k1_done")
    a("s_branch k1_done")

def gen_k2(a, k3=False):
    if not k3:
        a.label("k2_kernel")
        a(f"""
    s_cmp_ge_u32 s2, {N_G1 + N_CV}
    s_cbranch_scc1 k2_done
    v_lshrrev_b32 v1, 6, v0
    v_and_b32 v2, 63, v0              ; lane
    s_load_dwordx2 s[6:7], s[0:1], 112 ; ws
    v_readfirstlane_b32 s3, v1
    {f's_cmp_ge_u32 s2, {N_CV}' if 'cvfirst' in VAR else f's_cmp_lt_u32 s2, {N_G1}'}
    s_cbranch_scc1 {'k2_done' if 'k2_nog1' in VAR else 'k2_gemm'}
    {'s_branch k2_done' if 'k2_nocv' in VAR else ''}
    s_cmp_ge_u32 s2, {N_G1 + N_KG}
    s_cbranch_scc1 k2_cvB
    """)
    a(f"""
    s_load_dwordx2 s[4:5], s[0:1], 64 ; Dskip
    s_load_dwordx2 s[56:57], s[0:1], 88    ; w2
    {'s_add_u32 s20, s2, 256' if k3 else f's_sub_u32 s20, s2, {N_G1}'}         ; d
    v_and_b32 v4, 31, v2                  ; i / j
    v_lshrrev_b32 v6, 5, v2               ; half
    s_and_b32 s21, s20, 0x1fe
    s_lshl_b32 s21, s21, 1
    s_mul_i32 s23, s20, {XT_RS}       ; d*4224
    s_add_u32 s26, s23, 48            ; xn[-8]
    s_lshl_b32 s27, s20, 13           ; d*8192
    v_lshlrev_b32 v5, 4, v0           ; 16*t
    v_lshlrev_b32 v3, 5, v0           ; 32*t
    s_waitcnt lgkmcnt(0)
    s_load_dword s22, s[4:5], s21
    """)
    srd_off(a, 8, 6, 7, XT0_OFF, XT_SZ + 4096)
    srd_off(a, 12, 6, 7, KH_OFF, 0x400000)
    AS = 32
    a(f"""
    buffer_load_dwordx4 v[32:35], v5, s[8:11], s26 offen
    buffer_load_dwordx4 v[36:39], v5, s[8:11], s26 offen offset:16
    buffer_load_dwordx4 v[60:63], v3, s[12:15], s27 offen
    buffer_load_dwordx4 v[64:67], v3, s[12:15], s27 offen offset:16
    """)
    stamp(a, 0)
    prio2(a, PR[0], PR[3])
    srd_off(a, 16, 6, 7, YT_OFF, 0x200000)
    a(f"""
    v_and_b32 v15, 3, v0
    v_mul_u32_u24 v15, 96, v15
    v_lshrrev_b32 v14, 2, v0
    v_add_u32 v15, v15, v14
    v_lshlrev_b32 v15, 4, v15             ; 16*pos(t)
    v_mov_b32 v20, 0
    v_mov_b32 v21, 0
    v_mov_b32 v22, 0
    v_mov_b32 v23, 0
    s_cmp_eq_u32 s3, 3
    s_cbranch_scc1 k2_ca_zf
    s_cmp_ge_u32 s3, 2
    s_cbranch_scc1 k2_ca_nozero
    ds_write_b128 v15, v[20:23] offset:{KHL+1024}
    ds_write_b128 v15, v[20:23] offset:{KHL+6144+1024}
    s_branch k2_ca_nozero
    """)
    a.label("k2_ca_zf")
    a(f"""
    v_lshrrev_b32 v16, 3, v2
    v_min_u32 v16, 2, v16
    v_lshlrev_b32 v16, 4, v16
    v_and_b32 v17, 7, v2
    v_mov_b32 v18, {PS}
    v_mad_u32_u24 v16, v17, v18, v16
    ds_write_b128 v16, v[20:23]
    """)
    a.label("k2_ca_nozero")
    a(f"""
    s_lshl_b32 s35, s3, 4             ; c_start
    v_lshrrev_b32 v12, 3, v4
    v_add_u32 v12, v12, v6
    v_lshlrev_b32 v12, 4, v12         ; 16*((b>>3)+kg)
    v_and_b32 v13, 7, v4
    v_mov_b32 v14, {PS}
    v_mad_u32_u24 v12, v13, v14, v12
    s_lshl_b32 s36, s35, 5
    v_add_u32 v12, s36, v12           ; vA (tile1 A address at c_start)
    v_mul_u32_u24 v13, 96, v6
    v_sub_u32 v13, v13, v4
    v_add_u32 v13, 31, v13
    v_lshlrev_b32 v13, 4, v13
    s_lshl_b32 s36, s35, 3            ; 16*(c/2)
    s_add_u32 s36, s36, {KHL}
    v_add_u32 v13, s36, v13           ; vB
    """)
    a("s_waitcnt vmcnt(2)")
    stamp(a, 1)
    a(f"ds_write_b128 v5, v[34:37] offset:{3*PS + 48}")
    a(f"ds_write_b128 v5, v[36:39] offset:{7*PS + 48}")
    for k in range(6):
        a(f"v_alignbit_b32 v{40+k}, v{33+k}, v{32+k}, 16")
    a(f"ds_write_b128 v5, v[40:43] offset:{0*PS + 48}")
    a(f"ds_write_b128 v5, v[42:45] offset:{4*PS + 48}")
    for k in range(6):
        a(f"v_mov_b32 v{48+k}, v{33+k}")
    a(f"ds_write_b128 v5, v[48:51] offset:{1*PS + 48}")
    a(f"ds_write_b128 v5, v[50:53] offset:{5*PS + 48}")
    for k in range(6):
        a(f"v_alignbit_b32 v{54+k}, v{34+k}, v{33+k}, 16")
    a(f"ds_write_b128 v5, v[54:57] offset:{2*PS + 48}")
    a(f"ds_write_b128 v5, v[56:59] offset:{6*PS + 48}")
    for k in range(4):
        a(f"v_mov_b32 v{8+k}, v{36+k}")
    a(f"""
    s_waitcnt vmcnt(1)
    ds_write_b128 v15, v[60:63] offset:{KHL}
    s_waitcnt vmcnt(0)
    ds_write_b128 v15, v[64:67] offset:{KHL+6144}
    """)
    stamp(a, 2)
    stamp(a, 3)
    if not k3:
        a("s_branch k2_cv_join")
        a.label("k2_cvB")
        a(f"""
        s_load_dwordx2 s[4:5], s[0:1], 64 ; Dskip
        s_load_dwordx8 s[40:47], s[0:1], 8
        s_load_dwordx4 s[48:51], s[0:1], 40
        s_load_dwordx2 s[52:53], s[0:1], 56    ; log_dt
        s_load_dwordx2 s[56:57], s[0:1], 88    ; w2
        s_sub_u32 s20, s2, {0 if 'cvfirst' in VAR else N_G1}         ; d
        s_lshl_b32 s27, s20, 8                ; d*256 bytes
        s_lshl_b32 s28, s3, 6
        s_add_u32 s27, s27, s28
        v_and_b32 v4, 31, v2                  ; i / j
        v_lshrrev_b32 v6, 5, v2               ; half
        v_lshlrev_b32 v7, 1, v4
        v_add_u32 v7, s27, v7
        s_lshl_b32 s27, s20, 1
        v_mov_b32 v14, s27                    ; 2*d
        s_waitcnt lgkmcnt(0)
        global_load_ushort v80, v7, s[40:41]
        global_load_ushort v81, v7, s[42:43]
        global_load_ushort v82, v7, s[44:45]
        global_load_ushort v83, v7, s[46:47]
        global_load_ushort v84, v7, s[48:49]
        global_load_ushort v85, v7, s[50:51]
        global_load_ushort v86, v14, s[52:53]
        s_and_b32 s21, s20, 0x1fe
        s_lshl_b32 s21, s21, 1
        s_load_dword s22, s[4:5], s21
        """)
        stamp(a, 0)
        prio2(a, PR[0], PR[3])
        srd_off(a, 8, 6, 7, XT0_OFF, XT_SZ + 4096)
        srd_off(a, 16, 6, 7, YT_OFF, 0x200000)
        AS = 32
        srd_off(a, 12, 6, 7, TB_OFF, 8192)
        a(f"""
        s_mul_i32 s23, s20, {XT_RS}       ; d*4224
        s_add_u32 s26, s23, 48            ; xn[-8]
        v_lshlrev_b32 v5, 4, v0           ; 16*t
        v_lshlrev_b32 v3, 5, v0           ; 32*t
        buffer_load_dwordx4 v[60:63], v3, s[12:15], 0 offen
        buffer_load_dwordx4 v[64:67], v3, s[12:15], 0 offen offset:16
        """)
        TBL = KHL + 12288
        WT = 6656
        P = [None] + [92 + 2 * i for i in range(7)]
        G1, G2, G3, G6 = 106, 108, 110, 112
        A = [114, 116, 118, 120]
        M1, M3 = 122, 124
        AR = 40
        NA = [84, 85, 86, 87]
        def cmul2(d, x, y, d2, x2, y2):
            a(f"""
            v_mul_f32 v{d}, v{x}, v{y}
            v_mul_f32 v{d+1}, v{x}, v{y+1}
            v_mul_f32 v{d2}, v{x2}, v{y2}
            v_mul_f32 v{d2+1}, v{x2}, v{y2+1}
            v_fma_f32 v{d}, -v{x+1}, v{y+1}, v{d}
            v_fmac_f32 v{d+1}, v{x+1}, v{y}
            v_fma_f32 v{d2}, -v{x2+1}, v{y2+1}, v{d2}
            v_fmac_f32 v{d2+1}, v{x2+1}, v{y2}
            """)
        a(f"""
        s_mov_b32 s54, 0
        s_mov_b32 s55, -1
        s_mul_i32 s32, s3, {WT}
        v_lshlrev_b32 v12, 12, v6
        v_add_u32 v12, s32, v12
        v_and_b32 v13, 3, v4
        v_lshl_add_u32 v12, v13, 2, v12
        v_lshrrev_b32 v13, 2, v4
        v_lshl_add_u32 v12, v13, 4, v12
        """)
        for c in range(16):
            a(f"v_xor_b32 v{AR+c}, {16*((c>>1)&7) + 128*(c&1)}, v12")
        a(f"""
        v_mov_b32 v13, s32
        v_cndmask_b32 v13, v13, 0, s[54:55]
        v_sub_u32 v56, v12, v13
        v_mov_b32 v14, 0x41000000             ; 8
        v_cndmask_b32 v12, v14, 1.0, s[54:55] ; c1
        v_cndmask_b32 v13, v14, -1.0, s[54:55] ; c1 (phase)
        v_mov_b32 v14, 0x42800000             ; 64
        v_mov_b32 v15, 0x43800000             ; 256
        v_cndmask_b32 v57, v14, v15, s[54:55] ; c2
        v_cndmask_b32 v58, v14, -v15, s[54:55] ; c2 (phase)
        s_mov_b32 s33, 0x3fb8aa3b             ; log2e
        s_mov_b32 s34, 0x3e22f983             ; 1/(2pi)
        s_mov_b32 s35, 0xffff0000
        s_mov_b32 s36, 0x0000bf80
        s_mov_b32 s37, 0x80000000
        s_waitcnt vmcnt(2)
        """)
        stamp(a, 1)
        a(f"""
        v_lshlrev_b32 v86, 16, v86
        v_mul_f32 v86, s33, v86
        v_exp_f32 v86, v86
        v_lshlrev_b32 v80, 16, v80
        v_lshlrev_b32 v81, 16, v81
        v_lshlrev_b32 v82, 16, v82
        v_lshlrev_b32 v83, 16, v83
        v_lshlrev_b32 v84, 16, v84
        v_lshlrev_b32 v85, 16, v85
        v_cvt_pk_bf16_f32 v86, v86, v86
        v_and_b32 v86, s35, v86               ; dt
        v_mul_f32 v80, v86, v80               ; lr
        v_mul_f32 v81, v86, v81               ; li
        v_mul_f32 v82, v86, v82               ; dBr
        v_mul_f32 v83, v86, v83               ; dBi
        v_mul_f32 v88, s33, v80               ; lr2
        v_mul_f32 v89, s34, v81               ; lif
        v_mul_f32 v68, v88, v12
        v_mul_f32 v69, v89, v13
        v_mul_f32 v70, v88, v57
        v_mul_f32 v71, v89, v58
        v_exp_f32 v68, v68
        v_fract_f32 v69, v69
        v_exp_f32 v70, v70
        v_fract_f32 v71, v71
        v_cos_f32 v{P[1]}, v69
        v_sin_f32 v{P[1]+1}, v69
        v_cos_f32 v{G1}, v71
        v_sin_f32 v{G1+1}, v71
        v_mul_f32 v90, v84, v82
        v_fma_f32 v90, -v85, v83, v90         ; CBr
        v_mul_f32 v91, v84, v83
        v_fma_f32 v91, v85, v82, v91          ; CBi
        v_mul_f32 v{P[1]}, v68, v{P[1]}
        v_mul_f32 v{P[1]+1}, v68, v{P[1]+1}
        v_mul_f32 v{G1}, v70, v{G1}
        v_mul_f32 v{G1+1}, v70, v{G1+1}
        v_cndmask_b32 v{A[0]}, 1.0, v90, s[54:55]
        v_cndmask_b32 v{A[0]+1}, 0, -v91, s[54:55]
        """)
        cmul2(P[2], P[1], P[1], G2, G1, G1)
        cmul2(P[3], P[2], P[1], G3, G2, G1)
        cmul2(P[4], P[2], P[2], A[1], A[0], G1)
        cmul2(P[6], P[3], P[3], G6, G3, G3)
        cmul2(P[5], P[4], P[1], A[2], A[0], G2)
        cmul2(P[7], P[4], P[3], A[3], A[0], G3)
        a(f"""
        v_cndmask_b32 v{M1}, v{P[1]}, v{G3}, s[54:55]
        v_cndmask_b32 v{M1+1}, v{P[1]+1}, v{G3+1}, s[54:55]
        v_cndmask_b32 v{M3}, v{P[3]}, v{G6}, s[54:55]
        v_cndmask_b32 v{M3+1}, v{P[3]+1}, v{G6+1}, s[54:55]
        v_xor_b32 v{NA[0]}, s37, v{A[0]+1}
        v_xor_b32 v{NA[1]}, s37, v{A[1]+1}
        v_xor_b32 v{NA[2]}, s37, v{A[2]+1}
        v_xor_b32 v{NA[3]}, s37, v{A[3]+1}
        """)
        def src_of(m, b):
            if b == 0: return None
            if m > 0 and b == 1: return M1
            if m > 0 and b == 3: return M3
            return P[b]
        def pair(p):
            pr = []
            for k in range(2):
                st_ = 2 * p + k
                m, b = KSTEPS[st_]
                pr.append((st_, m, b, 68 + 4 * ((p & 1) * 2 + k)))
            return pr
        def stA(p):
            n = 0
            for (st_, m, b, T) in pair(p):
                y = src_of(m, b)
                if y is not None:
                    a(f"v_mul_f32 v{T}, v{A[m]}, v{y}")
                    a(f"v_mul_f32 v{T+1}, v{A[m]}, v{y+1}"); n += 2
            for (st_, m, b, T) in pair(p):
                y = src_of(m, b)
                if y is not None:
                    a(f"v_fmac_f32 v{T}, v{NA[m]}, v{y+1}")
                    a(f"v_fmac_f32 v{T+1}, v{A[m]+1}, v{y}"); n += 2
            return 4
        def stB(p):
            for (st_, m, b, T) in pair(p):
                V = T if b else A[m]
                a(f"v_cvt_pk_bf16_f32 v{T+2}, v{V}, v{V+1}")
            for k, (st_, m, b, T) in enumerate(pair(p)):
                a(f"v_lshlrev_b32 v{88+2*k}, 16, v{T+2}")
                a(f"v_and_b32 v{89+2*k}, s35, v{T+2}")
            for k, (st_, m, b, T) in enumerate(pair(p)):
                V = T if b else A[m]
                a(f"v_sub_f32 v{T}, v{V}, v{88+2*k}")
                a(f"v_sub_f32 v{T+1}, v{V+1}, v{89+2*k}")
        def stC(p):
            for (st_, m, b, T) in pair(p):
                a(f"v_cvt_pk_bf16_f32 v{T+3}, v{T}, v{T+1}")
            for (st_, m, b, T) in pair(p):
                if st_ == 21:
                    a("s_mov_b32 exec_hi, 0")
                ar = 56 if st_ == 0 else AR + (st_ & 15)
                a(f"ds_write2st64_b32 v{ar}, v{T+2}, v{T+3} offset0:{st_>>1} offset1:{(st_>>1)+105}")
        stA(0); stB(0)
        for p in range(1, 17):
            if p < 16: stA(p)
            stC(p - 1)
            if p < 16: stB(p)
        a(f"""
        s_mov_b64 exec, -1
        v_min_u32 v12, 20, v4
        v_bfe_u32 v13, v12, 1, 3
        v_xor_b32 v13, v13, v6
        v_lshlrev_b32 v13, 4, v13
        v_lshl_add_u32 v12, v12, 7, v13
        s_add_u32 s33, s32, 4096
        v_add_u32 v44, s33, v12               ; RA[0]
        v_bfe_u32 v13, v4, 1, 3
        v_xor_b32 v13, v13, v6
        v_lshlrev_b32 v13, 4, v13
        v_lshl_add_u32 v12, v4, 7, v13
        v_mov_b32 v14, s32
        v_cmp_eq_u32 vcc, 0, v4
        v_xor_b32 v45, 32, v44
        v_cndmask_b32 v14, v14, 0, vcc
        v_add_u32 v48, v14, v12               ; RB[0]
        v_xor_b32 v46, 64, v44
        v_xor_b32 v47, 96, v44
        v_xor_b32 v49, 32, v48
        v_xor_b32 v50, 64, v48
        v_xor_b32 v51, 96, v48
        s_waitcnt lgkmcnt(0)
        """)
        stamp(a, 2)
        FR = [68 + 4 * i for i in range(15)] + [40]
        for g in range(4):
            a(f"ds_read_b128 v[{FR[4*g]}:{FR[4*g]+3}], v{44+g}")
            a(f"ds_read_b128 v[{FR[4*g+1]}:{FR[4*g+1]+3}], v{48+g} offset:26880")
            a(f"ds_read_b128 v[{FR[4*g+2]}:{FR[4*g+2]+3}], v{44+g} offset:26880")
            a(f"ds_read_b128 v[{FR[4*g+3]}:{FR[4*g+3]+3}], v{48+g}")
        KA = 16
        for g in range(4):
            AH, BL, AL, BH = FR[4*g:4*g+4]
            a(f"s_waitcnt lgkmcnt({14 - 4*g})")
            a(f"v_mfma_f32_32x32x16_bf16 v[{KA}:{KA+15}], v[{AH}:{AH+3}], v[{BL}:{BL+3}], {'0' if g == 0 else f'v[{KA}:{KA+15}]'}")
            a(f"s_waitcnt lgkmcnt({12 - 4*g})")
            a(f"v_mfma_f32_32x32x16_bf16 v[{KA}:{KA+15}], v[{AL}:{AL+3}], v[{BH}:{BH+3}], v[{KA}:{KA+15}]")
            a(f"v_mfma_f32_32x32x16_bf16 v[{KA}:{KA+15}], v[{AH}:{AH+3}], v[{BH}:{BH+3}], v[{KA}:{KA+15}]")
        a(f"""
        v_lshlrev_b32 v7, 4, v2
        v_add_u32 v7, s32, v7
        v_and_b32 v12, 3, v0
        v_mul_u32_u24 v12, 96, v12
        v_lshrrev_b32 v14, 2, v0
        v_add_u32 v12, v12, v14
        v_lshlrev_b32 v12, 4, v12             ; 16*pos(t)
        s_nop 7
        s_nop 4
        ds_write_b128 v7, v[{KA}:{KA+3}] offset:512
        ds_write_b128 v7, v[{KA+4}:{KA+7}] offset:{512+1024}
        ds_write_b128 v7, v[{KA+8}:{KA+11}] offset:{512+2048}
        s_waitcnt lgkmcnt(0)
        s_barrier
        s_cmp_eq_u32 s3, 3
        s_cbranch_scc1 k2_cv_nored
        ds_read_b128 v[16:19], v5 offset:512
        ds_read_b128 v[20:23], v5 offset:{512+WT}
        ds_read_b128 v[24:27], v5 offset:{512+2*WT}
        ds_read_b128 v[28:31], v5 offset:{512+3*WT}
        s_waitcnt lgkmcnt(0)
        v_add_f32 v16, v16, v20
        v_add_f32 v17, v17, v21
        v_add_f32 v18, v18, v22
        v_add_f32 v19, v19, v23
        v_add_f32 v24, v24, v28
        v_add_f32 v25, v25, v29
        v_add_f32 v26, v26, v30
        v_add_f32 v27, v27, v31
        v_add_f32 v16, v16, v24
        v_add_f32 v17, v17, v25
        v_add_f32 v18, v18, v26
        v_add_f32 v19, v19, v27
        ds_write_b128 v5, v[16:19] offset:{TBL}
        """)
        a.label("k2_cv_nored")
        a("s_waitcnt vmcnt(0)")
        a(f"""
        s_waitcnt lgkmcnt(0)
        s_barrier
        """)
        stamp(a, 3)
        for e in range(8):
            a(f"ds_read_b32 v{16+e}, v{60+e} offset:{TBL}")
        srd_off(a, 12, 6, 7, KH_OFF, 0x400000)
        srd(a, 56, 56, 57, 1376 * 1024)
        a(f"""
        s_lshl_b32 s36, s20, 12
        v_add_u32 v72, s36, v5
        buffer_load_dwordx4 v[68:71], v72, s[56:59], 0 offen
        s_lshl_b32 s24, s20, 13
        s_waitcnt lgkmcnt(0)
        """)
        for e in range(0, 8, 2):
            a(f"v_cvt_pk_bf16_f32 v{32+e//2}, v{16+e}, v{17+e}")
        for e in range(0, 8, 2):
            a(f"v_lshlrev_b32 v{24+e}, 16, v{32+e//2}")
            a(f"v_and_b32 v{25+e}, s35, v{32+e//2}")
        for e in range(8):
            a(f"v_sub_f32 v{16+e}, v{16+e}, v{24+e}")
        for e in range(0, 8, 2):
            a(f"v_cvt_pk_bf16_f32 v{36+e//2}, v{16+e}, v{17+e}")
        a(f"""
        buffer_store_dwordx4 v[32:35], v3, s[12:15], s24 offen
        buffer_store_dwordx4 v[36:39], v3, s[12:15], s24 offen offset:16
        """)
        stamp_out(a, 1, 4, "k2_done")
        a("s_branch k2_done")
    a.label("k2_cv_join")
    ACC1, ACC2, ACC0, ACC3 = 16, 16, 48, 48
    first = set()
    F = [80, 104]
    a("""
    s_waitcnt vmcnt(0) lgkmcnt(0)
    s_barrier
    """)
    stamp(a, 4)
    prio2(a, PR[1], PR[4])
    if 'nopf' not in VAR and 'pf1' not in VAR and not k3:
        srd(a, 56, 56, 57, 1376 * 1024)
        if 'e1' in VAR:
            a("""
            s_lshr_b32 s36, s20, 3
            s_mul_i32 s36, s36, 22016
            v_add_u32 v72, s36, v5
            """)
            for j in range(1, 6):
                a(f"v_add_u32 v{72+j}, {j*4096:#x}, v72")
            for j in range(6):
                a(f"buffer_load_dwordx4 v[68:71], v{72 + j}, s[56:59], 0 offen")
        else:
            a("""
            s_lshl_b32 s36, s20, 12
            v_add_u32 v72, s36, v5
            buffer_load_dwordx4 v[68:71], v72, s[56:59], 0 offen
            """)
    def mf(acc, A, B):
        c = f"v[{acc}:{acc+15}]" if acc in first else "0"
        first.add(acc)
        a(f"v_mfma_f32_32x32x16_bf16 v[{acc}:{acc+15}], v[{A}:{A+3}], v[{B}:{B+3}], {c}")
    def rd(dst, base, off):
        a(f"ds_read_b128 v[{dst}:{dst+3}], v{base} offset:{off}")
    def boff(c):
        return 16 * (c // 2) + 3072 * (c & 1)
    def ch_reads(c, f):
        rd(f, 12, AS * c)
        rd(f + 4, 13, boff(c))
        rd(f + 8, 13, boff(c + 64))
        rd(f + 12, 13, boff(c) + 6144)
        rd(f + 16, 13, boff(c + 64) + 6144)
        rd(f + 20, 12, AS * (c + 64))
    def ch_mfma(f, last):
        base = 0 if last else 6
        a(f"s_waitcnt lgkmcnt({base + 4})")
        mf(ACC1, f, f + 4)
        a(f"s_waitcnt lgkmcnt({base + 3})")
        mf(ACC0, f, f + 8)
        a(f"s_waitcnt lgkmcnt({base + 2})")
        mf(ACC2, f, f + 12)
        a(f"s_waitcnt lgkmcnt({base + 1})")
        mf(ACC3, f, f + 16)
        a(f"s_waitcnt lgkmcnt({base})")
        mf(ACC1, f + 20, f + 8)
        mf(ACC2, f + 20, f + 16)
    ch_reads(0, F[0])
    for c in range(16):
        if c < 15:
            ch_reads(c + 1, F[(c + 1) & 1])
        ch_mfma(F[c & 1], c == 15)
    a.label("k2_cv_fin")
    stamp(a, 5)
    prio2(a, PR[2], PR[5])
    a(f"""
    s_waitcnt lgkmcnt(0)
    s_nop 7
    s_nop 7
    """)
    a(f"""
    s_barrier
    v_mul_u32_u24 v14, 144, v4
    v_lshl_add_u32 v14, v6, 4, v14     ; a_l*144 + 16h
    s_mul_i32 s36, s3, 4608
    v_add_u32 v14, s36, v14
    """)
    for q in range(4):
        a(f"ds_write_b128 v14, v[{ACC1+4*q}:{ACC1+4*q+3}] offset:{32*q}")
    for q in range(4):
        a(f"ds_write_b128 v14, v[{ACC0+4*q}:{ACC0+4*q+3}] offset:{32*q + 4*4608}")
    a(f"""
    v_lshrrev_b32 v14, 2, v0
    v_and_b32 v14, 31, v14
    v_mul_u32_u24 v14, 144, v14
    v_and_b32 v15, 3, v0
    v_lshl_add_u32 v14, v15, 5, v14    ; a_l*144 + sub*32
    s_cmp_lt_u32 s3, 2
    s_cselect_b32 s36, {4*4608}, 0
    v_add_u32 v14, s36, v14
    s_waitcnt lgkmcnt(0)
    s_barrier
    """)
    for s in range(4):
        a(f"ds_read_b128 v[{16+8*s}:{19+8*s}], v14 offset:{s*4608}")
        a(f"ds_read_b128 v[{20+8*s}:{23+8*s}], v14 offset:{s*4608+16}")
    a("s_waitcnt lgkmcnt(0)")
    for i in range(8):
        a(f"v_add_f32 v{16+i}, v{16+i}, v{40+i}")
    a(f"""
    s_waitcnt lgkmcnt(0)
    s_and_b32 s21, s20, 1
    s_lshl_b32 s21, s21, 4
    s_lshr_b32 s22, s22, s21
    s_lshl_b32 s22, s22, 16
    s_mov_b32 s23, 0xffff0000
    s_lshl_b32 s24, s20, 12
    """)
    for i in range(8):
        a(f"v_add_f32 v{24+i}, v{24+i}, v{32+i}")
    for i in range(8):
        a(f"v_add_f32 v{16+i}, v{16+i}, v{24+i}")
    for j in range(4):
        a(f"""
        v_cvt_pk_bf16_f32 v24, v{16+2*j}, v{17+2*j}
        v_lshlrev_b32 v25, 16, v{8+j}
        v_and_b32 v26, s23, v{8+j}
        v_mul_f32 v25, s22, v25
        v_mul_f32 v26, s22, v26
        v_cvt_pk_bf16_f32 v27, v25, v26
        v_lshlrev_b32 v25, 16, v24
        v_and_b32 v26, s23, v24
        v_lshlrev_b32 v28, 16, v27
        v_and_b32 v29, s23, v27
        v_add_f32 v25, v25, v28
        v_add_f32 v26, v26, v29
        v_cvt_pk_bf16_f32 v{32+j}, v25, v26
        """)
    a(f"""
    buffer_store_dwordx4 v[32:35], v5, s[16:19], s24 offen {'sc0 sc1' if k3 else ''}
    """)
    if k3:
        srd_off(a, 28, 6, 7, TB_OFF, 0x8000)
        a(f"""
        s_lshr_b32 s24, s2, 6
        s_lshl_b32 s24, s24, 8
        s_add_u32 s24, s24, 0x4000
        v_mov_b32 v16, 1
        v_mov_b32 v17, 0
        s_waitcnt vmcnt(0)
        s_barrier
        s_cmp_lg_u32 s3, 0
        s_cbranch_scc1 k3_done
        s_mov_b64 exec, 1
        buffer_atomic_add v16, v17, s[28:31], s24 offen sc1
        s_mov_b64 exec, -1
        """)
        stamp_out(a, 2, 6, "k3_done")
        a("s_branch k3_done")
        return
    stamp_out(a, 1, 6, "k2_done")
    a("s_branch k2_done")

    a.label("k2_gemm")
    a(f"""
    s_load_dwordx2 s[4:5], s[0:1], 80 ; w1
    s_and_b32 s20, s2, 15             ; mt
    s_sub_u32 s21, s2, {N_CV if 'cvfirst' in VAR else 0}
    s_lshr_b32 s21, s21, 4             ; nt
    s_waitcnt lgkmcnt(0)
    """)
    stamp(a, 0)
    prio2(a, PR[6], PR[6])
    srd(a, 8, 6, 7, 0x200000)
    srd(a, 12, 4, 5, 512 * 2752)
    srd_off(a, 16, 6, 7, H_OFF, H_SZ)
    ST = 6144
    GD = int(os.environ.get('GD', '6'))
    a(f"""
    s_lshl_b32 s22, s3, 15
    v_lshl_add_u32 v3, v2, 4, s22
    s_mul_i32 s22, s3, 96
    v_add_u32 v4, s22, v2              ; P = 96w + l
    v_add_u32 v5, 64, v4
    s_movk_i32 s23, 5462               ; 65536/12
    s_movk_i32 s24, 2752
    v_mul_u32_u24 v6, s23, v4
    v_lshrrev_b32 v6, 16, v6           ; row
    v_mul_u32_u24 v7, 12, v6
    v_sub_u32 v4, v4, v7               ; cc
    v_lshlrev_b32 v4, 4, v4
    v_mad_u32_u24 v4, v6, s24, v4      ; voffB0
    v_mul_u32_u24 v6, s23, v5
    v_lshrrev_b32 v6, 16, v6
    v_mul_u32_u24 v7, 12, v6
    v_sub_u32 v5, v5, v7
    v_lshlrev_b32 v5, 4, v5
    v_mad_u32_u24 v5, v6, s24, v5      ; voffB1
    s_lshl_b32 s25, s20, 17
    s_mul_i32 s26, s21, 192
    s_lshr_b32 s36, s20, 3
    s_lshl_b32 s36, s36, {os.environ.get('RM', '3')}
    s_add_u32 s36, s36, s21
    s_and_b32 s36, s36, {0 if 'norot' in VAR else 15}
    s_mul_i32 s28, s3, 1536
    s_mov_b64 s[30:31], -1
    s_mov_b32 s32, -1
    s_mov_b32 s33, 0
    """)
    def dma(kc):
        st = (kc % 3) * ST
        a(f"""
        s_add_u32 m0, s27, {st}
        s_add_u32 s29, s25, {kc*64 + 16384}
        buffer_load_dwordx4 v3, s[8:11], s25 offen offset:{0} lds
        s_add_u32 m0, s27, {st + 1024}
        s_nop 0
        buffer_load_dwordx4 v3, s[8:11], s29 offen lds
        s_add_u32 m0, s28, {st}
        s_nop 0
        buffer_load_dwordx4 v4, s[12:15], s26 offen lds
        s_add_u32 m0, s28, {st + 1024}
        s_mov_b64 exec, s[32:33]
        buffer_load_dwordx4 v5, s[12:15], s26 offen lds
        s_mov_b64 exec, s[30:31]
        s_add_u32 s25, s25, 64
        s_add_u32 s26, s26, {32*2752}
        """)
    a(f"""
    v_and_b32 v6, 31, v2               ; m
    v_lshrrev_b32 v7, 5, v2            ; kg / h
    s_lshl_b32 s22, s3, 5
    v_add_u32 v8, s22, v6
    v_lshlrev_b32 v8, 6, v8            ; row*64
    v_lshrrev_b32 v9, 2, v6
    v_and_b32 v9, 3, v9                ; (row>>2)&3
    v_xor_b32 v10, v9, v7
    v_lshl_add_u32 v10, v10, 4, v8     ; vAr0
    v_xor_b32 v11, 2, v9
    v_xor_b32 v11, v11, v7
    v_lshl_add_u32 v11, v11, 4, v8
    v_lshlrev_b32 v12, 3, v7           ; 8*kg
    v_bfe_u32 v13, v2, 2, 2
    v_add_u32 v12, v12, v13
    v_mul_u32_u24 v12, 192, v12
    v_bfe_u32 v13, v2, 4, 1
    v_lshl_add_u32 v12, v13, 5, v12    ; + 32*((l>>4)&1)
    v_and_b32 v13, 3, v2
    v_lshl_add_u32 v12, v13, 3, v12    ; + 8*(l&3)
    """)
    ACC = 16
    for i in range(48):
        a(f"v_mov_b32 v{ACC+i}, 0")
    return_dma = dma
    def dma2(kc):
        st = (kc % GD) * ST
        a(f"""
        s_lshl_b32 s37, s36, 11
        s_add_u32 s37, s37, s25
        s_mul_i32 s38, s36, {32*2752}
        buffer_load_dwordx4 v[{112+8*(kc%(GD+1))}:{115+8*(kc%(GD+1))}], v3, s[8:11], s37 offen
        buffer_load_dwordx4 v[{116+8*(kc%(GD+1))}:{119+8*(kc%(GD+1))}], v3, s[8:11], s37 offen offset:1024
        s_add_u32 m0, s28, {st}
        s_add_u32 s38, s38, s26
        buffer_load_dwordx4 v4, s[12:15], s38 offen lds
        s_add_u32 m0, s28, {st + 1024}
        s_mov_b64 exec, s[32:33]
        buffer_load_dwordx4 v5, s[12:15], s38 offen lds
        s_mov_b64 exec, s[30:31]
        s_add_u32 s36, s36, 1
        s_and_b32 s36, s36, 15
        """)
    for kc in range(GD): dma2(kc)
    FB = 64
    def breads(kc):
        st = (kc % GD) * ST
        for ks in range(2):
            for j in range(3):
                b = FB + 24 * (kc & 1) + 12 * ks + 4 * j
                off = st + ks * 16 * 192 + 64 * j
                a(f"ds_read_b64_tr_b16 v[{b}:{b+1}], v12 offset:{off}")
                a(f"ds_read_b64_tr_b16 v[{b+2}:{b+3}], v12 offset:{off + 4*192}")
    a(f"s_waitcnt vmcnt({4*(GD-1)})")
    a("s_barrier")
    stamp(a, 1)
    breads(0)
    for kc in range(16):
        if kc < 15:
            a(f"s_waitcnt vmcnt({4 * (min(kc + GD - 1, 15) - (kc + 1))}) lgkmcnt(0)")
            a("s_barrier")
            if kc + GD < 16:
                dma2(kc + GD)
            breads(kc + 1)
        else:
            a("s_waitcnt lgkmcnt(0)")
        FA = 112 + 8 * (kc % (GD + 1))
        for ks in range(2):
            for j in range(3):
                b = FB + 24 * (kc & 1) + 12 * ks + 4 * j
                a(f"v_mfma_f32_32x32x16_bf16 v[{ACC+16*j}:{ACC+16*j+15}], v[{b}:{b+3}], v[{FA+4*ks}:{FA+4*ks+3}], v[{ACC+16*j}:{ACC+16*j+15}]")
    stamp(a, 2)
    prio2(a, PR[7], PR[7])
    a(f"""
    s_barrier
    s_lshl_b32 s22, s3, 5
    v_add_u32 v8, s22, v6
    v_mul_u32_u24 v8, 208, v8
    v_lshl_add_u32 v8, v7, 3, v8       ; row*208 + 8h
    s_nop 7
    s_nop 3
    """)
    for j in range(3):
        for q in range(4):
            r = ACC + 16 * j + 4 * q
            a(f"""
            v_max_f32 v{r}, 0, v{r}
            v_max_f32 v{r+1}, 0, v{r+1}
            v_max_f32 v{r+2}, 0, v{r+2}
            v_max_f32 v{r+3}, 0, v{r+3}
            v_cvt_pk_bf16_f32 v{r}, v{r}, v{r+1}
            v_cvt_pk_bf16_f32 v{r+1}, v{r+2}, v{r+3}
            ds_write_b64 v8, v[{r}:{r+1}] offset:{64*j + 16*q}
            """)
    a(f"""
    s_mul_i32 s22, s3, {32*208}
    s_lshl_b32 s25, s20, 2
    s_add_u32 s25, s25, s3
    s_mul_i32 s25, s25, {H_RB}
    s_mul_i32 s26, s21, 6144
    s_add_u32 s25, s25, s26
    v_and_b32 v10, 31, v2
    v_mul_u32_u24 v12, 208, v10
    v_lshrrev_b32 v9, 5, v2
    v_lshl_add_u32 v12, v9, 4, v12
    v_add_u32 v12, s22, v12
    v_lshlrev_b32 v11, 4, v2
    s_mul_i32 s26, s21, 96
    s_movk_i32 s27, {H_RS}
    s_movk_i32 s28, 208
    s_mov_b32 s29, 0x40000000
    s_movk_i32 s34, 1376
    s_movk_i32 s35, 1408
    s_waitcnt lgkmcnt(0)
    """)
    for i in range(6):
        a(f"""
        ds_read_b128 v[{64+4*i}:{67+4*i}], v12 offset:{32*i}
        v_add_u32 v{90+i}, {1024*i}, v11
        v_add_u32 v10, {2*i}, v9
        v_lshl_add_u32 v{96+i}, v10, 3, s26 ; col
        """)
    for i in range(6):
        a(f"""
        s_waitcnt lgkmcnt({5-i})
        v_cmp_gt_u32 vcc, s34, v{96+i}
        v_mov_b32 v9, s29
        v_cndmask_b32 v{64+4*i}, 0, v{64+4*i}, vcc
        v_cndmask_b32 v{65+4*i}, 0, v{65+4*i}, vcc
        v_cndmask_b32 v{66+4*i}, 0, v{66+4*i}, vcc
        v_cndmask_b32 v{67+4*i}, 0, v{67+4*i}, vcc
        v_cmp_gt_u32 vcc, s35, v{96+i}
        s_nop 1
        v_cndmask_b32 v{90+i}, v9, v{90+i}, vcc
        buffer_store_dwordx4 v[{64+4*i}:{67+4*i}], v{90+i}, s[16:19], s25 offen
        """)
    stamp_out(a, 1, 3, "k2_done")
    a.label("k2_done")
    a("s_endpgm")

def add(kernels, launches):
    a = Asm()
    gen_k2(a)
    kernels.append(("k2_kernel", a.text(), 120 + 8 * int(os.environ.get("GD", "6"))))
    launches.append(f"; @launch kernel=k2_kernel grid=({N_G1+N_CV},1,1) block=(256,1,1) lds={K2_LDS}")
    try:
        import gen3
        gen3.add(kernels, launches)
    except ImportError:
        pass
```

```python
from gen import *

N_G2 = 256
NST = 4
YB = 4 * 17408
K3_LDS = YB + 4 * 2080
N_CB = 256
SB = 4096
POLLK = int(os.environ.get('POLLK', '8'))

def gen_k3(a):
    a.label("k3_kernel")
    a(f"""
    s_cmp_ge_u32 s2, {N_G2 + N_CB}
    s_cbranch_scc1 k3_done
    v_lshrrev_b32 v1, 6, v0
    v_and_b32 v2, 63, v0              ; lane
    s_load_dwordx2 s[6:7], s[0:1], 112 ; ws
    v_readfirstlane_b32 s3, v1
    s_cmp_ge_u32 s2, {N_CB}
    s_cbranch_scc1 k3_gemm
    """)
    import gen2
    b = Asm()
    gen2.gen_k2(b, k3=True)
    a.lines += [l.replace("k2_", "k3c_") for l in b.lines]
    a.label("k3_gemm")
    a(f"""
    s_load_dwordx2 s[4:5], s[0:1], 88  ; w2
    s_load_dwordx2 s[36:37], s[0:1], 0 ; x
    s_load_dwordx2 s[38:39], s[0:1], 96 ; out
    s_setprio {os.environ.get('P3', '0')}
    {'''s_and_b32 s20, s2, 31             ; mt''' if 'k3old' in VAR else '''s_and_b32 s20, s2, 7
    s_lshl_b32 s20, s20, 1
    s_bfe_u32 s21, s2, 0x10003
    s_add_u32 s20, s20, s21
    s_and_b32 s21, s2, 16
    s_add_u32 s20, s20, s21           ; mt = 2x + r0 + 16 r1'''}
    s_bfe_u32 s21, s2, 0x30005        ; nt
    v_lshlrev_b32 v3, 4, v2            ; voffA
    v_lshrrev_b32 v4, 3, v2
    v_lshlrev_b32 v4, 10, v4
    v_bfe_u32 v5, v2, 4, 1
    v_lshlrev_b32 v5, 2, v5
    v_and_b32 v6, 7, v2
    v_xor_b32 v5, v5, v6
    v_lshl_add_u32 v4, v5, 4, v4       ; voffB
    s_waitcnt lgkmcnt(0)
    """)
    stamp(a, 0)
    srd_off(a, 8, 6, 7, H_OFF, H_SZ)
    srd(a, 12, 4, 5, 1376 * 1024)
    srd_off(a, 16, 6, 7, YT_OFF, 0x200000)
    srd(a, 40, 36, 37, 0x200000)
    srd(a, 44, 38, 39, 0x200000)
    srd_off(a, 48, 6, 7, TB_OFF, 0x8000)
    a(f"""
    s_mul_i32 s25, s20, {2*H_RB}
    s_mul_i32 s26, s3, {44*512}
    s_add_u32 s25, s25, s26
    s_mul_i32 s26, s3, {352*1024}
    s_lshl_b32 s27, s21, 7
    s_add_u32 s26, s26, s27            ; soffB
    s_lshl_b32 s27, s3, 14
    """)
    FH0 = 144
    def dma(kc):
        st = (kc % NST) * SB
        for jm in range(2):
            f = FH0 + 16 * (kc % NST) + 4 * jm
            a(f"""
            s_add_u32 s28, s25, {kc*2048 + jm*H_RB}
            buffer_load_dwordx4 v[{f}:{f+3}], v3, s[8:11], s28 offen
            buffer_load_dwordx4 v[{f+8}:{f+11}], v3, s[8:11], s28 offen offset:1024
            """)
        for i in range(4):
            a(f"""
            s_add_u32 m0, s27, {st + 1024*i}
            s_add_u32 s28, s26, {kc*32768 + i*8192}
            buffer_load_dwordx4 v4, s[12:15], s28 offen lds
            """)
    for kc in range(NST - 1):
        dma(kc)
    AT = 112; XV = 128
    a(f"""
    v_lshrrev_b32 v5, 3, v2
    v_lshlrev_b32 v5, 12, v5           ; (l>>3)*4096
    v_and_b32 v6, 7, v2
    v_lshl_add_u32 v5, v6, 4, v5       ; + 16*(l&7)
    v_lshrrev_b32 v6, 2, v0
    s_lshl_b32 s29, s21, 18            ; n0*4096
    s_lshl_b32 s30, s20, 7
    s_add_u32 s29, s29, s30
    s_lshl_b32 s30, s3, 16             ; 16w*4096
    s_add_u32 s29, s29, s30
    s_mul_i32 s33, s3, 2080
    s_add_u32 s34, s29, 0x8000
    s_lshl_b32 s35, s21, 8
    s_add_u32 s35, s35, 0x3c00
    v_mov_b32 v137, 0
    v_lshlrev_b32 v7, 10, v6           ; row*1024
    v_and_b32 v8, 3, v0
    v_lshl_add_u32 v7, v8, 5, v7       ; + 32*(t&3)
    s_lshl_b32 s30, s20, 16
    s_lshl_b32 s31, s21, 7
    s_add_u32 s30, s30, s31
    buffer_load_dwordx4 v[{XV}:{XV+3}], v7, s[40:43], s30 offen
    buffer_load_dwordx4 v[{XV+4}:{XV+7}], v7, s[40:43], s30 offen offset:16
    """)
    NEX = 2
    a(f"""
    v_and_b32 v8, 31, v2               ; idx
    v_lshrrev_b32 v9, 5, v2            ; kg / h
    v_lshlrev_b32 v14, 3, v9
    v_bfe_u32 v15, v2, 2, 2
    v_add_u32 v14, v14, v15
    v_lshlrev_b32 v14, 7, v14          ; row*128
    v_bfe_u32 v15, v2, 4, 1
    v_lshl_add_u32 v14, v15, 5, v14
    v_and_b32 v15, 3, v2
    v_lshl_add_u32 v14, v15, 3, v14
    v_bfe_u32 v15, v2, 3, 1
    v_lshl_add_u32 v14, v15, 6, v14
    v_add_u32 v14, s27, v14            ; vW0
    v_xor_b32 v15, 64, v14             ; vW1
    """)
    ACC = 16
    for i in range(64):
        a(f"v_mov_b32 v{ACC+i}, 0")
    FH = 80; FW = 96
    NCH = 11
    for kc in range(NCH):
        st = (kc % NST) * SB
        FH = FH0 + 16 * (kc % NST)
        later = min(kc + NST - 2, NCH - 1) - kc
        cnt = 8 * later + (NEX if kc < NST - 2 + 0 and False else 0)
        if kc <= NST - 2:
            cnt += NEX
        if kc > POLLK:
            cnt += 2
        a(f"s_waitcnt vmcnt({min(cnt, 63)})")
        if kc == 0: stamp(a, 1)
        for ks in range(2):
            for jn in range(2):
                f = FW + 8 * ks + 4 * jn
                a(f"ds_read_b64_tr_b16 v[{f}:{f+1}], v{14+jn} offset:{st + ks*2048}")
                a(f"ds_read_b64_tr_b16 v[{f+2}:{f+3}], v{14+jn} offset:{st + ks*2048 + 512}")
        if kc + NST - 1 < NCH:
            dma(kc + NST - 1)
        for ks in range(2):
            a(f"s_waitcnt lgkmcnt({4 if ks == 0 else 0})")
            for jn in range(2):
                for jm in range(2):
                    acc = ACC + 16 * (2 * jn + jm)
                    w = FW + 8 * ks + 4 * jn
                    h = FH + 8 * ks + 4 * jm
                    a(f"v_mfma_f32_32x32x16_bf16 v[{acc}:{acc+15}], v[{w}:{w+3}], v[{h}:{h+3}], v[{acc}:{acc+15}]")
        if kc == POLLK:
            assert kc + NST - 1 >= NCH
            a(f"""
            s_cmp_lt_u32 s21, 4
            s_cbranch_scc1 k3_ready
            s_mov_b32 s31, 0x40000
            """)
            a.label("k3_poll")
            a(f"""
            buffer_load_dword v136, v137, s[48:51], s35 offen sc0 sc1
            s_sub_u32 s31, s31, 1
            s_waitcnt vmcnt(0)
            v_readfirstlane_b32 s32, v136
            s_cmp_eq_u32 s31, 0
            s_cbranch_scc1 k3_ready
            s_cmp_ge_u32 s32, 64
            s_cbranch_scc1 k3_ready
            s_sleep 4
            s_branch k3_poll
            """)
            a.label("k3_ready")
            a(f"""
            s_add_u32 m0, s33, {YB}
            s_nop 0
            buffer_load_dwordx4 v5, s[16:19], s29 offen sc0 sc1 lds
            s_add_u32 m0, s33, {YB + 1024}
            s_nop 0
            buffer_load_dwordx4 v5, s[16:19], s34 offen sc0 sc1 lds
            """)
    stamp(a, 2)
    a(f"""
    s_barrier
    v_mul_u32_u24 v10, 272, v8
    v_lshl_add_u32 v10, v9, 4, v10
    s_mul_i32 s28, s3, 17408
    v_add_u32 v10, s28, v10
    s_nop 7
    s_nop 3
    """)
    for jn in range(2):
        for jm in range(2):
            for q in range(4):
                r = ACC + 16 * (2 * jn + jm) + 4 * q
                a(f"ds_write_b128 v10, v[{r}:{r+3}] offset:{jm*32*272 + jn*128 + q*32}")
    a(f"""
    v_lshrrev_b32 v11, 2, v0
    v_mul_u32_u24 v11, 272, v11
    v_and_b32 v12, 3, v0
    v_lshl_add_u32 v11, v12, 6, v11
    v_mul_u32_u24 v12, 2080, v12
    v_lshl_add_u32 v12, v6, 1, v12
    v_add_u32 v12, {YB}, v12
    s_mov_b32 s23, 0xffff0000
    s_waitcnt vmcnt(0) lgkmcnt(0)
    s_barrier
    """)
    for p in range(4):
        for c in range(4):
            r = 16 + 16 * p + 4 * c
            a(f"ds_read_b128 v[{r}:{r+3}], v11 offset:{p*17408 + 16*c}")
    a("s_waitcnt lgkmcnt(8)")
    for i in range(16):
        a(f"v_add_f32 v{16+i}, v{16+i}, v{32+i}")
    a("s_waitcnt lgkmcnt(0)")
    for i in range(16):
        a(f"ds_read_u16 v{AT + i}, v12 offset:{128*i}")
    for i in range(16):
        a(f"v_add_f32 v{48+i}, v{48+i}, v{64+i}")
    for i in range(16):
        a(f"v_add_f32 v{16+i}, v{16+i}, v{48+i}")
    a("s_waitcnt vmcnt(0) lgkmcnt(0)")
    for j in range(8):
        a(f"""
        v_cvt_pk_bf16_f32 v32, v{16+2*j}, v{17+2*j}
        v_lshlrev_b32 v33, 16, v{XV+j}
        v_and_b32 v34, s23, v{XV+j}
        v_lshlrev_b32 v35, 16, v{AT+2*j}
        v_lshlrev_b32 v36, 16, v{AT+2*j+1}
        v_add_f32 v33, v33, v35
        v_add_f32 v34, v34, v36
        v_cvt_pk_bf16_f32 v33, v33, v34
        v_lshlrev_b32 v35, 16, v32
        v_and_b32 v36, s23, v32
        v_lshlrev_b32 v37, 16, v33
        v_and_b32 v38, s23, v33
        v_add_f32 v35, v35, v37
        v_add_f32 v36, v36, v38
        v_cvt_pk_bf16_f32 v{40+j}, v35, v36
        """)
    a(f"""
    buffer_store_dwordx4 v[40:43], v7, s[44:47], s30 offen
    buffer_store_dwordx4 v[44:47], v7, s[44:47], s30 offen offset:16
    """)
    stamp_out(a, 2, 3, "k3_done")
    a.label("k3_done")
    a("s_endpgm")

def add(kernels, launches):
    a = Asm()
    gen_k3(a)
    kernels.append(("k3_kernel", a.text(), 208))
    launches.append(f"; @launch kernel=k3_kernel grid=({N_G2+N_CB},1,1) block=(256,1,1) lds={K3_LDS}")
```

```python
import sys, re, os
VAR = os.environ.get('VAR', '').split(',')

NAME = "parallel_sum__ssm_conv_s4__dense_activation_relu__prompt"

XN_OFF  = 0x000000
XT_RS   = 4224
XT0_OFF = 0x200000
XT_SZ   = 512 * XT_RS
XT1_OFF = XT0_OFF + XT_SZ
KH_OFF  = XT1_OFF + XT_SZ
KL_OFF  = KH_OFF + 0x200000
YT_OFF  = KL_OFF + 0x200000
H_OFF   = YT_OFF + 0x200000
H_RS    = 2816
H_SZ    = 2048 * H_RS
WS_END  = H_OFF + H_SZ
TB_OFF  = XT1_OFF + 0x10000
H_RB    = 90112

class Asm:
    def __init__(self):
        self.lines = []
    def __call__(self, s):
        for l in s.strip("\n").split("\n"):
            m = re.search(r"offset:(\d+)", l)
            if m and ("buffer_" in l or "global_" in l) and int(m.group(1)) > 4095:
                raise ValueError("offset too large: " + l)
            if m and "ds_" in l and int(m.group(1)) > 65535:
                raise ValueError("ds offset too large: " + l)
            self.lines.append("    " + l.strip() if l.strip() and not l.strip().endswith(":") else l.strip())
    def label(self, l):
        self.lines.append(l + ":")
    def text(self):
        return "\n".join(self.lines) + "\n"

def srd(a, d, lo, hi, size):
    a(f"""
    s_mov_b32 s{d}, s{lo}
    s_and_b32 s{d+1}, s{hi}, 0xffff
    s_mov_b32 s{d+2}, {size:#x}
    s_mov_b32 s{d+3}, 0x00020000
    """)

def srd_off(a, d, lo, hi, off, size):
    a(f"""
    s_add_u32 s{d}, s{lo}, {off:#x}
    s_addc_u32 s{d+1}, s{hi}, 0
    s_and_b32 s{d+1}, s{d+1}, 0xffff
    s_mov_b32 s{d+2}, {size:#x}
    s_mov_b32 s{d+3}, 0x00020000
    """)

def stamp(a, i):
    if 'stamp' not in VAR: return
    a(f"s_memtime s[{60+2*i}:{61+2*i}]")
    if i == 0:
        a("s_memrealtime s[76:77]")
    a("s_waitcnt lgkmcnt(0)")

def stamp_out(a, kidx, n, lab):
    if 'stamp' not in VAR: return
    a(f"""
    s_memtime s[{60+2*n}:{61+2*n}]
    s_memrealtime s[78:79]
    s_cmp_lg_u32 s3, 0
    s_cbranch_scc1 {lab}
    s_add_u32 s80, s6, {0x4000000 + kidx*0x100000:#x}
    s_addc_u32 s81, s7, 0
    s_and_b32 s81, s81, 0xffff
    s_mov_b32 s82, 0x100000
    s_mov_b32 s83, 0x00020000
    s_lshl_b32 s84, s2, 6
    v_mov_b32 v1, 0
    s_waitcnt lgkmcnt(0)
    """)
    for i in list(range(n + 1)) + [8, 9]:
        a(f"v_mov_b32 v2, s{60+2*i}")
        a(f"buffer_store_dword v2, v1, s[80:83], s84 offen offset:{4*i}")

def rho_of_row(i):
    if i < 8: return i
    if i < 12: return 256 + 2 * (i - 8)
    if i < 16: return 512 + 4 * ((i - 12) & 1) + 256 * ((i - 12) >> 1)
    if i < 20: return 1024 + 256 * (i - 16)
    return 2048

KSTEPS = [(0, b) for b in range(8)] + [(1,0),(1,2),(1,4),(1,6),(1,1),(1,3),(2,0),(2,4),(2,1),(2,3),(3,0),(3,4),(3,1)] \
       + [(1,5),(1,7),(2,2),(2,5),(2,6),(2,7),(3,2),(3,3),(3,5),(3,6),(3,7)]
def rho_of_step(m, b):
    if m == 0 or b not in (1, 3): return 256 * m + b
    return 256 * (m + (3 if b == 1 else 6))
ROWSLOT = {rho_of_step(m, b): s for s, (m, b) in enumerate(KSTEPS[:21])}
COLSLOT = {8 * m + b: s for s, (m, b) in enumerate(KSTEPS)}

N_LN = 256
N_KG = int(os.environ.get('NKG', '256'))
K1_LDS = 53632
LRS = 1088

def gen_k1(a):
    a.label("k1_kernel")
    a(f"""
    s_cmp_ge_u32 s2, {N_LN + N_KG}
    s_cbranch_scc1 k1_done
    v_lshrrev_b32 v1, 6, v0
    v_and_b32 v2, 63, v0              ; lane
    s_load_dwordx2 s[6:7], s[0:1], 112 ; ws
    v_readfirstlane_b32 s3, v1
    s_cmp_lt_u32 s2, {N_KG}
    s_cbranch_scc1 k1_kg
    {'s_branch k1_done' if 'k1_noln' in VAR else ''}
    s_load_dwordx2 s[4:5], s[0:1], 0  ; x
    s_setprio {os.environ.get('PLN', '0')}
    s_load_dwordx8 s[40:47], s[0:1], 8
    s_load_dwordx4 s[48:51], s[0:1], 40
    v_lshlrev_b32 v3, 4, v2           ; lane*16
    s_movk_i32 s22, {XT_RS}
    v_mul_lo_u32 v5, v0, s22          ; t*4224
    s_waitcnt lgkmcnt(0)
    """)
    stamp(a, 0)
    srd_off(a, 16, 6, 7, XT0_OFF, XT_SZ)
    srd(a, 8, 4, 5, 0x200000)
    srd(a, 12, 6, 7, 0x200000)
    a(f"""
    s_and_b32 s20, s2, 7
    s_lshl_b32 s20, s20, 5
    s_sub_u32 s21, s2, {N_KG}
    s_lshr_b32 s21, s21, 3
    s_add_u32 s20, s20, s21           ; rb
    s_lshl_b32 s21, s20, 13           ; rb*8*1024
    s_lshl_b32 s22, s3, 11
    s_add_u32 s21, s21, s22           ; + 2*wave*1024
    buffer_load_dwordx4 v[10:13], v3, s[8:11], s21 offen
    buffer_load_dwordx4 v[14:17], v3, s[8:11], s21 offen offset:1024
    """)
    NPF = 0
    if 'nopf' not in VAR and N_KG == 256:
        a(f"""
        s_lshl_b32 s22, s2, 8                ; (256 + i) * 256
        v_lshl_add_u32 v66, v2, 2, s22
        """)
        for lo in [40, 42, 44, 46, 48, 50]:
            srd(a, 28, lo, lo + 1, 512 * 256)
            a("buffer_load_dword v68, v66, s[28:31], 0 offen")
        NPF = 6
    a(f"""
    s_mov_b32 s23, 0xffff0000
    s_mov_b32 s34, 0x3b000000         ; 1/512
    s_mov_b32 s35, 0x3727c5ac         ; 1e-5f
    s_mul_i32 s22, s3, {2*LRS}
    v_add_u32 v4, s22, v3
    v_bfe_u32 v6, v2, 2, 2
    v_mul_u32_u24 v6, {LRS}, v6
    v_lshrrev_b32 v7, 4, v0
    v_lshl_add_u32 v6, v7, 5, v6
    v_and_b32 v7, 3, v2
    v_lshl_add_u32 v6, v7, 3, v6
    s_lshl_b32 s24, s20, 4
    s_add_u32 s24, s24, 64
    s_add_u32 s25, s24, {256*XT_RS:#x}
    v_and_b32 v8, 7, v0               ; row
    v_lshrrev_b32 v9, 3, v0           ; chunk (0..31)
    v_mul_u32_u24 v7, {LRS}, v8
    v_lshl_add_u32 v7, v9, 4, v7
    v_lshlrev_b32 v9, 9, v9
    v_lshl_add_u32 v9, v8, 4, v9
    v_mov_b32 v8, v7
    s_lshr_b32 s21, s20, 2
    s_lshl_b32 s21, s21, 15           ; rowblock*32768
    s_and_b32 s22, s20, 3
    s_lshl_b32 s22, s22, 7
    s_add_u32 s21, s21, s22           ; + (rb&3)*128
    s_add_u32 s22, s21, 0x4000        ; chunks 32..63
    """)
    X = [20, 28]
    S = [36, 37]
    for r in range(2):
        a(f"s_waitcnt vmcnt({NPF+1-r})")
        for j in range(4):
            a(f"v_lshlrev_b32 v{X[r]+2*j}, 16, v{10+4*r+j}")
            a(f"v_and_b32 v{X[r]+2*j+1}, s23, v{10+4*r+j}")
        t = 40 + 4 * r
        a(f"""
        v_add_f32 v{t}, v{X[r]}, v{X[r]+1}
        v_add_f32 v{t+1}, v{X[r]+2}, v{X[r]+3}
        v_add_f32 v{t+2}, v{X[r]+4}, v{X[r]+5}
        v_add_f32 v{t+3}, v{X[r]+6}, v{X[r]+7}
        v_add_f32 v{t}, v{t}, v{t+1}
        v_add_f32 v{t+2}, v{t+2}, v{t+3}
        v_add_f32 v{S[r]}, v{t}, v{t+2}
        """)
    def wave_reduce():
        for ctrl in ["row_shr:1", "row_shr:2", "row_shr:4", "row_shr:8"]:
            for r in range(2):
                a(f"v_add_f32_dpp v{S[r]}, v{S[r]}, v{S[r]} {ctrl} row_mask:0xf bank_mask:0xf bound_ctrl:0")
            a("s_nop 0")
        for r in range(2):
            a(f"v_add_f32_dpp v{S[r]}, v{S[r]}, v{S[r]} row_bcast:15 row_mask:0xa bank_mask:0xf")
        a("s_nop 0")
        for r in range(2):
            a(f"v_add_f32_dpp v{S[r]}, v{S[r]}, v{S[r]} row_bcast:31 row_mask:0xc bank_mask:0xf")
        a("s_nop 1")
        for r in range(2):
            a(f"v_readlane_b32 s{26+r}, v{S[r]}, 63")
        a("s_nop 1")
    stamp(a, 1)
    wave_reduce()
    M = [38, 39]
    for r in range(2):
        a(f"v_mov_b32 v{M[r]}, s{26+r}")
        a(f"v_mul_f32 v{M[r]}, s34, v{M[r]}")
    for r in range(2):
        t = 40 + 10 * r
        for k in range(8):
            a(f"v_sub_f32 v{t+k}, v{X[r]+k}, v{M[r]}")
        a(f"v_mul_f32 v{S[r]}, v{t}, v{t}")
        a(f"v_mul_f32 v{t+8}, v{t+1}, v{t+1}")
        for k in range(2, 8, 2):
            a(f"v_fmac_f32 v{S[r]}, v{t+k}, v{t+k}")
            a(f"v_fmac_f32 v{t+8}, v{t+k+1}, v{t+k+1}")
        a(f"v_add_f32 v{S[r]}, v{S[r]}, v{t+8}")
    a("s_nop 1")
    wave_reduce()
    RI = [60, 61]
    for r in range(2):
        t = 40 + 4 * r
        a(f"""
        v_mov_b32 v{t}, s{26+r}
        v_mul_f32 v{t}, s34, v{t}
        v_cvt_pk_bf16_f32 v{t}, v{t}, v{t}
        v_and_b32 v{t}, s23, v{t}
        v_add_f32 v{t}, s35, v{t}
        v_cvt_pk_bf16_f32 v{t}, v{t}, v{t}
        v_and_b32 v{t}, s23, v{t}
        v_sqrt_f32 v{t+1}, v{t}
        v_cvt_pk_bf16_f32 v{M[r]}, v{M[r]}, v{M[r]}
        v_rcp_f32 v{t+2}, v{t+1}
        v_and_b32 v{M[r]}, s23, v{M[r]}
        v_fma_f32 v{t+3}, -v{t+1}, v{t+1}, v{t}
        v_mul_f32 v{t+2}, 0.5, v{t+2}
        v_fma_f32 v{t+1}, v{t+3}, v{t+2}, v{t+1}
        v_cvt_pk_bf16_f32 v{t+1}, v{t+1}, v{t+1}
        v_and_b32 v{t+1}, s23, v{t+1}
        v_rcp_f32 v{RI[r]}, v{t+1}
        """)
    for r in range(2):
        for k in range(8):
            a(f"v_sub_f32 v{X[r]+k}, v{X[r]+k}, v{M[r]}")
        for j in range(4):
            a(f"v_cvt_pk_bf16_f32 v{10+4*r+j}, v{X[r]+2*j}, v{X[r]+2*j+1}")
        for j in range(4):
            a(f"v_lshlrev_b32 v{X[r]+2*j}, 16, v{10+4*r+j}")
            a(f"v_and_b32 v{X[r]+2*j+1}, s23, v{10+4*r+j}")
        for k in range(8):
            a(f"v_mul_f32 v{X[r]+k}, v{X[r]+k}, v{RI[r]}")
        for j in range(4):
            a(f"v_cvt_pk_bf16_f32 v{10+4*r+j}, v{X[r]+2*j}, v{X[r]+2*j+1}")
        a(f"ds_write_b128 v4, v[{10+4*r}:{13+4*r}] offset:{r*LRS}")
    a("""
    s_waitcnt lgkmcnt(0)
    s_barrier
    """)
    stamp(a, 2)
    a(f"""
    ds_read_b64_tr_b16 v[20:21], v6
    ds_read_b64_tr_b16 v[22:23], v6 offset:{4*LRS}
    ds_read_b64_tr_b16 v[24:25], v6 offset:512
    ds_read_b64_tr_b16 v[26:27], v6 offset:{4*LRS+512}
    ds_read_b128 v[28:31], v8
    ds_read_b128 v[32:35], v8 offset:512
    s_waitcnt lgkmcnt(4)
    buffer_store_dwordx4 v[20:23], v5, s[16:19], s24 offen
    s_waitcnt lgkmcnt(2)
    buffer_store_dwordx4 v[24:27], v5, s[16:19], s25 offen
    s_waitcnt lgkmcnt(1)
    buffer_store_dwordx4 v[28:31], v9, s[12:15], s21 offen sc0 sc1
    s_waitcnt lgkmcnt(0)
    buffer_store_dwordx4 v[32:35], v9, s[12:15], s22 offen sc0 sc1
    """)
    stamp_out(a, 0, 3, "k1_done")
    a("s_branch k1_done")
    a.label("k1_kg")
    import gen2
    gen2.kgen(a)
    a.label("k1_done")
    a("s_endpgm")

def descriptor(name, vgpr, sgpr=102):
    acc = (vgpr + 3) // 4 * 4
    return f""".amdhsa_kernel {name}
  .amdhsa_next_free_vgpr {vgpr}
  .amdhsa_next_free_sgpr {sgpr}
  .amdhsa_accum_offset {acc}
  .amdhsa_group_segment_fixed_size 0
  .amdhsa_kernarg_size 120
  .amdhsa_user_sgpr_count 2
  .amdhsa_user_sgpr_kernarg_segment_ptr 1
  .amdhsa_system_sgpr_workgroup_id_x 1
  .amdhsa_float_denorm_mode_32 3
.end_amdhsa_kernel
"""

def main():
    kernels = []
    launches = []
    a = Asm()
    gen_k1(a)
    kernels.append(("k1_kernel", a.text(), 128))
    launches.append(f"; @launch kernel=k1_kernel grid=({N_LN+N_KG},1,1) block=(256,1,1) lds={K1_LDS}")
    try:
        import gen2
        gen2.add(kernels, launches)
    except ImportError:
        pass
    hdr = open("cdna_kernels/" + NAME + ".s.ref").read().split("\n")
    out = []
    for l in hdr:
        if l.startswith("; @launch"):
            break
        out.append(l)
    out += launches
    out.append('.amdgcn_target "amdgcn-amd-amdhsa--gfx950"')
    out.append(".text")
    for name, text, vg in kernels:
        out.append(f".globl {name}")
        out.append(".p2align 8")
        out.append(f".type {name},@function")
        out.append(text)
    out.append('.section .rodata,"a"')
    for name, text, vg in kernels:
        out.append(".p2align 6")
        out.append(descriptor(name, vg))
    open(os.environ.get("OUT", "cdna_kernels/" + NAME + ".s"), "w").write("\n".join(out))

if __name__ == "__main__":
    main()
```

```python
from gen import *

N_G1 = 240
N_CV = 512
PS = int(os.environ.get('PS', '4384'))
K2_LDS = max(8 * PS + 12288 + 3072, 26880 + 26752)
UH = 0
KHL = 8 * PS

PR = [int(x) for x in os.environ.get('PR', '2,0,2,2,0,2,0,2').split(',')]
_pl = [0]
def prio2(a, pa, pb):
    if 'noprio' in VAR: return
    if pa == pb:
        a(f"s_setprio {pa}"); return
    _pl[0] += 1
    a(f"""
    s_setprio {pa}
    s_cmp_lt_u32 s20, 256
    s_cbranch_scc1 k2_pr{_pl[0]}
    s_setprio {pb}
    """)
    a.label(f"k2_pr{_pl[0]}")

def kgen(a):
    LUTB = 26752
    a(f"""
    s_load_dwordx8 s[40:47], s[0:1], 8
    s_load_dwordx4 s[48:51], s[0:1], 40
    s_load_dwordx2 s[52:53], s[0:1], 56    ; log_dt
    s_mov_b32 s20, s2                     ; d
    s_lshl_b32 s27, s20, 8                ; d*256 bytes
    s_lshl_b32 s28, s3, 6
    s_add_u32 s27, s27, s28
    v_and_b32 v4, 31, v2                  ; i / j
    v_lshrrev_b32 v6, 5, v2               ; half
    v_lshlrev_b32 v7, 1, v4
    v_add_u32 v7, s27, v7
    s_lshl_b32 s27, s20, 1
    v_mov_b32 v14, s27                    ; 2*d
    s_waitcnt lgkmcnt(0)
    global_load_ushort v80, v7, s[40:41]
    global_load_ushort v81, v7, s[42:43]
    global_load_ushort v82, v7, s[44:45]
    global_load_ushort v83, v7, s[46:47]
    global_load_ushort v84, v7, s[48:49]
    global_load_ushort v85, v7, s[50:51]
    global_load_ushort v86, v14, s[52:53]
    """)
    stamp(a, 0)
    srd_off(a, 8, 6, 7, XT0_OFF, XT_SZ)
    srd_off(a, 12, 6, 7, KH_OFF, 0x400000)
    def RA(i):
        sl = ROWSLOT[rho_of_row(i)]
        return (sl >> 3) * 1024 + ((sl >> 2) & 1) * 512 + (sl & 3) * 4
    cw = [sum(COLSLOT[4*k+j] << (8*j) for j in range(4)) for k in range(8)]
    r0 = [RA(i) for i in [0, 8, 12, 14, 16, 17, 18, 19, 20]] + [0]
    rw = [r0[2*k] | (r0[2*k+1] << 16) for k in range(5)]
    a("v_mov_b32 v30, 0")
    for k in range(8):
        a(f"v_mov_b32 v{16+k}, {cw[k]:#x}")
    a(f"ds_write_b128 v30, v[16:19] offset:{LUTB}")
    a(f"ds_write_b128 v30, v[20:23] offset:{LUTB+16}")
    for k in range(5):
        a(f"v_mov_b32 v{24+k}, {rw[k]:#x}")
    a(f"""
    ds_write_b128 v30, v[24:27] offset:{LUTB+32}
    ds_write_b32 v30, v28 offset:{LUTB+48}
    v_sub_u32 v3, 0xff, v0               ; q
    v_sub_u32 v14, 0x100, v0             ; q+1
    v_and_b32 v16, 31, v3
    v_and_b32 v17, 31, v14
    v_lshrrev_b32 v18, 5, v3
    v_lshrrev_b32 v19, 5, v14
    v_lshlrev_b32 v18, 1, v18
    v_lshlrev_b32 v19, 1, v19
    ds_read_u8 v16, v16 offset:{LUTB}
    ds_read_u16 v18, v18 offset:{LUTB+32}
    ds_read_u8 v17, v17 offset:{LUTB}
    ds_read_u16 v19, v19 offset:{LUTB+32}
    v_lshlrev_b32 v5, 4, v0              ; 16*t
    v_and_b32 v15, 1, v3
    v_lshlrev_b32 v3, 5, v0              ; 32*t
    v_cmp_eq_u32 vcc, 1, v15             ; q odd
    s_cmp_eq_u32 s3, 2
    s_waitcnt lgkmcnt(0)
    v_lshl_add_u32 v16, v16, 4, v18      ; A0
    v_lshl_add_u32 v17, v17, 4, v19      ; A1
    s_cbranch_scc1 k1_ad_w2
    s_cmp_eq_u32 s3, 3
    s_cbranch_scc1 k1_ad_w3
    """)
    M = 0xffffffff
    for i in range(8):
        e = 7 - i
        if i == 4: a(f"v_cndmask_b32 v{60+e}, v16, v17, vcc")
        else: a(f"v_mov_b32 v{60+e}, v{16 if i < 4 else 17}")
    a("s_branch k1_ad_done")
    a.label("k1_ad_w2")
    a(f"""
    v_add_u32 v18, {(RA(13) - RA(12)) & M:#x}, v16
    s_mov_b32 exec_hi, 0
    v_add_u32 v18, {(RA(15) - RA(14)) & M:#x}, v16
    s_mov_b32 exec_hi, -1
    """)
    for i in range(8):
        a(f"v_mov_b32 v{67-i}, v{[16,16,16,18,18,18,17,17][i]}")
    a("s_branch k1_ad_done")
    a.label("k1_ad_w3")
    for i in range(8):
        a(f"v_add_u32 v{67-i}, {(RA(i) - RA(0)) & M:#x}, v16")
    a("s_mov_b32 exec_hi, 0")
    for i, off in enumerate([0, 0, 2, 4, 4, 4, 6]):
        a(f"v_add_u32 v{67-i}, {(RA(8 + off // 2) - RA(8)) & M:#x}, v16")
    a("v_mov_b32 v60, v17")
    a("s_mov_b32 exec_hi, -1")
    a.label("k1_ad_done")
    a(f"""
    s_cmp_lg_u32 s2, 0
    s_cbranch_scc1 k1_kg_notab
    {'s_branch k1_kg_notab' if N_KG == 512 else ''}
    """)
    srd_off(a, 28, 6, 7, TB_OFF, 0x8000)
    a(f"""
    v_mov_b32 v16, 0
    v_mov_b32 v17, 0
    v_mov_b32 v18, 0
    v_mov_b32 v19, 0
    s_movk_i32 s24, 0x4000
    buffer_store_dwordx4 v[60:63], v3, s[28:31], 0 offen
    buffer_store_dwordx4 v[64:67], v3, s[28:31], 0 offen offset:16
    buffer_store_dwordx4 v[16:19], v5, s[28:31], s24 offen
    """)
    a.label("k1_kg_notab")
    TBL = KHL + 12288
    WT = 6656
    P = [None] + [92 + 2 * i for i in range(7)]
    G1, G2, G3, G6 = 106, 108, 110, 112
    A = [114, 116, 118, 120]
    M1, M3 = 122, 124
    AR = 40
    NA = [84, 85, 86, 87]
    def cmul2(d, x, y, d2, x2, y2):
        a(f"""
        v_pk_mul_f32 v[{d}:{d+1}], v[{x}:{x+1}], v[{y}:{y+1}] op_sel:[0,0] op_sel_hi:[0,1]
        v_pk_mul_f32 v[{d2}:{d2+1}], v[{x2}:{x2+1}], v[{y2}:{y2+1}] op_sel:[0,0] op_sel_hi:[0,1]
        v_pk_fma_f32 v[{d}:{d+1}], v[{x}:{x+1}], v[{y}:{y+1}], v[{d}:{d+1}] op_sel:[1,1,0] op_sel_hi:[1,0,1] neg_lo:[1,0,0]
        v_pk_fma_f32 v[{d2}:{d2+1}], v[{x2}:{x2+1}], v[{y2}:{y2+1}], v[{d2}:{d2+1}] op_sel:[1,1,0] op_sel_hi:[1,0,1] neg_lo:[1,0,0]
        """)
    a(f"""
    s_mov_b32 s54, 0
    s_mov_b32 s55, -1
    s_mul_i32 s32, s3, {WT}
    v_lshlrev_b32 v12, 12, v6
    v_add_u32 v12, s32, v12
    v_and_b32 v13, 3, v4
    v_lshl_add_u32 v12, v13, 2, v12
    v_lshrrev_b32 v13, 2, v4
    v_lshl_add_u32 v12, v13, 4, v12
    """)
    for c in range(16):
        a(f"v_xor_b32 v{AR+c}, {16*((c>>1)&7) + 128*(c&1)}, v12")
    a(f"""
    v_mov_b32 v13, s32
    v_cndmask_b32 v13, v13, 0, s[54:55]
    v_sub_u32 v56, v12, v13
    v_mov_b32 v14, 0x41000000             ; 8
    v_cndmask_b32 v12, v14, 1.0, s[54:55] ; c1
    v_cndmask_b32 v13, v14, -1.0, s[54:55] ; c1 (phase)
    v_mov_b32 v14, 0x42800000             ; 64
    v_mov_b32 v15, 0x43800000             ; 256
    v_cndmask_b32 v57, v14, v15, s[54:55] ; c2
    v_cndmask_b32 v58, v14, -v15, s[54:55] ; c2 (phase)
    s_mov_b32 s33, 0x3fb8aa3b             ; log2e
    s_mov_b32 s34, 0x3e22f983             ; 1/(2pi)
    s_mov_b32 s35, 0xffff0000
    s_mov_b32 s36, 0x0000bf80
    s_mov_b32 s37, 0x80000000
    s_waitcnt vmcnt(0)
    """)
    stamp(a, 1)
    a(f"""
    v_lshlrev_b32 v86, 16, v86
    v_mul_f32 v86, s33, v86
    v_exp_f32 v86, v86
    v_lshlrev_b32 v80, 16, v80
    v_lshlrev_b32 v81, 16, v81
    v_lshlrev_b32 v82, 16, v82
    v_lshlrev_b32 v83, 16, v83
    v_lshlrev_b32 v84, 16, v84
    v_lshlrev_b32 v85, 16, v85
    v_cvt_pk_bf16_f32 v86, v86, v86
    v_and_b32 v86, s35, v86               ; dt
    v_mul_f32 v80, v86, v80               ; lr
    v_mul_f32 v81, v86, v81               ; li
    v_mul_f32 v82, v86, v82               ; dBr
    v_mul_f32 v83, v86, v83               ; dBi
    v_mul_f32 v88, s33, v80               ; lr2
    v_mul_f32 v89, s34, v81               ; lif
    v_mul_f32 v68, v88, v12
    v_mul_f32 v69, v89, v13
    v_mul_f32 v70, v88, v57
    v_mul_f32 v71, v89, v58
    v_exp_f32 v68, v68
    v_fract_f32 v69, v69
    v_exp_f32 v70, v70
    v_fract_f32 v71, v71
    v_cos_f32 v{P[1]}, v69
    v_sin_f32 v{P[1]+1}, v69
    v_cos_f32 v{G1}, v71
    v_sin_f32 v{G1+1}, v71
    v_mul_f32 v90, v84, v82
    v_fma_f32 v90, -v85, v83, v90         ; CBr
    v_mul_f32 v91, v84, v83
    v_fma_f32 v91, v85, v82, v91          ; CBi
    v_mul_f32 v{P[1]}, v68, v{P[1]}
    v_mul_f32 v{P[1]+1}, v68, v{P[1]+1}
    v_mul_f32 v{G1}, v70, v{G1}
    v_mul_f32 v{G1+1}, v70, v{G1+1}
    v_cndmask_b32 v{A[0]}, 1.0, v90, s[54:55]
    v_cndmask_b32 v{A[0]+1}, 0, -v91, s[54:55]
    """)
    cmul2(P[2], P[1], P[1], G2, G1, G1)
    cmul2(P[3], P[2], P[1], G3, G2, G1)
    cmul2(P[4], P[2], P[2], A[1], A[0], G1)
    cmul2(P[6], P[3], P[3], G6, G3, G3)
    cmul2(P[5], P[4], P[1], A[2], A[0], G2)
    cmul2(P[7], P[4], P[3], A[3], A[0], G3)
    a(f"""
    v_cndmask_b32 v{M1}, v{P[1]}, v{G3}, s[54:55]
    v_cndmask_b32 v{M1+1}, v{P[1]+1}, v{G3+1}, s[54:55]
    v_cndmask_b32 v{M3}, v{P[3]}, v{G6}, s[54:55]
    v_cndmask_b32 v{M3+1}, v{P[3]+1}, v{G6+1}, s[54:55]
    v_xor_b32 v{NA[0]}, s37, v{A[0]+1}
    v_xor_b32 v{NA[1]}, s37, v{A[1]+1}
    v_xor_b32 v{NA[2]}, s37, v{A[2]+1}
    v_xor_b32 v{NA[3]}, s37, v{A[3]+1}
    """)
    def src_of(m, b):
        if b == 0: return None
        if m > 0 and b == 1: return M1
        if m > 0 and b == 3: return M3
        return P[b]
    def pair(p):
        pr = []
        for k in range(2):
            st_ = 2 * p + k
            m, b = KSTEPS[st_]
            pr.append((st_, m, b, 68 + 4 * ((p & 1) * 2 + k)))
        return pr
    def stA(p):
        n = 0
        for (st_, m, b, T) in pair(p):
            y = src_of(m, b)
            if y is not None:
                a(f"v_pk_mul_f32 v[{T}:{T+1}], v[{A[m]}:{A[m]+1}], v[{y}:{y+1}] op_sel:[0,0] op_sel_hi:[0,1]")
        for (st_, m, b, T) in pair(p):
            y = src_of(m, b)
            if y is not None:
                a(f"v_pk_fma_f32 v[{T}:{T+1}], v[{A[m]}:{A[m]+1}], v[{y}:{y+1}], v[{T}:{T+1}] op_sel:[1,1,0] op_sel_hi:[1,0,1] neg_lo:[1,0,0]")
        return 4
    def stB(p):
        for (st_, m, b, T) in pair(p):
            V = T if b else A[m]
            a(f"v_cvt_pk_bf16_f32 v{T+2}, v{V}, v{V+1}")
        for k, (st_, m, b, T) in enumerate(pair(p)):
            a(f"v_lshlrev_b32 v{88+2*k}, 16, v{T+2}")
            a(f"v_and_b32 v{89+2*k}, s35, v{T+2}")
        for k, (st_, m, b, T) in enumerate(pair(p)):
            V = T if b else A[m]
            a(f"v_pk_add_f32 v[{T}:{T+1}], v[{V}:{V+1}], v[{88+2*k}:{89+2*k}] neg_lo:[0,1] neg_hi:[0,1]")
    def stC(p):
        for (st_, m, b, T) in pair(p):
            a(f"v_cvt_pk_bf16_f32 v{T+3}, v{T}, v{T+1}")
        for (st_, m, b, T) in pair(p):
            if st_ == 21:
                a("s_mov_b32 exec_hi, 0")
            ar = 56 if st_ == 0 else AR + (st_ & 15)
            a(f"ds_write2st64_b32 v{ar}, v{T+2}, v{T+3} offset0:{st_>>1} offset1:{(st_>>1)+105}")
    stA(0); stB(0)
    for p in range(1, 17):
        if p < 16: stA(p)
        stC(p - 1)
        if p < 16: stB(p)
    a(f"""
    s_mov_b64 exec, -1
    v_min_u32 v12, 20, v4
    v_bfe_u32 v13, v12, 1, 3
    v_xor_b32 v13, v13, v6
    v_lshlrev_b32 v13, 4, v13
    v_lshl_add_u32 v12, v12, 7, v13
    s_add_u32 s33, s32, 4096
    v_add_u32 v44, s33, v12               ; RA[0]
    v_bfe_u32 v13, v4, 1, 3
    v_xor_b32 v13, v13, v6
    v_lshlrev_b32 v13, 4, v13
    v_lshl_add_u32 v12, v4, 7, v13
    v_mov_b32 v14, s32
    v_cmp_eq_u32 vcc, 0, v4
    v_xor_b32 v45, 32, v44
    v_cndmask_b32 v14, v14, 0, vcc
    v_add_u32 v48, v14, v12               ; RB[0]
    v_xor_b32 v46, 64, v44
    v_xor_b32 v47, 96, v44
    v_xor_b32 v49, 32, v48
    v_xor_b32 v50, 64, v48
    v_xor_b32 v51, 96, v48
    s_waitcnt lgkmcnt(0)
    """)
    stamp(a, 2)
    FR = [68 + 4 * i for i in range(15)] + [40]
    for g in range(4):
        a(f"ds_read_b128 v[{FR[4*g]}:{FR[4*g]+3}], v{44+g}")
        a(f"ds_read_b128 v[{FR[4*g+1]}:{FR[4*g+1]+3}], v{48+g} offset:26880")
        a(f"ds_read_b128 v[{FR[4*g+2]}:{FR[4*g+2]+3}], v{44+g} offset:26880")
        a(f"ds_read_b128 v[{FR[4*g+3]}:{FR[4*g+3]+3}], v{48+g}")
    KA = 16
    for g in range(4):
        AH, BL, AL, BH = FR[4*g:4*g+4]
        a(f"s_waitcnt lgkmcnt({14 - 4*g})")
        a(f"v_mfma_f32_32x32x16_bf16 v[{KA}:{KA+15}], v[{AH}:{AH+3}], v[{BL}:{BL+3}], {'0' if g == 0 else f'v[{KA}:{KA+15}]'}")
        a(f"s_waitcnt lgkmcnt({12 - 4*g})")
        a(f"v_mfma_f32_32x32x16_bf16 v[{KA}:{KA+15}], v[{AL}:{AL+3}], v[{BH}:{BH+3}], v[{KA}:{KA+15}]")
        a(f"v_mfma_f32_32x32x16_bf16 v[{KA}:{KA+15}], v[{AH}:{AH+3}], v[{BH}:{BH+3}], v[{KA}:{KA+15}]")
    a(f"""
    v_lshlrev_b32 v7, 4, v2
    v_add_u32 v7, s32, v7
    v_and_b32 v12, 3, v0
    v_mul_u32_u24 v12, 96, v12
    v_lshrrev_b32 v14, 2, v0
    v_add_u32 v12, v12, v14
    v_lshlrev_b32 v12, 4, v12             ; 16*pos(t)
    s_nop 7
    s_nop 4
    ds_write_b128 v7, v[{KA}:{KA+3}] offset:512
    ds_write_b128 v7, v[{KA+4}:{KA+7}] offset:{512+1024}
    ds_write_b128 v7, v[{KA+8}:{KA+11}] offset:{512+2048}
    s_waitcnt lgkmcnt(0)
    s_barrier
    s_cmp_eq_u32 s3, 3
    s_cbranch_scc1 k1_kg_nored
    ds_read_b128 v[16:19], v5 offset:512
    ds_read_b128 v[20:23], v5 offset:{512+WT}
    ds_read_b128 v[24:27], v5 offset:{512+2*WT}
    ds_read_b128 v[28:31], v5 offset:{512+3*WT}
    s_waitcnt lgkmcnt(0)
    v_add_f32 v16, v16, v20
    v_add_f32 v17, v17, v21
    v_add_f32 v18, v18, v22
    v_add_f32 v19, v19, v23
    v_add_f32 v24, v24, v28
    v_add_f32 v25, v25, v29
    v_add_f32 v26, v26, v30
    v_add_f32 v27, v27, v31
    v_add_f32 v16, v16, v24
    v_add_f32 v17, v17, v25
    v_add_f32 v18, v18, v26
    v_add_f32 v19, v19, v27
    ds_write_b128 v5, v[16:19] offset:{TBL}
    """)
    a("s_branch k1_kg_red")
    a.label("k1_kg_nored")
    a(f"""
    v_mov_b32 v16, 0
    v_mov_b32 v17, 0
    v_mov_b32 v18, 0
    v_mov_b32 v19, 0
    v_and_b32 v20, 3, v2
    v_lshlrev_b32 v20, 4, v20
    s_mul_i32 s23, s20, {XT_RS}
    s_add_u32 s24, s23, {256*XT_RS:#x}
    buffer_store_dwordx4 v[16:19], v20, s[8:11], s23 offen
    {'buffer_store_dwordx4 v[16:19], v20, s[8:11], s24 offen' if N_KG == 256 else ''}
    """)
    a.label("k1_kg_red")
    a(f"""
    s_lshl_b32 s24, s20, 13
    s_waitcnt lgkmcnt(0)
    s_barrier
    """)
    stamp(a, 3)
    for e in range(8):
        a(f"ds_read_b32 v{16+e}, v{60+e} offset:{TBL}")
    a("s_waitcnt lgkmcnt(0)")
    for e in range(0, 8, 2):
        a(f"v_cvt_pk_bf16_f32 v{32+e//2}, v{16+e}, v{17+e}")
    a("buffer_store_dwordx4 v[32:35], v3, s[12:15], s24 offen")
    for e in range(0, 8, 2):
        a(f"v_lshlrev_b32 v{24+e}, 16, v{32+e//2}")
        a(f"v_and_b32 v{25+e}, s35, v{32+e//2}")
    for e in range(8):
        a(f"v_sub_f32 v{16+e}, v{16+e}, v{24+e}")
    for e in range(0, 8, 2):
        a(f"v_cvt_pk_bf16_f32 v{36+e//2}, v{16+e}, v{17+e}")
    a("buffer_store_dwordx4 v[36:39], v3, s[12:15], s24 offen offset:16")
    stamp_out(a, 0, 4, "k1_done")
    a("s_branch k1_done")

def gen_k2(a, k3=False):
    if not k3:
        a.label("k2_kernel")
        a(f"""
    s_cmp_ge_u32 s2, {N_G1 + N_CV + 256}
    s_cbranch_scc1 k2_done
    v_lshrrev_b32 v1, 6, v0
    v_and_b32 v2, 63, v0              ; lane
    s_load_dwordx2 s[6:7], s[0:1], 112 ; ws
    v_readfirstlane_b32 s3, v1
    {f's_cmp_ge_u32 s2, {N_CV}' if 'cvfirst' in VAR else f's_cmp_lt_u32 s2, {N_G1}'}
    s_cbranch_scc1 {'k2_done' if 'k2_nog1' in VAR else 'k2_gemm'}
    {'s_branch k2_done' if 'k2_nocv' in VAR else ''}
    s_cmp_lt_u32 s2, {N_G1 + N_KG}
    s_cbranch_scc1 k2_cvB
    s_cmp_lt_u32 s2, {N_G1 + 512}
    s_cbranch_scc1 k3_gemm
    """)
    a(f"""
    s_load_dwordx2 s[4:5], s[0:1], 64 ; Dskip
    s_load_dwordx2 s[56:57], s[0:1], 88    ; w2
    s_sub_u32 s20, s2, {N_G1 + 512}         ; d
    v_and_b32 v4, 31, v2                  ; i / j
    v_lshrrev_b32 v6, 5, v2               ; half
    s_and_b32 s21, s20, 0x1fe
    s_lshl_b32 s21, s21, 1
    s_mul_i32 s23, s20, {XT_RS}       ; d*4224
    s_add_u32 s26, s23, 48            ; xn[-8]
    s_lshl_b32 s27, s20, 13           ; d*8192
    v_lshlrev_b32 v5, 4, v0           ; 16*t
    v_lshlrev_b32 v3, 5, v0           ; 32*t
    s_waitcnt lgkmcnt(0)
    s_load_dword s22, s[4:5], s21
    """)
    srd_off(a, 8, 6, 7, XT0_OFF, XT_SZ + 4096)
    srd_off(a, 12, 6, 7, KH_OFF, 0x400000)
    AS = 32
    a(f"""
    buffer_load_dwordx4 v[32:35], v5, s[8:11], s26 offen
    buffer_load_dwordx4 v[36:39], v5, s[8:11], s26 offen offset:16
    buffer_load_dwordx4 v[60:63], v3, s[12:15], s27 offen
    buffer_load_dwordx4 v[64:67], v3, s[12:15], s27 offen offset:16
    """)
    stamp(a, 0)
    prio2(a, PR[0], PR[3])
    srd_off(a, 16, 6, 7, YT_OFF, 0x200000)
    a(f"""
    v_and_b32 v15, 3, v0
    v_mul_u32_u24 v15, 96, v15
    v_lshrrev_b32 v14, 2, v0
    v_add_u32 v15, v15, v14
    v_lshlrev_b32 v15, 4, v15             ; 16*pos(t)
    v_mov_b32 v20, 0
    v_mov_b32 v21, 0
    v_mov_b32 v22, 0
    v_mov_b32 v23, 0
    s_cmp_eq_u32 s3, 3
    s_cbranch_scc1 k2_ca_zf
    s_cmp_ge_u32 s3, 2
    s_cbranch_scc1 k2_ca_nozero
    ds_write_b128 v15, v[20:23] offset:{KHL+1024}
    ds_write_b128 v15, v[20:23] offset:{KHL+6144+1024}
    s_branch k2_ca_nozero
    """)
    a.label("k2_ca_zf")
    a(f"""
    v_lshrrev_b32 v16, 3, v2
    v_min_u32 v16, 2, v16
    v_lshlrev_b32 v16, 4, v16
    v_and_b32 v17, 7, v2
    v_mov_b32 v18, {PS}
    v_mad_u32_u24 v16, v17, v18, v16
    ds_write_b128 v16, v[20:23]
    """)
    a.label("k2_ca_nozero")
    a(f"""
    s_lshl_b32 s35, s3, 4             ; c_start
    v_lshrrev_b32 v12, 3, v4
    v_add_u32 v12, v12, v6
    v_lshlrev_b32 v12, 4, v12         ; 16*((b>>3)+kg)
    v_and_b32 v13, 7, v4
    v_mov_b32 v14, {PS}
    v_mad_u32_u24 v12, v13, v14, v12
    s_lshl_b32 s36, s35, 5
    v_add_u32 v12, s36, v12           ; vA (tile1 A address at c_start)
    v_mul_u32_u24 v13, 96, v6
    v_sub_u32 v13, v13, v4
    v_add_u32 v13, 31, v13
    v_lshlrev_b32 v13, 4, v13
    s_lshl_b32 s36, s35, 3            ; 16*(c/2)
    s_add_u32 s36, s36, {KHL}
    v_add_u32 v13, s36, v13           ; vB
    """)
    a("s_waitcnt vmcnt(2)")
    stamp(a, 1)
    a(f"ds_write_b128 v5, v[34:37] offset:{3*PS + 48}")
    a(f"ds_write_b128 v5, v[36:39] offset:{7*PS + 48}")
    for k in range(6):
        a(f"v_alignbit_b32 v{40+k}, v{33+k}, v{32+k}, 16")
    a(f"ds_write_b128 v5, v[40:43] offset:{0*PS + 48}")
    a(f"ds_write_b128 v5, v[42:45] offset:{4*PS + 48}")
    for k in range(6):
        a(f"v_mov_b32 v{48+k}, v{33+k}")
    a(f"ds_write_b128 v5, v[48:51] offset:{1*PS + 48}")
    a(f"ds_write_b128 v5, v[50:53] offset:{5*PS + 48}")
    for k in range(6):
        a(f"v_alignbit_b32 v{54+k}, v{34+k}, v{33+k}, 16")
    a(f"ds_write_b128 v5, v[54:57] offset:{2*PS + 48}")
    a(f"ds_write_b128 v5, v[56:59] offset:{6*PS + 48}")
    for k in range(4):
        a(f"v_mov_b32 v{8+k}, v{36+k}")
    a(f"""
    s_waitcnt vmcnt(1)
    ds_write_b128 v15, v[60:63] offset:{KHL}
    s_waitcnt vmcnt(0)
    ds_write_b128 v15, v[64:67] offset:{KHL+6144}
    """)
    stamp(a, 2)
    stamp(a, 3)
    a("s_branch k2_cv_join")
    a.label("k2_cvB")
    a(f"""
    s_load_dwordx2 s[4:5], s[0:1], 64 ; Dskip
    s_load_dwordx8 s[40:47], s[0:1], 8
    s_load_dwordx4 s[48:51], s[0:1], 40
    s_load_dwordx2 s[52:53], s[0:1], 56    ; log_dt
    s_load_dwordx2 s[56:57], s[0:1], 88    ; w2
    s_add_u32 s20, s2, {256 - N_G1}         ; d
    s_lshl_b32 s27, s20, 8                ; d*256 bytes
    s_lshl_b32 s28, s3, 6
    s_add_u32 s27, s27, s28
    v_and_b32 v4, 31, v2                  ; i / j
    v_lshrrev_b32 v6, 5, v2               ; half
    v_lshlrev_b32 v7, 1, v4
    v_add_u32 v7, s27, v7
    s_lshl_b32 s27, s20, 1
    v_mov_b32 v14, s27                    ; 2*d
    s_waitcnt lgkmcnt(0)
    global_load_ushort v80, v7, s[40:41]
    global_load_ushort v81, v7, s[42:43]
    global_load_ushort v82, v7, s[44:45]
    global_load_ushort v83, v7, s[46:47]
    global_load_ushort v84, v7, s[48:49]
    global_load_ushort v85, v7, s[50:51]
    global_load_ushort v86, v14, s[52:53]
    s_and_b32 s21, s20, 0x1fe
    s_lshl_b32 s21, s21, 1
    s_load_dword s22, s[4:5], s21
    """)
    stamp(a, 0)
    prio2(a, PR[0], PR[3])
    srd_off(a, 8, 6, 7, XT0_OFF, XT_SZ + 4096)
    srd_off(a, 16, 6, 7, YT_OFF, 0x200000)
    AS = 32
    srd_off(a, 12, 6, 7, TB_OFF, 8192)
    a(f"""
    s_mul_i32 s23, s20, {XT_RS}       ; d*4224
    s_add_u32 s26, s23, 48            ; xn[-8]
    v_lshlrev_b32 v5, 4, v0           ; 16*t
    v_lshlrev_b32 v3, 5, v0           ; 32*t
    buffer_load_dwordx4 v[32:35], v5, s[8:11], s26 offen
    buffer_load_dwordx4 v[36:39], v5, s[8:11], s26 offen offset:16
    buffer_load_dwordx4 v[60:63], v3, s[12:15], 0 offen
    buffer_load_dwordx4 v[64:67], v3, s[12:15], 0 offen offset:16
    """)
    TBL = KHL + 12288
    WT = 6656
    P = [None] + [92 + 2 * i for i in range(7)]
    G1, G2, G3, G6 = 106, 108, 110, 112
    A = [114, 116, 118, 120]
    M1, M3 = 122, 124
    AR = 40
    NA = [84, 85, 86, 87]
    def cmul2(d, x, y, d2, x2, y2):
        a(f"""
        v_mul_f32 v{d}, v{x}, v{y}
        v_mul_f32 v{d+1}, v{x}, v{y+1}
        v_mul_f32 v{d2}, v{x2}, v{y2}
        v_mul_f32 v{d2+1}, v{x2}, v{y2+1}
        v_fma_f32 v{d}, -v{x+1}, v{y+1}, v{d}
        v_fmac_f32 v{d+1}, v{x+1}, v{y}
        v_fma_f32 v{d2}, -v{x2+1}, v{y2+1}, v{d2}
        v_fmac_f32 v{d2+1}, v{x2+1}, v{y2}
        """)
    a(f"""
    s_mov_b32 s54, 0
    s_mov_b32 s55, -1
    s_mul_i32 s32, s3, {WT}
    v_lshlrev_b32 v12, 12, v6
    v_add_u32 v12, s32, v12
    v_and_b32 v13, 3, v4
    v_lshl_add_u32 v12, v13, 2, v12
    v_lshrrev_b32 v13, 2, v4
    v_lshl_add_u32 v12, v13, 4, v12
    """)
    for c in range(16):
        a(f"v_xor_b32 v{AR+c}, {16*((c>>1)&7) + 128*(c&1)}, v12")
    a(f"""
    v_mov_b32 v13, s32
    v_cndmask_b32 v13, v13, 0, s[54:55]
    v_sub_u32 v56, v12, v13
    v_mov_b32 v14, 0x41000000             ; 8
    v_cndmask_b32 v12, v14, 1.0, s[54:55] ; c1
    v_cndmask_b32 v13, v14, -1.0, s[54:55] ; c1 (phase)
    v_mov_b32 v14, 0x42800000             ; 64
    v_mov_b32 v15, 0x43800000             ; 256
    v_cndmask_b32 v57, v14, v15, s[54:55] ; c2
    v_cndmask_b32 v58, v14, -v15, s[54:55] ; c2 (phase)
    s_mov_b32 s33, 0x3fb8aa3b             ; log2e
    s_mov_b32 s34, 0x3e22f983             ; 1/(2pi)
    s_mov_b32 s35, 0xffff0000
    s_mov_b32 s36, 0x0000bf80
    s_mov_b32 s37, 0x80000000
    s_waitcnt vmcnt(4)
    """)
    stamp(a, 1)
    a(f"""
    v_lshlrev_b32 v86, 16, v86
    v_mul_f32 v86, s33, v86
    v_exp_f32 v86, v86
    v_lshlrev_b32 v80, 16, v80
    v_lshlrev_b32 v81, 16, v81
    v_lshlrev_b32 v82, 16, v82
    v_lshlrev_b32 v83, 16, v83
    v_lshlrev_b32 v84, 16, v84
    v_lshlrev_b32 v85, 16, v85
    v_cvt_pk_bf16_f32 v86, v86, v86
    v_and_b32 v86, s35, v86               ; dt
    v_mul_f32 v80, v86, v80               ; lr
    v_mul_f32 v81, v86, v81               ; li
    v_mul_f32 v82, v86, v82               ; dBr
    v_mul_f32 v83, v86, v83               ; dBi
    v_mul_f32 v88, s33, v80               ; lr2
    v_mul_f32 v89, s34, v81               ; lif
    v_mul_f32 v68, v88, v12
    v_mul_f32 v69, v89, v13
    v_mul_f32 v70, v88, v57
    v_mul_f32 v71, v89, v58
    v_exp_f32 v68, v68
    v_fract_f32 v69, v69
    v_exp_f32 v70, v70
    v_fract_f32 v71, v71
    v_cos_f32 v{P[1]}, v69
    v_sin_f32 v{P[1]+1}, v69
    v_cos_f32 v{G1}, v71
    v_sin_f32 v{G1+1}, v71
    v_mul_f32 v90, v84, v82
    v_fma_f32 v90, -v85, v83, v90         ; CBr
    v_mul_f32 v91, v84, v83
    v_fma_f32 v91, v85, v82, v91          ; CBi
    v_mul_f32 v{P[1]}, v68, v{P[1]}
    v_mul_f32 v{P[1]+1}, v68, v{P[1]+1}
    v_mul_f32 v{G1}, v70, v{G1}
    v_mul_f32 v{G1+1}, v70, v{G1+1}
    v_cndmask_b32 v{A[0]}, 1.0, v90, s[54:55]
    v_cndmask_b32 v{A[0]+1}, 0, -v91, s[54:55]
    """)
    cmul2(P[2], P[1], P[1], G2, G1, G1)
    cmul2(P[3], P[2], P[1], G3, G2, G1)
    cmul2(P[4], P[2], P[2], A[1], A[0], G1)
    cmul2(P[6], P[3], P[3], G6, G3, G3)
    cmul2(P[5], P[4], P[1], A[2], A[0], G2)
    cmul2(P[7], P[4], P[3], A[3], A[0], G3)
    a(f"""
    v_cndmask_b32 v{M1}, v{P[1]}, v{G3}, s[54:55]
    v_cndmask_b32 v{M1+1}, v{P[1]+1}, v{G3+1}, s[54:55]
    v_cndmask_b32 v{M3}, v{P[3]}, v{G6}, s[54:55]
    v_cndmask_b32 v{M3+1}, v{P[3]+1}, v{G6+1}, s[54:55]
    v_xor_b32 v{NA[0]}, s37, v{A[0]+1}
    v_xor_b32 v{NA[1]}, s37, v{A[1]+1}
    v_xor_b32 v{NA[2]}, s37, v{A[2]+1}
    v_xor_b32 v{NA[3]}, s37, v{A[3]+1}
    """)
    def src_of(m, b):
        if b == 0: return None
        if m > 0 and b == 1: return M1
        if m > 0 and b == 3: return M3
        return P[b]
    def pair(p):
        pr = []
        for k in range(2):
            st_ = 2 * p + k
            m, b = KSTEPS[st_]
            pr.append((st_, m, b, 68 + 4 * ((p & 1) * 2 + k)))
        return pr
    def stA(p):
        n = 0
        for (st_, m, b, T) in pair(p):
            y = src_of(m, b)
            if y is not None:
                a(f"v_mul_f32 v{T}, v{A[m]}, v{y}")
                a(f"v_mul_f32 v{T+1}, v{A[m]}, v{y+1}"); n += 2
        for (st_, m, b, T) in pair(p):
            y = src_of(m, b)
            if y is not None:
                a(f"v_fmac_f32 v{T}, v{NA[m]}, v{y+1}")
                a(f"v_fmac_f32 v{T+1}, v{A[m]+1}, v{y}"); n += 2
        return 4
    def stB(p):
        for (st_, m, b, T) in pair(p):
            V = T if b else A[m]
            a(f"v_cvt_pk_bf16_f32 v{T+2}, v{V}, v{V+1}")
        for k, (st_, m, b, T) in enumerate(pair(p)):
            a(f"v_lshlrev_b32 v{88+2*k}, 16, v{T+2}")
            a(f"v_and_b32 v{89+2*k}, s35, v{T+2}")
        for k, (st_, m, b, T) in enumerate(pair(p)):
            V = T if b else A[m]
            a(f"v_sub_f32 v{T}, v{V}, v{88+2*k}")
            a(f"v_sub_f32 v{T+1}, v{V+1}, v{89+2*k}")
    def stC(p):
        for (st_, m, b, T) in pair(p):
            a(f"v_cvt_pk_bf16_f32 v{T+3}, v{T}, v{T+1}")
        for (st_, m, b, T) in pair(p):
            if st_ == 21:
                a("s_mov_b32 exec_hi, 0")
            ar = 56 if st_ == 0 else AR + (st_ & 15)
            a(f"ds_write2st64_b32 v{ar}, v{T+2}, v{T+3} offset0:{st_>>1} offset1:{(st_>>1)+105}")
    stA(0); stB(0)
    for p in range(1, 17):
        if p < 16: stA(p)
        stC(p - 1)
        if p < 16: stB(p)
    a(f"""
    s_mov_b64 exec, -1
    v_min_u32 v12, 20, v4
    v_bfe_u32 v13, v12, 1, 3
    v_xor_b32 v13, v13, v6
    v_lshlrev_b32 v13, 4, v13
    v_lshl_add_u32 v12, v12, 7, v13
    s_add_u32 s33, s32, 4096
    v_add_u32 v44, s33, v12               ; RA[0]
    v_bfe_u32 v13, v4, 1, 3
    v_xor_b32 v13, v13, v6
    v_lshlrev_b32 v13, 4, v13
    v_lshl_add_u32 v12, v4, 7, v13
    v_mov_b32 v14, s32
    v_cmp_eq_u32 vcc, 0, v4
    v_xor_b32 v45, 32, v44
    v_cndmask_b32 v14, v14, 0, vcc
    v_add_u32 v48, v14, v12               ; RB[0]
    v_xor_b32 v46, 64, v44
    v_xor_b32 v47, 96, v44
    v_xor_b32 v49, 32, v48
    v_xor_b32 v50, 64, v48
    v_xor_b32 v51, 96, v48
    s_waitcnt lgkmcnt(0)
    """)
    stamp(a, 2)
    FR = [68 + 4 * i for i in range(15)] + [40]
    for g in range(4):
        a(f"ds_read_b128 v[{FR[4*g]}:{FR[4*g]+3}], v{44+g}")
        a(f"ds_read_b128 v[{FR[4*g+1]}:{FR[4*g+1]+3}], v{48+g} offset:26880")
        a(f"ds_read_b128 v[{FR[4*g+2]}:{FR[4*g+2]+3}], v{44+g} offset:26880")
        a(f"ds_read_b128 v[{FR[4*g+3]}:{FR[4*g+3]+3}], v{48+g}")
    KA = 16
    for g in range(4):
        AH, BL, AL, BH = FR[4*g:4*g+4]
        a(f"s_waitcnt lgkmcnt({14 - 4*g})")
        a(f"v_mfma_f32_32x32x16_bf16 v[{KA}:{KA+15}], v[{AH}:{AH+3}], v[{BL}:{BL+3}], {'0' if g == 0 else f'v[{KA}:{KA+15}]'}")
        a(f"s_waitcnt lgkmcnt({12 - 4*g})")
        a(f"v_mfma_f32_32x32x16_bf16 v[{KA}:{KA+15}], v[{AL}:{AL+3}], v[{BH}:{BH+3}], v[{KA}:{KA+15}]")
        a(f"v_mfma_f32_32x32x16_bf16 v[{KA}:{KA+15}], v[{AH}:{AH+3}], v[{BH}:{BH+3}], v[{KA}:{KA+15}]")
    a(f"""
    v_lshlrev_b32 v7, 4, v2
    v_add_u32 v7, s32, v7
    v_and_b32 v12, 3, v0
    v_mul_u32_u24 v12, 96, v12
    v_lshrrev_b32 v14, 2, v0
    v_add_u32 v12, v12, v14
    v_lshlrev_b32 v12, 4, v12             ; 16*pos(t)
    s_nop 7
    s_nop 4
    ds_write_b128 v7, v[{KA}:{KA+3}] offset:512
    ds_write_b128 v7, v[{KA+4}:{KA+7}] offset:{512+1024}
    ds_write_b128 v7, v[{KA+8}:{KA+11}] offset:{512+2048}
    s_waitcnt lgkmcnt(0)
    s_barrier
    s_cmp_eq_u32 s3, 3
    s_cbranch_scc1 k2_cv_nored
    ds_read_b128 v[16:19], v5 offset:512
    ds_read_b128 v[20:23], v5 offset:{512+WT}
    ds_read_b128 v[24:27], v5 offset:{512+2*WT}
    ds_read_b128 v[28:31], v5 offset:{512+3*WT}
    s_waitcnt lgkmcnt(0)
    v_add_f32 v16, v16, v20
    v_add_f32 v17, v17, v21
    v_add_f32 v18, v18, v22
    v_add_f32 v19, v19, v23
    v_add_f32 v24, v24, v28
    v_add_f32 v25, v25, v29
    v_add_f32 v26, v26, v30
    v_add_f32 v27, v27, v31
    v_add_f32 v16, v16, v24
    v_add_f32 v17, v17, v25
    v_add_f32 v18, v18, v26
    v_add_f32 v19, v19, v27
    ds_write_b128 v5, v[16:19] offset:{TBL}
    """)
    a.label("k2_cv_nored")
    a("s_waitcnt vmcnt(0)")
    for k in range(6):
        a(f"v_alignbit_b32 v{40+k}, v{33+k}, v{32+k}, 16")
        a(f"v_mov_b32 v{48+k}, v{33+k}")
        a(f"v_alignbit_b32 v{54+k}, v{34+k}, v{33+k}, 16")
    for k in range(4):
        a(f"v_mov_b32 v{8+k}, v{36+k}")
    a(f"""
    s_waitcnt lgkmcnt(0)
    s_barrier
    """)
    stamp(a, 3)
    for e in range(8):
        a(f"ds_read_b32 v{16+e}, v{60+e} offset:{TBL}")
    for sidx, r in enumerate([40, 48, 54, 34, 42, 50, 56, 36]):
        a(f"ds_write_b128 v5, v[{r}:{r+3}] offset:{sidx*PS + 48}")
    a(f"""
    v_mov_b32 v40, 0
    v_mov_b32 v41, 0
    v_mov_b32 v42, 0
    v_mov_b32 v43, 0
    s_waitcnt lgkmcnt(8)
    """)
    for e in range(0, 8, 2):
        a(f"v_cvt_pk_bf16_f32 v{32+e//2}, v{16+e}, v{17+e}")
    for e in range(0, 8, 2):
        a(f"v_lshlrev_b32 v{24+e}, 16, v{32+e//2}")
        a(f"v_and_b32 v{25+e}, s35, v{32+e//2}")
    for e in range(8):
        a(f"v_sub_f32 v{16+e}, v{16+e}, v{24+e}")
    for e in range(0, 8, 2):
        a(f"v_cvt_pk_bf16_f32 v{36+e//2}, v{16+e}, v{17+e}")
    a(f"""
    ds_write_b128 v12, v[32:35] offset:{KHL}
    ds_write_b128 v12, v[36:39] offset:{KHL+6144}
    s_cmp_eq_u32 s3, 3
    s_cbranch_scc1 k2_cv_zf
    s_cmp_ge_u32 s3, 2
    s_cbranch_scc1 k2_cv_nozero
    ds_write_b128 v12, v[40:43] offset:{KHL+1024}
    ds_write_b128 v12, v[40:43] offset:{KHL+6144+1024}
    s_branch k2_cv_nozero
    """)
    a.label("k2_cv_zf")
    a(f"""
    v_lshrrev_b32 v16, 3, v2
    v_min_u32 v16, 2, v16
    v_lshlrev_b32 v16, 4, v16
    v_and_b32 v17, 7, v2
    v_mov_b32 v18, {PS}
    v_mad_u32_u24 v16, v17, v18, v16
    ds_write_b128 v16, v[40:43]
    """)
    a.label("k2_cv_nozero")
    a(f"""
    s_lshl_b32 s35, s3, 4             ; c_start
    v_lshrrev_b32 v12, 3, v4
    v_add_u32 v12, v12, v6
    v_lshlrev_b32 v12, 4, v12         ; 16*((b>>3)+kg)
    v_and_b32 v13, 7, v4
    v_mov_b32 v14, {PS}
    v_mad_u32_u24 v12, v13, v14, v12
    s_lshl_b32 s36, s35, 5
    v_add_u32 v12, s36, v12           ; vA (tile1 A address at c_start)
    v_mul_u32_u24 v13, 96, v6
    v_sub_u32 v13, v13, v4
    v_add_u32 v13, 31, v13
    v_lshlrev_b32 v13, 4, v13
    s_lshl_b32 s36, s35, 3            ; 16*(c/2)
    s_add_u32 s36, s36, {KHL}
    v_add_u32 v13, s36, v13           ; vB
    """)
    a.label("k2_cv_join")
    ACC1, ACC2, ACC0, ACC3 = 16, 16, 48, 48
    first = set()
    F = [80, 104]
    a("""
    s_waitcnt vmcnt(0) lgkmcnt(0)
    s_barrier
    """)
    stamp(a, 4)
    prio2(a, PR[1], PR[4])
    if 'nopf' not in VAR and 'pf1' not in VAR and not k3:
        srd(a, 56, 56, 57, 1376 * 1024)
        if 'e1' in VAR:
            a("""
            s_lshr_b32 s36, s20, 3
            s_mul_i32 s36, s36, 22016
            v_add_u32 v72, s36, v5
            """)
            for j in range(1, 6):
                a(f"v_add_u32 v{72+j}, {j*4096:#x}, v72")
            for j in range(6):
                a(f"buffer_load_dwordx4 v[68:71], v{72 + j}, s[56:59], 0 offen")
        else:
            a("""
            s_lshl_b32 s36, s20, 12
            v_add_u32 v72, s36, v5
            buffer_load_dwordx4 v[68:71], v72, s[56:59], 0 offen
            """)
    def mf(acc, A, B):
        c = f"v[{acc}:{acc+15}]" if acc in first else "0"
        first.add(acc)
        a(f"v_mfma_f32_32x32x16_bf16 v[{acc}:{acc+15}], v[{A}:{A+3}], v[{B}:{B+3}], {c}")
    def rd(dst, base, off):
        a(f"ds_read_b128 v[{dst}:{dst+3}], v{base} offset:{off}")
    def boff(c):
        return 16 * (c // 2) + 3072 * (c & 1)
    def ch_reads(c, f):
        rd(f, 12, AS * c)
        rd(f + 4, 13, boff(c))
        rd(f + 8, 13, boff(c + 64))
        rd(f + 12, 13, boff(c) + 6144)
        rd(f + 16, 13, boff(c + 64) + 6144)
        rd(f + 20, 12, AS * (c + 64))
    def ch_mfma(f, last):
        base = 0 if last else 6
        a(f"s_waitcnt lgkmcnt({base + 4})")
        mf(ACC1, f, f + 4)
        a(f"s_waitcnt lgkmcnt({base + 3})")
        mf(ACC0, f, f + 8)
        a(f"s_waitcnt lgkmcnt({base + 2})")
        mf(ACC2, f, f + 12)
        a(f"s_waitcnt lgkmcnt({base + 1})")
        mf(ACC3, f, f + 16)
        a(f"s_waitcnt lgkmcnt({base})")
        mf(ACC1, f + 20, f + 8)
        mf(ACC2, f + 20, f + 16)
    ch_reads(0, F[0])
    for c in range(16):
        if c < 15:
            ch_reads(c + 1, F[(c + 1) & 1])
        ch_mfma(F[c & 1], c == 15)
    a.label("k2_cv_fin")
    stamp(a, 5)
    prio2(a, PR[2], PR[5])
    a(f"""
    s_waitcnt lgkmcnt(0)
    s_nop 7
    s_nop 7
    """)
    a(f"""
    s_barrier
    v_mul_u32_u24 v14, 144, v4
    v_lshl_add_u32 v14, v6, 4, v14     ; a_l*144 + 16h
    s_mul_i32 s36, s3, 4608
    v_add_u32 v14, s36, v14
    """)
    for q in range(4):
        a(f"ds_write_b128 v14, v[{ACC1+4*q}:{ACC1+4*q+3}] offset:{32*q}")
    for q in range(4):
        a(f"ds_write_b128 v14, v[{ACC0+4*q}:{ACC0+4*q+3}] offset:{32*q + 4*4608}")
    a(f"""
    v_lshrrev_b32 v14, 2, v0
    v_and_b32 v14, 31, v14
    v_mul_u32_u24 v14, 144, v14
    v_and_b32 v15, 3, v0
    v_lshl_add_u32 v14, v15, 5, v14    ; a_l*144 + sub*32
    s_cmp_lt_u32 s3, 2
    s_cselect_b32 s36, {4*4608}, 0
    v_add_u32 v14, s36, v14
    s_waitcnt lgkmcnt(0)
    s_barrier
    """)
    for s in range(4):
        a(f"ds_read_b128 v[{16+8*s}:{19+8*s}], v14 offset:{s*4608}")
        a(f"ds_read_b128 v[{20+8*s}:{23+8*s}], v14 offset:{s*4608+16}")
    a("s_waitcnt lgkmcnt(0)")
    for i in range(8):
        a(f"v_add_f32 v{16+i}, v{16+i}, v{40+i}")
    a(f"""
    s_waitcnt lgkmcnt(0)
    s_and_b32 s21, s20, 1
    s_lshl_b32 s21, s21, 4
    s_lshr_b32 s22, s22, s21
    s_lshl_b32 s22, s22, 16
    s_mov_b32 s23, 0xffff0000
    s_lshl_b32 s24, s20, 12
    """)
    for i in range(8):
        a(f"v_add_f32 v{24+i}, v{24+i}, v{32+i}")
    for i in range(8):
        a(f"v_add_f32 v{16+i}, v{16+i}, v{24+i}")
    for j in range(4):
        a(f"""
        v_cvt_pk_bf16_f32 v24, v{16+2*j}, v{17+2*j}
        v_lshlrev_b32 v25, 16, v{8+j}
        v_and_b32 v26, s23, v{8+j}
        v_mul_f32 v25, s22, v25
        v_mul_f32 v26, s22, v26
        v_cvt_pk_bf16_f32 v27, v25, v26
        v_lshlrev_b32 v25, 16, v24
        v_and_b32 v26, s23, v24
        v_lshlrev_b32 v28, 16, v27
        v_and_b32 v29, s23, v27
        v_add_f32 v25, v25, v28
        v_add_f32 v26, v26, v29
        v_cvt_pk_bf16_f32 v{32+j}, v25, v26
        """)
    a(f"""
    buffer_store_dwordx4 v[32:35], v5, s[16:19], s24 offen sc0 sc1
    """)
    def arrive(off_code):
        srd_off(a, 28, 6, 7, TB_OFF, 0x8000)
        a(off_code)
        a(f"""
        v_mov_b32 v16, 1
        v_mov_b32 v17, 0
        s_waitcnt vmcnt(0)
        s_barrier
        s_cmp_lg_u32 s3, 0
        s_cbranch_scc1 k2_done
        s_mov_b64 exec, 1
        buffer_atomic_add v16, v17, s[28:31], s24 offen sc1
        s_mov_b64 exec, -1
        """)
    arrive("""
    s_lshr_b32 s24, s20, 6
    s_lshl_b32 s24, s24, 8
    s_add_u32 s24, s24, 0x4000
    """)
    stamp_out(a, 1, 6, "k2_done")
    a("s_branch k2_done")

    a.label("k2_gemm")
    a(f"""
    s_load_dwordx2 s[4:5], s[0:1], 80 ; w1
    s_and_b32 s20, s2, 15             ; mt
    s_sub_u32 s21, s2, {N_CV if 'cvfirst' in VAR else 0}
    s_lshr_b32 s21, s21, 4             ; nt
    s_waitcnt lgkmcnt(0)
    """)
    stamp(a, 0)
    prio2(a, PR[6], PR[6])
    srd(a, 8, 6, 7, 0x200000)
    srd(a, 12, 4, 5, 512 * 2752)
    srd_off(a, 16, 6, 7, H_OFF, H_SZ)
    ST = 6144
    GD = int(os.environ.get('GD', '6'))
    a(f"""
    s_lshl_b32 s22, s3, 15
    v_lshl_add_u32 v3, v2, 4, s22
    s_mul_i32 s22, s3, 96
    v_add_u32 v4, s22, v2              ; P = 96w + l
    v_add_u32 v5, 64, v4
    s_movk_i32 s23, 5462               ; 65536/12
    s_movk_i32 s24, 2752
    v_mul_u32_u24 v6, s23, v4
    v_lshrrev_b32 v6, 16, v6           ; row
    v_mul_u32_u24 v7, 12, v6
    v_sub_u32 v4, v4, v7               ; cc
    v_lshlrev_b32 v4, 4, v4
    v_mad_u32_u24 v4, v6, s24, v4      ; voffB0
    v_mul_u32_u24 v6, s23, v5
    v_lshrrev_b32 v6, 16, v6
    v_mul_u32_u24 v7, 12, v6
    v_sub_u32 v5, v5, v7
    v_lshlrev_b32 v5, 4, v5
    v_mad_u32_u24 v5, v6, s24, v5      ; voffB1
    s_lshl_b32 s25, s20, 17
    s_mul_i32 s26, s21, 192
    s_lshr_b32 s36, s20, 3
    s_lshl_b32 s36, s36, {os.environ.get('RM', '3')}
    s_add_u32 s36, s36, s21
    s_and_b32 s36, s36, {0 if 'norot' in VAR else 15}
    s_mul_i32 s28, s3, 1536
    s_mov_b64 s[30:31], -1
    s_mov_b32 s32, -1
    s_mov_b32 s33, 0
    """)
    def dma(kc):
        st = (kc % 3) * ST
        a(f"""
        s_add_u32 m0, s27, {st}
        s_add_u32 s29, s25, {kc*64 + 16384}
        buffer_load_dwordx4 v3, s[8:11], s25 offen offset:{0} lds
        s_add_u32 m0, s27, {st + 1024}
        s_nop 0
        buffer_load_dwordx4 v3, s[8:11], s29 offen lds
        s_add_u32 m0, s28, {st}
        s_nop 0
        buffer_load_dwordx4 v4, s[12:15], s26 offen lds
        s_add_u32 m0, s28, {st + 1024}
        s_mov_b64 exec, s[32:33]
        buffer_load_dwordx4 v5, s[12:15], s26 offen lds
        s_mov_b64 exec, s[30:31]
        s_add_u32 s25, s25, 64
        s_add_u32 s26, s26, {32*2752}
        """)
    a(f"""
    v_and_b32 v6, 31, v2               ; m
    v_lshrrev_b32 v7, 5, v2            ; kg / h
    s_lshl_b32 s22, s3, 5
    v_add_u32 v8, s22, v6
    v_lshlrev_b32 v8, 6, v8            ; row*64
    v_lshrrev_b32 v9, 2, v6
    v_and_b32 v9, 3, v9                ; (row>>2)&3
    v_xor_b32 v10, v9, v7
    v_lshl_add_u32 v10, v10, 4, v8     ; vAr0
    v_xor_b32 v11, 2, v9
    v_xor_b32 v11, v11, v7
    v_lshl_add_u32 v11, v11, 4, v8
    v_lshlrev_b32 v12, 3, v7           ; 8*kg
    v_bfe_u32 v13, v2, 2, 2
    v_add_u32 v12, v12, v13
    v_mul_u32_u24 v12, 192, v12
    v_bfe_u32 v13, v2, 4, 1
    v_lshl_add_u32 v12, v13, 5, v12    ; + 32*((l>>4)&1)
    v_and_b32 v13, 3, v2
    v_lshl_add_u32 v12, v13, 3, v12    ; + 8*(l&3)
    """)
    ACC = 16
    for i in range(48):
        a(f"v_mov_b32 v{ACC+i}, 0")
    return_dma = dma
    def dma2(kc):
        st = (kc % GD) * ST
        a(f"""
        s_lshl_b32 s37, s36, 11
        s_add_u32 s37, s37, s25
        s_mul_i32 s38, s36, {32*2752}
        buffer_load_dwordx4 v[{112+8*(kc%(GD+1))}:{115+8*(kc%(GD+1))}], v3, s[8:11], s37 offen
        buffer_load_dwordx4 v[{116+8*(kc%(GD+1))}:{119+8*(kc%(GD+1))}], v3, s[8:11], s37 offen offset:1024
        s_add_u32 m0, s28, {st}
        s_add_u32 s38, s38, s26
        buffer_load_dwordx4 v4, s[12:15], s38 offen lds
        s_add_u32 m0, s28, {st + 1024}
        s_mov_b64 exec, s[32:33]
        buffer_load_dwordx4 v5, s[12:15], s38 offen lds
        s_mov_b64 exec, s[30:31]
        s_add_u32 s36, s36, 1
        s_and_b32 s36, s36, 15
        """)
    for kc in range(GD): dma2(kc)
    FB = 64
    def breads(kc):
        st = (kc % GD) * ST
        for ks in range(2):
            for j in range(3):
                b = FB + 24 * (kc & 1) + 12 * ks + 4 * j
                off = st + ks * 16 * 192 + 64 * j
                a(f"ds_read_b64_tr_b16 v[{b}:{b+1}], v12 offset:{off}")
                a(f"ds_read_b64_tr_b16 v[{b+2}:{b+3}], v12 offset:{off + 4*192}")
    a(f"s_waitcnt vmcnt({4*(GD-1)})")
    a("s_barrier")
    stamp(a, 1)
    breads(0)
    for kc in range(16):
        if kc < 15:
            a(f"s_waitcnt vmcnt({4 * (min(kc + GD - 1, 15) - (kc + 1))}) lgkmcnt(0)")
            a("s_barrier")
            if kc + GD < 16:
                dma2(kc + GD)
            breads(kc + 1)
        else:
            a("s_waitcnt lgkmcnt(0)")
        FA = 112 + 8 * (kc % (GD + 1))
        for ks in range(2):
            for j in range(3):
                b = FB + 24 * (kc & 1) + 12 * ks + 4 * j
                a(f"v_mfma_f32_32x32x16_bf16 v[{ACC+16*j}:{ACC+16*j+15}], v[{b}:{b+3}], v[{FA+4*ks}:{FA+4*ks+3}], v[{ACC+16*j}:{ACC+16*j+15}]")
    stamp(a, 2)
    prio2(a, PR[7], PR[7])
    a(f"""
    s_barrier
    s_lshl_b32 s22, s3, 5
    v_add_u32 v8, s22, v6
    v_mul_u32_u24 v8, 208, v8
    v_lshl_add_u32 v8, v7, 3, v8       ; row*208 + 8h
    s_nop 7
    s_nop 3
    """)
    for j in range(3):
        for q in range(4):
            r = ACC + 16 * j + 4 * q
            a(f"""
            v_max_f32 v{r}, 0, v{r}
            v_max_f32 v{r+1}, 0, v{r+1}
            v_max_f32 v{r+2}, 0, v{r+2}
            v_max_f32 v{r+3}, 0, v{r+3}
            v_cvt_pk_bf16_f32 v{r}, v{r}, v{r+1}
            v_cvt_pk_bf16_f32 v{r+1}, v{r+2}, v{r+3}
            ds_write_b64 v8, v[{r}:{r+1}] offset:{64*j + 16*q}
            """)
    a(f"""
    s_mul_i32 s22, s3, {32*208}
    s_lshl_b32 s25, s20, 2
    s_add_u32 s25, s25, s3
    s_mul_i32 s25, s25, {H_RB}
    s_mul_i32 s26, s21, 6144
    s_add_u32 s25, s25, s26
    v_and_b32 v10, 31, v2
    v_mul_u32_u24 v12, 208, v10
    v_lshrrev_b32 v9, 5, v2
    v_lshl_add_u32 v12, v9, 4, v12
    v_add_u32 v12, s22, v12
    v_lshlrev_b32 v11, 4, v2
    s_mul_i32 s26, s21, 96
    s_movk_i32 s27, {H_RS}
    s_movk_i32 s28, 208
    s_mov_b32 s29, 0x40000000
    s_movk_i32 s34, 1376
    s_movk_i32 s35, 1408
    s_waitcnt lgkmcnt(0)
    """)
    for i in range(6):
        a(f"""
        ds_read_b128 v[{64+4*i}:{67+4*i}], v12 offset:{32*i}
        v_add_u32 v{90+i}, {1024*i}, v11
        v_add_u32 v10, {2*i}, v9
        v_lshl_add_u32 v{96+i}, v10, 3, s26 ; col
        """)
    for i in range(6):
        a(f"""
        s_waitcnt lgkmcnt({5-i})
        v_cmp_gt_u32 vcc, s34, v{96+i}
        v_mov_b32 v9, s29
        v_cndmask_b32 v{64+4*i}, 0, v{64+4*i}, vcc
        v_cndmask_b32 v{65+4*i}, 0, v{65+4*i}, vcc
        v_cndmask_b32 v{66+4*i}, 0, v{66+4*i}, vcc
        v_cndmask_b32 v{67+4*i}, 0, v{67+4*i}, vcc
        v_cmp_gt_u32 vcc, s35, v{96+i}
        s_nop 1
        v_cndmask_b32 v{90+i}, v9, v{90+i}, vcc
        buffer_store_dwordx4 v[{64+4*i}:{67+4*i}], v{90+i}, s[16:19], s25 offen sc0 sc1
        """)
    arrive("""
    s_lshl_b32 s24, s20, 7
    s_add_u32 s24, s24, 0x4800
    """)
    stamp_out(a, 1, 3, "k2_done")
    a.label("k2_done")
    a("s_endpgm")
    import gen3
    gen3.gen_k3(a)

def add(kernels, launches):
    a = Asm()
    gen_k2(a)
    import gen3
    kernels.append(("k2_kernel", a.text(), 208))
    launches.append(f"; @launch kernel=k2_kernel grid=({N_G1+N_CV+256},1,1) block=(256,1,1) lds={gen3.K3_LDS}")
```

```python
from gen import *

N_G2 = 256
NST = 4
YB = 4 * 17408
K3_LDS = YB + 4 * 2080
N_CB = 256
SB = 4096
POLLK = int(os.environ.get('POLLK', '8'))

def gen_k3(a):
    a.label("k3_gemm")
    a(f"""
    s_load_dwordx2 s[4:5], s[0:1], 88  ; w2
    s_load_dwordx2 s[36:37], s[0:1], 0 ; x
    s_load_dwordx2 s[38:39], s[0:1], 96 ; out
    s_setprio {os.environ.get('P3', '0')}
    s_sub_u32 s2, s2, 496
    {'''s_and_b32 s20, s2, 31             ; mt''' if 'k3old' in VAR else '''s_and_b32 s20, s2, 7
    s_lshl_b32 s20, s20, 1
    s_bfe_u32 s21, s2, 0x10003
    s_add_u32 s20, s20, s21
    s_and_b32 s21, s2, 16
    s_add_u32 s20, s20, s21           ; mt = 2x + r0 + 16 r1'''}
    s_bfe_u32 s21, s2, 0x30005        ; nt
    v_lshlrev_b32 v3, 4, v2            ; voffA
    v_lshrrev_b32 v4, 3, v2
    v_lshlrev_b32 v4, 10, v4
    v_bfe_u32 v5, v2, 4, 1
    v_lshlrev_b32 v5, 2, v5
    v_and_b32 v6, 7, v2
    v_xor_b32 v5, v5, v6
    v_lshl_add_u32 v4, v5, 4, v4       ; voffB
    s_waitcnt lgkmcnt(0)
    """)
    stamp(a, 0)
    srd_off(a, 8, 6, 7, H_OFF, H_SZ)
    srd(a, 12, 4, 5, 1376 * 1024)
    srd_off(a, 16, 6, 7, YT_OFF, 0x200000)
    srd(a, 40, 36, 37, 0x200000)
    srd(a, 44, 38, 39, 0x200000)
    srd_off(a, 48, 6, 7, TB_OFF, 0x8000)
    a(f"""
    s_mul_i32 s25, s20, {2*H_RB}
    s_mul_i32 s26, s3, {44*512}
    s_add_u32 s25, s25, s26
    s_mul_i32 s26, s3, {352*1024}
    s_lshl_b32 s27, s21, 7
    s_add_u32 s26, s26, s27            ; soffB
    s_lshl_b32 s27, s3, 14
    """)
    FH0 = 144
    def dma(kc, doA=True, doB=True):
        st = (kc % NST) * SB
        for jm in range(2 if doA else 0):
            f = FH0 + 16 * (kc % NST) + 4 * jm
            a(f"""
            s_add_u32 s28, s25, {kc*2048 + jm*H_RB}
            buffer_load_dwordx4 v[{f}:{f+3}], v3, s[8:11], s28 offen
            buffer_load_dwordx4 v[{f+8}:{f+11}], v3, s[8:11], s28 offen offset:1024
            """)
        for i in range(4 if doB else 0):
            a(f"""
            s_add_u32 m0, s27, {st + 1024*i}
            s_add_u32 s28, s26, {kc*32768 + i*8192}
            buffer_load_dwordx4 v4, s[12:15], s28 offen lds
            """)
    for kc in range(NST - 1):
        dma(kc, doA=False)
    AT = 112; XV = 128
    a(f"""
    v_lshrrev_b32 v5, 3, v2
    v_lshlrev_b32 v5, 12, v5           ; (l>>3)*4096
    v_and_b32 v6, 7, v2
    v_lshl_add_u32 v5, v6, 4, v5       ; + 16*(l&7)
    v_lshrrev_b32 v6, 2, v0
    s_lshl_b32 s29, s21, 18            ; n0*4096
    s_lshl_b32 s30, s20, 7
    s_add_u32 s29, s29, s30
    s_lshl_b32 s30, s3, 16             ; 16w*4096
    s_add_u32 s29, s29, s30
    s_mul_i32 s33, s3, 2080
    s_add_u32 s34, s29, 0x8000
    s_lshl_b32 s35, s21, 8
    s_add_u32 s35, s35, 0x4000
    v_mov_b32 v137, 0
    v_lshlrev_b32 v7, 10, v6           ; row*1024
    v_and_b32 v8, 3, v0
    v_lshl_add_u32 v7, v8, 5, v7       ; + 32*(t&3)
    s_lshl_b32 s30, s20, 16
    s_lshl_b32 s31, s21, 7
    s_add_u32 s30, s30, s31
    buffer_load_dwordx4 v[{XV}:{XV+3}], v7, s[40:43], s30 offen
    buffer_load_dwordx4 v[{XV+4}:{XV+7}], v7, s[40:43], s30 offen offset:16
    """)
    def poll(lab, soff, target):
        a("s_mov_b32 s31, 0x40000")
        a.label(lab)
        a(f"""
        buffer_load_dword v136, v137, s[48:51], {soff} offen sc0 sc1
        s_sub_u32 s31, s31, 1
        s_waitcnt vmcnt(0)
        v_readfirstlane_b32 s32, v136
        s_cmp_eq_u32 s31, 0
        s_cbranch_scc1 {lab}_ok
        s_cmp_ge_u32 s32, {target}
        s_cbranch_scc1 {lab}_ok
        s_sleep {os.environ.get('SLP', '4')}
        s_branch {lab}
        """)
        a.label(lab + "_ok")
    NEX = 2
    a(f"""
    v_and_b32 v8, 31, v2               ; idx
    v_lshrrev_b32 v9, 5, v2            ; kg / h
    v_lshlrev_b32 v14, 3, v9
    v_bfe_u32 v15, v2, 2, 2
    v_add_u32 v14, v14, v15
    v_lshlrev_b32 v14, 7, v14          ; row*128
    v_bfe_u32 v15, v2, 4, 1
    v_lshl_add_u32 v14, v15, 5, v14
    v_and_b32 v15, 3, v2
    v_lshl_add_u32 v14, v15, 3, v14
    v_bfe_u32 v15, v2, 3, 1
    v_lshl_add_u32 v14, v15, 6, v14
    v_add_u32 v14, s27, v14            ; vW0
    v_xor_b32 v15, 64, v14             ; vW1
    """)
    ACC = 16
    for i in range(64):
        a(f"v_mov_b32 v{ACC+i}, 0")
    a("""
    s_lshr_b32 s22, s20, 1
    s_lshl_b32 s22, s22, 7
    s_add_u32 s22, s22, 0x4800
    """)
    poll("k3_ph", "s22", 15)
    for kc in range(NST - 1):
        dma(kc, doB=False)
    FH = 80; FW = 96
    NCH = 11
    for kc in range(NCH):
        st = (kc % NST) * SB
        FH = FH0 + 16 * (kc % NST)
        later = min(kc + NST - 2, NCH - 1) - kc
        cnt = 8 * later + (NEX if kc < NST - 2 + 0 and False else 0)
        if kc <= NST - 2:
            cnt = [8, 12, 16][kc]
        if kc > POLLK:
            cnt += 2
        a(f"s_waitcnt vmcnt({min(cnt, 63)})")
        if kc == 0: stamp(a, 1)
        for ks in range(2):
            for jn in range(2):
                f = FW + 8 * ks + 4 * jn
                a(f"ds_read_b64_tr_b16 v[{f}:{f+1}], v{14+jn} offset:{st + ks*2048}")
                a(f"ds_read_b64_tr_b16 v[{f+2}:{f+3}], v{14+jn} offset:{st + ks*2048 + 512}")
        if kc + NST - 1 < NCH:
            dma(kc + NST - 1)
        for ks in range(2):
            a(f"s_waitcnt lgkmcnt({4 if ks == 0 else 0})")
            for jn in range(2):
                for jm in range(2):
                    acc = ACC + 16 * (2 * jn + jm)
                    w = FW + 8 * ks + 4 * jn
                    h = FH + 8 * ks + 4 * jm
                    a(f"v_mfma_f32_32x32x16_bf16 v[{acc}:{acc+15}], v[{w}:{w+3}], v[{h}:{h+3}], v[{acc}:{acc+15}]")
        if kc == POLLK:
            assert kc + NST - 1 >= NCH
            poll("k3_py", "s35", 64)
            a(f"""
            s_add_u32 m0, s33, {YB}
            s_nop 0
            buffer_load_dwordx4 v5, s[16:19], s29 offen sc0 sc1 lds
            s_add_u32 m0, s33, {YB + 1024}
            s_nop 0
            buffer_load_dwordx4 v5, s[16:19], s34 offen sc0 sc1 lds
            """)
    stamp(a, 2)
    a(f"""
    s_barrier
    v_mul_u32_u24 v10, 272, v8
    v_lshl_add_u32 v10, v9, 4, v10
    s_mul_i32 s28, s3, 17408
    v_add_u32 v10, s28, v10
    s_nop 7
    s_nop 3
    """)
    for jn in range(2):
        for jm in range(2):
            for q in range(4):
                r = ACC + 16 * (2 * jn + jm) + 4 * q
                a(f"ds_write_b128 v10, v[{r}:{r+3}] offset:{jm*32*272 + jn*128 + q*32}")
    a(f"""
    v_lshrrev_b32 v11, 2, v0
    v_mul_u32_u24 v11, 272, v11
    v_and_b32 v12, 3, v0
    v_lshl_add_u32 v11, v12, 6, v11
    v_mul_u32_u24 v12, 2080, v12
    v_lshl_add_u32 v12, v6, 1, v12
    v_add_u32 v12, {YB}, v12
    s_mov_b32 s23, 0xffff0000
    s_waitcnt vmcnt(0) lgkmcnt(0)
    s_barrier
    """)
    for p in range(4):
        for c in range(4):
            r = 16 + 16 * p + 4 * c
            a(f"ds_read_b128 v[{r}:{r+3}], v11 offset:{p*17408 + 16*c}")
    a("s_waitcnt lgkmcnt(8)")
    for i in range(16):
        a(f"v_add_f32 v{16+i}, v{16+i}, v{32+i}")
    a("s_waitcnt lgkmcnt(0)")
    for i in range(16):
        a(f"ds_read_u16 v{AT + i}, v12 offset:{128*i}")
    for i in range(16):
        a(f"v_add_f32 v{48+i}, v{48+i}, v{64+i}")
    for i in range(16):
        a(f"v_add_f32 v{16+i}, v{16+i}, v{48+i}")
    a("s_waitcnt vmcnt(0) lgkmcnt(0)")
    for j in range(8):
        a(f"""
        v_cvt_pk_bf16_f32 v32, v{16+2*j}, v{17+2*j}
        v_lshlrev_b32 v33, 16, v{XV+j}
        v_and_b32 v34, s23, v{XV+j}
        v_lshlrev_b32 v35, 16, v{AT+2*j}
        v_lshlrev_b32 v36, 16, v{AT+2*j+1}
        v_add_f32 v33, v33, v35
        v_add_f32 v34, v34, v36
        v_cvt_pk_bf16_f32 v33, v33, v34
        v_lshlrev_b32 v35, 16, v32
        v_and_b32 v36, s23, v32
        v_lshlrev_b32 v37, 16, v33
        v_and_b32 v38, s23, v33
        v_add_f32 v35, v35, v37
        v_add_f32 v36, v36, v38
        v_cvt_pk_bf16_f32 v{40+j}, v35, v36
        """)
    a(f"""
    buffer_store_dwordx4 v[40:43], v7, s[44:47], s30 offen
    buffer_store_dwordx4 v[44:47], v7, s[44:47], s30 offen offset:16
    """)
    stamp_out(a, 2, 3, "k3_done")
    a.label("k3_done")
    a("s_endpgm")

def add(kernels, launches):
    a = Asm()
    gen_k3(a)
    kernels.append(("k3_kernel", a.text(), 208))
    launches.append(f"; @launch kernel=k3_kernel grid=({N_G2+N_CB},1,1) block=(256,1,1) lds={K3_LDS}")
```

```python
from gen import *

N_G1 = 240
N_CV = 512
PS = int(os.environ.get('PS', '4384'))
K2_LDS = max(8 * PS + 12288 + 3072, 26880 + 26752)
UH = 0
KHL = 8 * PS

PR = [int(x) for x in os.environ.get('PR', '2,0,2,2,0,2,0,2').split(',')]
_pl = [0]
def prio2(a, pa, pb):
    if 'noprio' in VAR: return
    if pa == pb:
        a(f"s_setprio {pa}"); return
    _pl[0] += 1
    a(f"""
    s_setprio {pa}
    s_cmp_lt_u32 s20, 256
    s_cbranch_scc1 k2_pr{_pl[0]}
    s_setprio {pb}
    """)
    a.label(f"k2_pr{_pl[0]}")

def kgen(a):
    LUTB = 26752
    a(f"""
    s_load_dwordx8 s[40:47], s[0:1], 8
    s_load_dwordx4 s[48:51], s[0:1], 40
    s_load_dwordx2 s[52:53], s[0:1], 56    ; log_dt
    s_load_dwordx2 s[56:57], s[0:1], 80    ; w1
    s_mov_b32 s20, s2                     ; d
    s_lshl_b32 s27, s20, 8                ; d*256 bytes
    s_lshl_b32 s28, s3, 6
    s_add_u32 s27, s27, s28
    v_and_b32 v4, 31, v2                  ; i / j
    v_lshrrev_b32 v6, 5, v2               ; half
    v_lshlrev_b32 v7, 1, v4
    v_add_u32 v7, s27, v7
    s_lshl_b32 s27, s20, 1
    v_mov_b32 v14, s27                    ; 2*d
    s_waitcnt lgkmcnt(0)
    global_load_ushort v80, v7, s[40:41]
    global_load_ushort v81, v7, s[42:43]
    global_load_ushort v82, v7, s[44:45]
    global_load_ushort v83, v7, s[46:47]
    global_load_ushort v84, v7, s[48:49]
    global_load_ushort v85, v7, s[50:51]
    global_load_ushort v86, v14, s[52:53]
    """)
    stamp(a, 0)
    srd_off(a, 8, 6, 7, XT0_OFF, XT_SZ)
    srd_off(a, 12, 6, 7, KH_OFF, 0x400000)
    def RA(i):
        sl = ROWSLOT[rho_of_row(i)]
        return (sl >> 3) * 1024 + ((sl >> 2) & 1) * 512 + (sl & 3) * 4
    cw = [sum(COLSLOT[4*k+j] << (8*j) for j in range(4)) for k in range(8)]
    r0 = [RA(i) for i in [0, 8, 12, 14, 16, 17, 18, 19, 20]] + [0]
    rw = [r0[2*k] | (r0[2*k+1] << 16) for k in range(5)]
    a("v_mov_b32 v30, 0")
    for k in range(8):
        a(f"v_mov_b32 v{16+k}, {cw[k]:#x}")
    a(f"ds_write_b128 v30, v[16:19] offset:{LUTB}")
    a(f"ds_write_b128 v30, v[20:23] offset:{LUTB+16}")
    for k in range(5):
        a(f"v_mov_b32 v{24+k}, {rw[k]:#x}")
    a(f"""
    ds_write_b128 v30, v[24:27] offset:{LUTB+32}
    ds_write_b32 v30, v28 offset:{LUTB+48}
    v_sub_u32 v3, 0xff, v0               ; q
    v_sub_u32 v14, 0x100, v0             ; q+1
    v_and_b32 v16, 31, v3
    v_and_b32 v17, 31, v14
    v_lshrrev_b32 v18, 5, v3
    v_lshrrev_b32 v19, 5, v14
    v_lshlrev_b32 v18, 1, v18
    v_lshlrev_b32 v19, 1, v19
    ds_read_u8 v16, v16 offset:{LUTB}
    ds_read_u16 v18, v18 offset:{LUTB+32}
    ds_read_u8 v17, v17 offset:{LUTB}
    ds_read_u16 v19, v19 offset:{LUTB+32}
    v_lshlrev_b32 v5, 4, v0              ; 16*t
    v_and_b32 v15, 1, v3
    v_lshlrev_b32 v3, 5, v0              ; 32*t
    v_cmp_eq_u32 vcc, 1, v15             ; q odd
    s_cmp_eq_u32 s3, 2
    s_waitcnt lgkmcnt(0)
    v_lshl_add_u32 v16, v16, 4, v18      ; A0
    v_lshl_add_u32 v17, v17, 4, v19      ; A1
    s_cbranch_scc1 k1_ad_w2
    s_cmp_eq_u32 s3, 3
    s_cbranch_scc1 k1_ad_w3
    """)
    M = 0xffffffff
    for i in range(8):
        e = 7 - i
        if i == 4: a(f"v_cndmask_b32 v{60+e}, v16, v17, vcc")
        else: a(f"v_mov_b32 v{60+e}, v{16 if i < 4 else 17}")
    a("s_branch k1_ad_done")
    a.label("k1_ad_w2")
    a(f"""
    v_add_u32 v18, {(RA(13) - RA(12)) & M:#x}, v16
    s_mov_b32 exec_hi, 0
    v_add_u32 v18, {(RA(15) - RA(14)) & M:#x}, v16
    s_mov_b32 exec_hi, -1
    """)
    for i in range(8):
        a(f"v_mov_b32 v{67-i}, v{[16,16,16,18,18,18,17,17][i]}")
    a("s_branch k1_ad_done")
    a.label("k1_ad_w3")
    for i in range(8):
        a(f"v_add_u32 v{67-i}, {(RA(i) - RA(0)) & M:#x}, v16")
    a("s_mov_b32 exec_hi, 0")
    for i, off in enumerate([0, 0, 2, 4, 4, 4, 6]):
        a(f"v_add_u32 v{67-i}, {(RA(8 + off // 2) - RA(8)) & M:#x}, v16")
    a("v_mov_b32 v60, v17")
    a("s_mov_b32 exec_hi, -1")
    a.label("k1_ad_done")
    a(f"""
    s_cmp_lg_u32 s2, 0
    s_cbranch_scc1 k1_kg_notab
    {'s_branch k1_kg_notab' if N_KG == 512 else ''}
    """)
    srd_off(a, 28, 6, 7, TB_OFF, 0x8000)
    a(f"""
    v_mov_b32 v16, 0
    v_mov_b32 v17, 0
    v_mov_b32 v18, 0
    v_mov_b32 v19, 0
    s_movk_i32 s24, 0x4000
    buffer_store_dwordx4 v[60:63], v3, s[28:31], 0 offen
    buffer_store_dwordx4 v[64:67], v3, s[28:31], 0 offen offset:16
    buffer_store_dwordx4 v[16:19], v5, s[28:31], s24 offen
    """)
    a.label("k1_kg_notab")
    TBL = KHL + 12288
    WT = 6656
    P = [None] + [92 + 2 * i for i in range(7)]
    G1, G2, G3, G6 = 106, 108, 110, 112
    A = [114, 116, 118, 120]
    M1, M3 = 122, 124
    AR = 40
    NA = [84, 85, 86, 87]
    def cmul2(d, x, y, d2, x2, y2):
        a(f"""
        v_pk_mul_f32 v[{d}:{d+1}], v[{x}:{x+1}], v[{y}:{y+1}] op_sel:[0,0] op_sel_hi:[0,1]
        v_pk_mul_f32 v[{d2}:{d2+1}], v[{x2}:{x2+1}], v[{y2}:{y2+1}] op_sel:[0,0] op_sel_hi:[0,1]
        v_pk_fma_f32 v[{d}:{d+1}], v[{x}:{x+1}], v[{y}:{y+1}], v[{d}:{d+1}] op_sel:[1,1,0] op_sel_hi:[1,0,1] neg_lo:[1,0,0]
        v_pk_fma_f32 v[{d2}:{d2+1}], v[{x2}:{x2+1}], v[{y2}:{y2+1}], v[{d2}:{d2+1}] op_sel:[1,1,0] op_sel_hi:[1,0,1] neg_lo:[1,0,0]
        """)
    a(f"""
    s_mov_b32 s54, 0
    s_mov_b32 s55, -1
    s_mul_i32 s32, s3, {WT}
    v_lshlrev_b32 v12, 12, v6
    v_add_u32 v12, s32, v12
    v_and_b32 v13, 3, v4
    v_lshl_add_u32 v12, v13, 2, v12
    v_lshrrev_b32 v13, 2, v4
    v_lshl_add_u32 v12, v13, 4, v12
    """)
    for c in range(16):
        a(f"v_xor_b32 v{AR+c}, {16*((c>>1)&7) + 128*(c&1)}, v12")
    a(f"""
    v_mov_b32 v13, s32
    v_cndmask_b32 v13, v13, 0, s[54:55]
    v_sub_u32 v56, v12, v13
    v_mov_b32 v14, 0x41000000             ; 8
    v_cndmask_b32 v12, v14, 1.0, s[54:55] ; c1
    v_cndmask_b32 v13, v14, -1.0, s[54:55] ; c1 (phase)
    v_mov_b32 v14, 0x42800000             ; 64
    v_mov_b32 v15, 0x43800000             ; 256
    v_cndmask_b32 v57, v14, v15, s[54:55] ; c2
    v_cndmask_b32 v58, v14, -v15, s[54:55] ; c2 (phase)
    s_mov_b32 s33, 0x3fb8aa3b             ; log2e
    s_mov_b32 s34, 0x3e22f983             ; 1/(2pi)
    s_mov_b32 s35, 0xffff0000
    s_mov_b32 s36, 0x0000bf80
    s_mov_b32 s37, 0x80000000
    s_waitcnt vmcnt(0)
    """)
    if 'nopw1' not in VAR:
        srd(a, 56, 56, 57, 512 * 2752)
        a("""
        s_lshl_b32 s27, s2, 6
        v_lshl_add_u32 v9, v0, 14, s27
        buffer_load_dword v8, v9, s[56:59], 0 offen
        """)
    stamp(a, 1)
    a(f"""
    v_lshlrev_b32 v86, 16, v86
    v_mul_f32 v86, s33, v86
    v_exp_f32 v86, v86
    v_lshlrev_b32 v80, 16, v80
    v_lshlrev_b32 v81, 16, v81
    v_lshlrev_b32 v82, 16, v82
    v_lshlrev_b32 v83, 16, v83
    v_lshlrev_b32 v84, 16, v84
    v_lshlrev_b32 v85, 16, v85
    v_cvt_pk_bf16_f32 v86, v86, v86
    v_and_b32 v86, s35, v86               ; dt
    v_mul_f32 v80, v86, v80               ; lr
    v_mul_f32 v81, v86, v81               ; li
    v_mul_f32 v82, v86, v82               ; dBr
    v_mul_f32 v83, v86, v83               ; dBi
    v_mul_f32 v88, s33, v80               ; lr2
    v_mul_f32 v89, s34, v81               ; lif
    v_mul_f32 v68, v88, v12
    v_mul_f32 v69, v89, v13
    v_mul_f32 v70, v88, v57
    v_mul_f32 v71, v89, v58
    v_exp_f32 v68, v68
    v_fract_f32 v69, v69
    v_exp_f32 v70, v70
    v_fract_f32 v71, v71
    v_cos_f32 v{P[1]}, v69
    v_sin_f32 v{P[1]+1}, v69
    v_cos_f32 v{G1}, v71
    v_sin_f32 v{G1+1}, v71
    v_mul_f32 v90, v84, v82
    v_fma_f32 v90, -v85, v83, v90         ; CBr
    v_mul_f32 v91, v84, v83
    v_fma_f32 v91, v85, v82, v91          ; CBi
    v_mul_f32 v{P[1]}, v68, v{P[1]}
    v_mul_f32 v{P[1]+1}, v68, v{P[1]+1}
    v_mul_f32 v{G1}, v70, v{G1}
    v_mul_f32 v{G1+1}, v70, v{G1+1}
    v_cndmask_b32 v{A[0]}, 1.0, v90, s[54:55]
    v_cndmask_b32 v{A[0]+1}, 0, -v91, s[54:55]
    """)
    cmul2(P[2], P[1], P[1], G2, G1, G1)
    cmul2(P[3], P[2], P[1], G3, G2, G1)
    cmul2(P[4], P[2], P[2], A[1], A[0], G1)
    cmul2(P[6], P[3], P[3], G6, G3, G3)
    cmul2(P[5], P[4], P[1], A[2], A[0], G2)
    cmul2(P[7], P[4], P[3], A[3], A[0], G3)
    a(f"""
    v_cndmask_b32 v{M1}, v{P[1]}, v{G3}, s[54:55]
    v_cndmask_b32 v{M1+1}, v{P[1]+1}, v{G3+1}, s[54:55]
    v_cndmask_b32 v{M3}, v{P[3]}, v{G6}, s[54:55]
    v_cndmask_b32 v{M3+1}, v{P[3]+1}, v{G6+1}, s[54:55]
    v_xor_b32 v{NA[0]}, s37, v{A[0]+1}
    v_xor_b32 v{NA[1]}, s37, v{A[1]+1}
    v_xor_b32 v{NA[2]}, s37, v{A[2]+1}
    v_xor_b32 v{NA[3]}, s37, v{A[3]+1}
    """)
    def src_of(m, b):
        if b == 0: return None
        if m > 0 and b == 1: return M1
        if m > 0 and b == 3: return M3
        return P[b]
    def pair(p):
        pr = []
        for k in range(2):
            st_ = 2 * p + k
            m, b = KSTEPS[st_]
            pr.append((st_, m, b, 68 + 4 * ((p & 1) * 2 + k)))
        return pr
    def stA(p):
        n = 0
        for (st_, m, b, T) in pair(p):
            y = src_of(m, b)
            if y is not None:
                a(f"v_pk_mul_f32 v[{T}:{T+1}], v[{A[m]}:{A[m]+1}], v[{y}:{y+1}] op_sel:[0,0] op_sel_hi:[0,1]")
        for (st_, m, b, T) in pair(p):
            y = src_of(m, b)
            if y is not None:
                a(f"v_pk_fma_f32 v[{T}:{T+1}], v[{A[m]}:{A[m]+1}], v[{y}:{y+1}], v[{T}:{T+1}] op_sel:[1,1,0] op_sel_hi:[1,0,1] neg_lo:[1,0,0]")
        return 4
    def stB(p):
        for (st_, m, b, T) in pair(p):
            V = T if b else A[m]
            a(f"v_cvt_pk_bf16_f32 v{T+2}, v{V}, v{V+1}")
        for k, (st_, m, b, T) in enumerate(pair(p)):
            a(f"v_lshlrev_b32 v{88+2*k}, 16, v{T+2}")
            a(f"v_and_b32 v{89+2*k}, s35, v{T+2}")
        for k, (st_, m, b, T) in enumerate(pair(p)):
            V = T if b else A[m]
            a(f"v_pk_add_f32 v[{T}:{T+1}], v[{V}:{V+1}], v[{88+2*k}:{89+2*k}] neg_lo:[0,1] neg_hi:[0,1]")
    def stC(p):
        for (st_, m, b, T) in pair(p):
            a(f"v_cvt_pk_bf16_f32 v{T+3}, v{T}, v{T+1}")
        for (st_, m, b, T) in pair(p):
            if st_ == 21:
                a("s_mov_b32 exec_hi, 0")
            ar = 56 if st_ == 0 else AR + (st_ & 15)
            a(f"ds_write2st64_b32 v{ar}, v{T+2}, v{T+3} offset0:{st_>>1} offset1:{(st_>>1)+105}")
    stA(0); stB(0)
    for p in range(1, 17):
        if p < 16: stA(p)
        stC(p - 1)
        if p < 16: stB(p)
    a(f"""
    s_mov_b64 exec, -1
    v_min_u32 v12, 20, v4
    v_bfe_u32 v13, v12, 1, 3
    v_xor_b32 v13, v13, v6
    v_lshlrev_b32 v13, 4, v13
    v_lshl_add_u32 v12, v12, 7, v13
    s_add_u32 s33, s32, 4096
    v_add_u32 v44, s33, v12               ; RA[0]
    v_bfe_u32 v13, v4, 1, 3
    v_xor_b32 v13, v13, v6
    v_lshlrev_b32 v13, 4, v13
    v_lshl_add_u32 v12, v4, 7, v13
    v_mov_b32 v14, s32
    v_cmp_eq_u32 vcc, 0, v4
    v_xor_b32 v45, 32, v44
    v_cndmask_b32 v14, v14, 0, vcc
    v_add_u32 v48, v14, v12               ; RB[0]
    v_xor_b32 v46, 64, v44
    v_xor_b32 v47, 96, v44
    v_xor_b32 v49, 32, v48
    v_xor_b32 v50, 64, v48
    v_xor_b32 v51, 96, v48
    s_waitcnt lgkmcnt(0)
    """)
    stamp(a, 2)
    FR = [68 + 4 * i for i in range(15)] + [40]
    for g in range(4):
        a(f"ds_read_b128 v[{FR[4*g]}:{FR[4*g]+3}], v{44+g}")
        a(f"ds_read_b128 v[{FR[4*g+1]}:{FR[4*g+1]+3}], v{48+g} offset:26880")
        a(f"ds_read_b128 v[{FR[4*g+2]}:{FR[4*g+2]+3}], v{44+g} offset:26880")
        a(f"ds_read_b128 v[{FR[4*g+3]}:{FR[4*g+3]+3}], v{48+g}")
    KA = 16
    for g in range(4):
        AH, BL, AL, BH = FR[4*g:4*g+4]
        a(f"s_waitcnt lgkmcnt({14 - 4*g})")
        a(f"v_mfma_f32_32x32x16_bf16 v[{KA}:{KA+15}], v[{AH}:{AH+3}], v[{BL}:{BL+3}], {'0' if g == 0 else f'v[{KA}:{KA+15}]'}")
        a(f"s_waitcnt lgkmcnt({12 - 4*g})")
        a(f"v_mfma_f32_32x32x16_bf16 v[{KA}:{KA+15}], v[{AL}:{AL+3}], v[{BH}:{BH+3}], v[{KA}:{KA+15}]")
        a(f"v_mfma_f32_32x32x16_bf16 v[{KA}:{KA+15}], v[{AH}:{AH+3}], v[{BH}:{BH+3}], v[{KA}:{KA+15}]")
    a(f"""
    v_lshlrev_b32 v7, 4, v2
    v_add_u32 v7, s32, v7
    v_and_b32 v12, 3, v0
    v_mul_u32_u24 v12, 96, v12
    v_lshrrev_b32 v14, 2, v0
    v_add_u32 v12, v12, v14
    v_lshlrev_b32 v12, 4, v12             ; 16*pos(t)
    s_nop 7
    s_nop 4
    ds_write_b128 v7, v[{KA}:{KA+3}] offset:512
    ds_write_b128 v7, v[{KA+4}:{KA+7}] offset:{512+1024}
    ds_write_b128 v7, v[{KA+8}:{KA+11}] offset:{512+2048}
    s_waitcnt lgkmcnt(0)
    s_barrier
    s_cmp_eq_u32 s3, 3
    s_cbranch_scc1 k1_kg_nored
    ds_read_b128 v[16:19], v5 offset:512
    ds_read_b128 v[20:23], v5 offset:{512+WT}
    ds_read_b128 v[24:27], v5 offset:{512+2*WT}
    ds_read_b128 v[28:31], v5 offset:{512+3*WT}
    s_waitcnt lgkmcnt(0)
    v_add_f32 v16, v16, v20
    v_add_f32 v17, v17, v21
    v_add_f32 v18, v18, v22
    v_add_f32 v19, v19, v23
    v_add_f32 v24, v24, v28
    v_add_f32 v25, v25, v29
    v_add_f32 v26, v26, v30
    v_add_f32 v27, v27, v31
    v_add_f32 v16, v16, v24
    v_add_f32 v17, v17, v25
    v_add_f32 v18, v18, v26
    v_add_f32 v19, v19, v27
    ds_write_b128 v5, v[16:19] offset:{TBL}
    """)
    a("s_branch k1_kg_red")
    a.label("k1_kg_nored")
    a(f"""
    v_mov_b32 v16, 0
    v_mov_b32 v17, 0
    v_mov_b32 v18, 0
    v_mov_b32 v19, 0
    v_and_b32 v20, 3, v2
    v_lshlrev_b32 v20, 4, v20
    s_mul_i32 s23, s20, {XT_RS}
    s_add_u32 s24, s23, {256*XT_RS:#x}
    buffer_store_dwordx4 v[16:19], v20, s[8:11], s23 offen
    {'buffer_store_dwordx4 v[16:19], v20, s[8:11], s24 offen' if N_KG == 256 else ''}
    """)
    a.label("k1_kg_red")
    a(f"""
    s_lshl_b32 s24, s20, 13
    s_waitcnt lgkmcnt(0)
    s_barrier
    """)
    stamp(a, 3)
    for e in range(8):
        a(f"ds_read_b32 v{16+e}, v{60+e} offset:{TBL}")
    a("s_waitcnt lgkmcnt(0)")
    for e in range(0, 8, 2):
        a(f"v_cvt_pk_bf16_f32 v{32+e//2}, v{16+e}, v{17+e}")
    a(f"s_add_u32 s23, s24, 0x1000\nbuffer_store_dwordx4 v[32:35], v5, s[12:15], s24 offen {'' if 'kwb' in VAR else 'sc0 sc1'}")
    for e in range(0, 8, 2):
        a(f"v_lshlrev_b32 v{24+e}, 16, v{32+e//2}")
        a(f"v_and_b32 v{25+e}, s35, v{32+e//2}")
    for e in range(8):
        a(f"v_sub_f32 v{16+e}, v{16+e}, v{24+e}")
    for e in range(0, 8, 2):
        a(f"v_cvt_pk_bf16_f32 v{36+e//2}, v{16+e}, v{17+e}")
    a(f"buffer_store_dwordx4 v[36:39], v5, s[12:15], s23 offen {'' if 'kwb' in VAR else 'sc0 sc1'}")
    stamp_out(a, 0, 4, "k1_done")
    a("s_branch k1_done")

def gen_k2(a, k3=False):
    if not k3:
        a.label("k2_kernel")
        a(f"""
    s_cmp_ge_u32 s2, {N_G1 + N_CV}
    s_cbranch_scc1 k2_done
    v_lshrrev_b32 v1, 6, v0
    v_and_b32 v2, 63, v0              ; lane
    s_load_dwordx2 s[6:7], s[0:1], 112 ; ws
    v_readfirstlane_b32 s3, v1
    {f's_cmp_ge_u32 s2, {N_CV}' if 'cvfirst' in VAR else f's_cmp_lt_u32 s2, {N_G1}'}
    s_cbranch_scc1 {'k2_done' if 'k2_nog1' in VAR else 'k2_gemm'}
    {'s_branch k2_done' if 'k2_nocv' in VAR else ''}
    s_cmp_ge_u32 s2, {N_G1 + N_KG}
    s_cbranch_scc1 k2_cvB
    """)
    a(f"""
    s_load_dwordx2 s[4:5], s[0:1], 64 ; Dskip
    s_load_dwordx2 s[56:57], s[0:1], 88    ; w2
    {'s_add_u32 s20, s2, 256' if k3 else f's_sub_u32 s20, s2, {N_G1}'}         ; d
    v_and_b32 v4, 31, v2                  ; i / j
    v_lshrrev_b32 v6, 5, v2               ; half
    s_and_b32 s21, s20, 0x1fe
    s_lshl_b32 s21, s21, 1
    s_mul_i32 s23, s20, {XT_RS}       ; d*4224
    s_add_u32 s26, s23, 48            ; xn[-8]
    s_lshl_b32 s27, s20, 13           ; d*8192
    v_lshlrev_b32 v5, 4, v0           ; 16*t
    v_lshlrev_b32 v3, 5, v0           ; 32*t
    s_waitcnt lgkmcnt(0)
    s_load_dword s22, s[4:5], s21
    """)
    srd_off(a, 8, 6, 7, XT0_OFF, XT_SZ + 4096)
    srd_off(a, 12, 6, 7, KH_OFF, 0x400000)
    AS = 32
    a(f"""
    buffer_load_dwordx4 v[32:35], v5, s[8:11], s26 offen
    buffer_load_dwordx4 v[36:39], v5, s[8:11], s26 offen offset:16
    s_add_u32 s28, s27, 0x1000
    buffer_load_dwordx4 v[60:63], v5, s[12:15], s27 offen
    buffer_load_dwordx4 v[64:67], v5, s[12:15], s28 offen
    """)
    stamp(a, 0)
    prio2(a, PR[0], PR[3])
    srd_off(a, 16, 6, 7, YT_OFF, 0x200000)
    a(f"""
    v_and_b32 v15, 3, v0
    v_mul_u32_u24 v15, 96, v15
    v_lshrrev_b32 v14, 2, v0
    v_add_u32 v15, v15, v14
    v_lshlrev_b32 v15, 4, v15             ; 16*pos(t)
    v_mov_b32 v20, 0
    v_mov_b32 v21, 0
    v_mov_b32 v22, 0
    v_mov_b32 v23, 0
    s_cmp_eq_u32 s3, 3
    s_cbranch_scc1 k2_ca_zf
    s_cmp_ge_u32 s3, 2
    s_cbranch_scc1 k2_ca_nozero
    ds_write_b128 v15, v[20:23] offset:{KHL+1024}
    ds_write_b128 v15, v[20:23] offset:{KHL+6144+1024}
    s_branch k2_ca_nozero
    """)
    a.label("k2_ca_zf")
    a(f"""
    v_lshrrev_b32 v16, 3, v2
    v_min_u32 v16, 2, v16
    v_lshlrev_b32 v16, 4, v16
    v_and_b32 v17, 7, v2
    v_mov_b32 v18, {PS}
    v_mad_u32_u24 v16, v17, v18, v16
    ds_write_b128 v16, v[20:23]
    """)
    a.label("k2_ca_nozero")
    a(f"""
    s_lshl_b32 s35, s3, 4             ; c_start
    v_lshrrev_b32 v12, 3, v4
    v_add_u32 v12, v12, v6
    v_lshlrev_b32 v12, 4, v12         ; 16*((b>>3)+kg)
    v_and_b32 v13, 7, v4
    v_mov_b32 v14, {PS}
    v_mad_u32_u24 v12, v13, v14, v12
    s_lshl_b32 s36, s35, 5
    v_add_u32 v12, s36, v12           ; vA (tile1 A address at c_start)
    v_mul_u32_u24 v13, 96, v6
    v_sub_u32 v13, v13, v4
    v_add_u32 v13, 31, v13
    v_lshlrev_b32 v13, 4, v13
    s_lshl_b32 s36, s35, 3            ; 16*(c/2)
    s_add_u32 s36, s36, {KHL}
    v_add_u32 v13, s36, v13           ; vB
    """)
    a("s_waitcnt vmcnt(2)")
    stamp(a, 1)
    a(f"ds_write_b128 v5, v[34:37] offset:{3*PS + 48}")
    a(f"ds_write_b128 v5, v[36:39] offset:{7*PS + 48}")
    for k in range(6):
        a(f"v_alignbit_b32 v{40+k}, v{33+k}, v{32+k}, 16")
    a(f"ds_write_b128 v5, v[40:43] offset:{0*PS + 48}")
    a(f"ds_write_b128 v5, v[42:45] offset:{4*PS + 48}")
    for k in range(6):
        a(f"v_mov_b32 v{48+k}, v{33+k}")
    a(f"ds_write_b128 v5, v[48:51] offset:{1*PS + 48}")
    a(f"ds_write_b128 v5, v[50:53] offset:{5*PS + 48}")
    for k in range(6):
        a(f"v_alignbit_b32 v{54+k}, v{34+k}, v{33+k}, 16")
    a(f"ds_write_b128 v5, v[54:57] offset:{2*PS + 48}")
    a(f"ds_write_b128 v5, v[56:59] offset:{6*PS + 48}")
    for k in range(4):
        a(f"v_mov_b32 v{8+k}, v{36+k}")
    a(f"""
    s_waitcnt vmcnt(1)
    ds_write_b128 v15, v[60:63] offset:{KHL}
    s_waitcnt vmcnt(0)
    ds_write_b128 v15, v[64:67] offset:{KHL+6144}
    """)
    stamp(a, 2)
    stamp(a, 3)
    if not k3:
        a("s_branch k2_cv_join")
        a.label("k2_cvB")
        a(f"""
        s_load_dwordx2 s[4:5], s[0:1], 64 ; Dskip
        s_load_dwordx8 s[40:47], s[0:1], 8
        s_load_dwordx4 s[48:51], s[0:1], 40
        s_load_dwordx2 s[52:53], s[0:1], 56    ; log_dt
        s_load_dwordx2 s[56:57], s[0:1], 88    ; w2
        s_sub_u32 s20, s2, {0 if 'cvfirst' in VAR else N_G1}         ; d
        s_lshl_b32 s27, s20, 8                ; d*256 bytes
        s_lshl_b32 s28, s3, 6
        s_add_u32 s27, s27, s28
        v_and_b32 v4, 31, v2                  ; i / j
        v_lshrrev_b32 v6, 5, v2               ; half
        v_lshlrev_b32 v7, 1, v4
        v_add_u32 v7, s27, v7
        s_lshl_b32 s27, s20, 1
        v_mov_b32 v14, s27                    ; 2*d
        s_waitcnt lgkmcnt(0)
        global_load_ushort v80, v7, s[40:41]
        global_load_ushort v81, v7, s[42:43]
        global_load_ushort v82, v7, s[44:45]
        global_load_ushort v83, v7, s[46:47]
        global_load_ushort v84, v7, s[48:49]
        global_load_ushort v85, v7, s[50:51]
        global_load_ushort v86, v14, s[52:53]
        s_and_b32 s21, s20, 0x1fe
        s_lshl_b32 s21, s21, 1
        s_load_dword s22, s[4:5], s21
        """)
        stamp(a, 0)
        prio2(a, PR[0], PR[3])
        srd_off(a, 8, 6, 7, XT0_OFF, XT_SZ + 4096)
        srd_off(a, 16, 6, 7, YT_OFF, 0x200000)
        AS = 32
        srd_off(a, 12, 6, 7, TB_OFF, 8192)
        a(f"""
        s_mul_i32 s23, s20, {XT_RS}       ; d*4224
        s_add_u32 s26, s23, 48            ; xn[-8]
        v_lshlrev_b32 v5, 4, v0           ; 16*t
        v_lshlrev_b32 v3, 5, v0           ; 32*t
        buffer_load_dwordx4 v[60:63], v3, s[12:15], 0 offen
        buffer_load_dwordx4 v[64:67], v3, s[12:15], 0 offen offset:16
        """)
        TBL = KHL + 12288
        WT = 6656
        P = [None] + [92 + 2 * i for i in range(7)]
        G1, G2, G3, G6 = 106, 108, 110, 112
        A = [114, 116, 118, 120]
        M1, M3 = 122, 124
        AR = 40
        NA = [84, 85, 86, 87]
        def cmul2(d, x, y, d2, x2, y2):
            a(f"""
            v_mul_f32 v{d}, v{x}, v{y}
            v_mul_f32 v{d+1}, v{x}, v{y+1}
            v_mul_f32 v{d2}, v{x2}, v{y2}
            v_mul_f32 v{d2+1}, v{x2}, v{y2+1}
            v_fma_f32 v{d}, -v{x+1}, v{y+1}, v{d}
            v_fmac_f32 v{d+1}, v{x+1}, v{y}
            v_fma_f32 v{d2}, -v{x2+1}, v{y2+1}, v{d2}
            v_fmac_f32 v{d2+1}, v{x2+1}, v{y2}
            """)
        a(f"""
        s_mov_b32 s54, 0
        s_mov_b32 s55, -1
        s_mul_i32 s32, s3, {WT}
        v_lshlrev_b32 v12, 12, v6
        v_add_u32 v12, s32, v12
        v_and_b32 v13, 3, v4
        v_lshl_add_u32 v12, v13, 2, v12
        v_lshrrev_b32 v13, 2, v4
        v_lshl_add_u32 v12, v13, 4, v12
        """)
        for c in range(16):
            a(f"v_xor_b32 v{AR+c}, {16*((c>>1)&7) + 128*(c&1)}, v12")
        a(f"""
        v_mov_b32 v13, s32
        v_cndmask_b32 v13, v13, 0, s[54:55]
        v_sub_u32 v56, v12, v13
        v_mov_b32 v14, 0x41000000             ; 8
        v_cndmask_b32 v12, v14, 1.0, s[54:55] ; c1
        v_cndmask_b32 v13, v14, -1.0, s[54:55] ; c1 (phase)
        v_mov_b32 v14, 0x42800000             ; 64
        v_mov_b32 v15, 0x43800000             ; 256
        v_cndmask_b32 v57, v14, v15, s[54:55] ; c2
        v_cndmask_b32 v58, v14, -v15, s[54:55] ; c2 (phase)
        s_mov_b32 s33, 0x3fb8aa3b             ; log2e
        s_mov_b32 s34, 0x3e22f983             ; 1/(2pi)
        s_mov_b32 s35, 0xffff0000
        s_mov_b32 s36, 0x0000bf80
        s_mov_b32 s37, 0x80000000
        s_waitcnt vmcnt(2)
        """)
        stamp(a, 1)
        a(f"""
        v_lshlrev_b32 v86, 16, v86
        v_mul_f32 v86, s33, v86
        v_exp_f32 v86, v86
        v_lshlrev_b32 v80, 16, v80
        v_lshlrev_b32 v81, 16, v81
        v_lshlrev_b32 v82, 16, v82
        v_lshlrev_b32 v83, 16, v83
        v_lshlrev_b32 v84, 16, v84
        v_lshlrev_b32 v85, 16, v85
        v_cvt_pk_bf16_f32 v86, v86, v86
        v_and_b32 v86, s35, v86               ; dt
        v_mul_f32 v80, v86, v80               ; lr
        v_mul_f32 v81, v86, v81               ; li
        v_mul_f32 v82, v86, v82               ; dBr
        v_mul_f32 v83, v86, v83               ; dBi
        v_mul_f32 v88, s33, v80               ; lr2
        v_mul_f32 v89, s34, v81               ; lif
        v_mul_f32 v68, v88, v12
        v_mul_f32 v69, v89, v13
        v_mul_f32 v70, v88, v57
        v_mul_f32 v71, v89, v58
        v_exp_f32 v68, v68
        v_fract_f32 v69, v69
        v_exp_f32 v70, v70
        v_fract_f32 v71, v71
        v_cos_f32 v{P[1]}, v69
        v_sin_f32 v{P[1]+1}, v69
        v_cos_f32 v{G1}, v71
        v_sin_f32 v{G1+1}, v71
        v_mul_f32 v90, v84, v82
        v_fma_f32 v90, -v85, v83, v90         ; CBr
        v_mul_f32 v91, v84, v83
        v_fma_f32 v91, v85, v82, v91          ; CBi
        v_mul_f32 v{P[1]}, v68, v{P[1]}
        v_mul_f32 v{P[1]+1}, v68, v{P[1]+1}
        v_mul_f32 v{G1}, v70, v{G1}
        v_mul_f32 v{G1+1}, v70, v{G1+1}
        v_cndmask_b32 v{A[0]}, 1.0, v90, s[54:55]
        v_cndmask_b32 v{A[0]+1}, 0, -v91, s[54:55]
        """)
        cmul2(P[2], P[1], P[1], G2, G1, G1)
        cmul2(P[3], P[2], P[1], G3, G2, G1)
        cmul2(P[4], P[2], P[2], A[1], A[0], G1)
        cmul2(P[6], P[3], P[3], G6, G3, G3)
        cmul2(P[5], P[4], P[1], A[2], A[0], G2)
        cmul2(P[7], P[4], P[3], A[3], A[0], G3)
        a(f"""
        v_cndmask_b32 v{M1}, v{P[1]}, v{G3}, s[54:55]
        v_cndmask_b32 v{M1+1}, v{P[1]+1}, v{G3+1}, s[54:55]
        v_cndmask_b32 v{M3}, v{P[3]}, v{G6}, s[54:55]
        v_cndmask_b32 v{M3+1}, v{P[3]+1}, v{G6+1}, s[54:55]
        v_xor_b32 v{NA[0]}, s37, v{A[0]+1}
        v_xor_b32 v{NA[1]}, s37, v{A[1]+1}
        v_xor_b32 v{NA[2]}, s37, v{A[2]+1}
        v_xor_b32 v{NA[3]}, s37, v{A[3]+1}
        """)
        def src_of(m, b):
            if b == 0: return None
            if m > 0 and b == 1: return M1
            if m > 0 and b == 3: return M3
            return P[b]
        def pair(p):
            pr = []
            for k in range(2):
                st_ = 2 * p + k
                m, b = KSTEPS[st_]
                pr.append((st_, m, b, 68 + 4 * ((p & 1) * 2 + k)))
            return pr
        def stA(p):
            n = 0
            for (st_, m, b, T) in pair(p):
                y = src_of(m, b)
                if y is not None:
                    a(f"v_mul_f32 v{T}, v{A[m]}, v{y}")
                    a(f"v_mul_f32 v{T+1}, v{A[m]}, v{y+1}"); n += 2
            for (st_, m, b, T) in pair(p):
                y = src_of(m, b)
                if y is not None:
                    a(f"v_fmac_f32 v{T}, v{NA[m]}, v{y+1}")
                    a(f"v_fmac_f32 v{T+1}, v{A[m]+1}, v{y}"); n += 2
            return 4
        def stB(p):
            for (st_, m, b, T) in pair(p):
                V = T if b else A[m]
                a(f"v_cvt_pk_bf16_f32 v{T+2}, v{V}, v{V+1}")
            for k, (st_, m, b, T) in enumerate(pair(p)):
                a(f"v_lshlrev_b32 v{88+2*k}, 16, v{T+2}")
                a(f"v_and_b32 v{89+2*k}, s35, v{T+2}")
            for k, (st_, m, b, T) in enumerate(pair(p)):
                V = T if b else A[m]
                a(f"v_sub_f32 v{T}, v{V}, v{88+2*k}")
                a(f"v_sub_f32 v{T+1}, v{V+1}, v{89+2*k}")
        def stC(p):
            for (st_, m, b, T) in pair(p):
                a(f"v_cvt_pk_bf16_f32 v{T+3}, v{T}, v{T+1}")
            for (st_, m, b, T) in pair(p):
                if st_ == 21:
                    a("s_mov_b32 exec_hi, 0")
                ar = 56 if st_ == 0 else AR + (st_ & 15)
                a(f"ds_write2st64_b32 v{ar}, v{T+2}, v{T+3} offset0:{st_>>1} offset1:{(st_>>1)+105}")
        stA(0); stB(0)
        for p in range(1, 17):
            if p < 16: stA(p)
            stC(p - 1)
            if p < 16: stB(p)
        a(f"""
        s_mov_b64 exec, -1
        v_min_u32 v12, 20, v4
        v_bfe_u32 v13, v12, 1, 3
        v_xor_b32 v13, v13, v6
        v_lshlrev_b32 v13, 4, v13
        v_lshl_add_u32 v12, v12, 7, v13
        s_add_u32 s33, s32, 4096
        v_add_u32 v44, s33, v12               ; RA[0]
        v_bfe_u32 v13, v4, 1, 3
        v_xor_b32 v13, v13, v6
        v_lshlrev_b32 v13, 4, v13
        v_lshl_add_u32 v12, v4, 7, v13
        v_mov_b32 v14, s32
        v_cmp_eq_u32 vcc, 0, v4
        v_xor_b32 v45, 32, v44
        v_cndmask_b32 v14, v14, 0, vcc
        v_add_u32 v48, v14, v12               ; RB[0]
        v_xor_b32 v46, 64, v44
        v_xor_b32 v47, 96, v44
        v_xor_b32 v49, 32, v48
        v_xor_b32 v50, 64, v48
        v_xor_b32 v51, 96, v48
        s_waitcnt lgkmcnt(0)
        """)
        stamp(a, 2)
        FR = [68 + 4 * i for i in range(15)] + [40]
        for g in range(4):
            a(f"ds_read_b128 v[{FR[4*g]}:{FR[4*g]+3}], v{44+g}")
            a(f"ds_read_b128 v[{FR[4*g+1]}:{FR[4*g+1]+3}], v{48+g} offset:26880")
            a(f"ds_read_b128 v[{FR[4*g+2]}:{FR[4*g+2]+3}], v{44+g} offset:26880")
            a(f"ds_read_b128 v[{FR[4*g+3]}:{FR[4*g+3]+3}], v{48+g}")
        KA = 16
        for g in range(4):
            AH, BL, AL, BH = FR[4*g:4*g+4]
            a(f"s_waitcnt lgkmcnt({14 - 4*g})")
            a(f"v_mfma_f32_32x32x16_bf16 v[{KA}:{KA+15}], v[{AH}:{AH+3}], v[{BL}:{BL+3}], {'0' if g == 0 else f'v[{KA}:{KA+15}]'}")
            a(f"s_waitcnt lgkmcnt({12 - 4*g})")
            a(f"v_mfma_f32_32x32x16_bf16 v[{KA}:{KA+15}], v[{AL}:{AL+3}], v[{BH}:{BH+3}], v[{KA}:{KA+15}]")
            a(f"v_mfma_f32_32x32x16_bf16 v[{KA}:{KA+15}], v[{AH}:{AH+3}], v[{BH}:{BH+3}], v[{KA}:{KA+15}]")
        a(f"""
        v_lshlrev_b32 v7, 4, v2
        v_add_u32 v7, s32, v7
        v_and_b32 v12, 3, v0
        v_mul_u32_u24 v12, 96, v12
        v_lshrrev_b32 v14, 2, v0
        v_add_u32 v12, v12, v14
        v_lshlrev_b32 v12, 4, v12             ; 16*pos(t)
        s_nop 7
        s_nop 4
        ds_write_b128 v7, v[{KA}:{KA+3}] offset:512
        ds_write_b128 v7, v[{KA+4}:{KA+7}] offset:{512+1024}
        ds_write_b128 v7, v[{KA+8}:{KA+11}] offset:{512+2048}
        s_waitcnt lgkmcnt(0)
        s_barrier
        s_cmp_eq_u32 s3, 3
        s_cbranch_scc1 k2_cv_nored
        ds_read_b128 v[16:19], v5 offset:512
        ds_read_b128 v[20:23], v5 offset:{512+WT}
        ds_read_b128 v[24:27], v5 offset:{512+2*WT}
        ds_read_b128 v[28:31], v5 offset:{512+3*WT}
        s_waitcnt lgkmcnt(0)
        v_add_f32 v16, v16, v20
        v_add_f32 v17, v17, v21
        v_add_f32 v18, v18, v22
        v_add_f32 v19, v19, v23
        v_add_f32 v24, v24, v28
        v_add_f32 v25, v25, v29
        v_add_f32 v26, v26, v30
        v_add_f32 v27, v27, v31
        v_add_f32 v16, v16, v24
        v_add_f32 v17, v17, v25
        v_add_f32 v18, v18, v26
        v_add_f32 v19, v19, v27
        ds_write_b128 v5, v[16:19] offset:{TBL}
        """)
        a.label("k2_cv_nored")
        a("s_waitcnt vmcnt(0)")
        a(f"""
        s_waitcnt lgkmcnt(0)
        s_barrier
        """)
        stamp(a, 3)
        for e in range(8):
            a(f"ds_read_b32 v{16+e}, v{60+e} offset:{TBL}")
        srd_off(a, 12, 6, 7, KH_OFF, 0x400000)
        srd(a, 56, 56, 57, 1376 * 1024)
        a(f"""
        s_lshl_b32 s36, s20, 12
        v_add_u32 v72, s36, v5
        buffer_load_dwordx4 v[68:71], v72, s[56:59], 0 offen
        s_lshl_b32 s24, s20, 13
        s_waitcnt lgkmcnt(0)
        """)
        for e in range(0, 8, 2):
            a(f"v_cvt_pk_bf16_f32 v{32+e//2}, v{16+e}, v{17+e}")
        for e in range(0, 8, 2):
            a(f"v_lshlrev_b32 v{24+e}, 16, v{32+e//2}")
            a(f"v_and_b32 v{25+e}, s35, v{32+e//2}")
        for e in range(8):
            a(f"v_sub_f32 v{16+e}, v{16+e}, v{24+e}")
        for e in range(0, 8, 2):
            a(f"v_cvt_pk_bf16_f32 v{36+e//2}, v{16+e}, v{17+e}")
        a(f"""
        s_add_u32 s23, s24, 0x1000
        buffer_store_dwordx4 v[32:35], v5, s[12:15], s24 offen {'' if 'kwb' in VAR else 'sc0 sc1'}
        buffer_store_dwordx4 v[36:39], v5, s[12:15], s23 offen {'' if 'kwb' in VAR else 'sc0 sc1'}
        """)
        stamp_out(a, 1, 4, "k2_done")
        a("s_branch k2_done")
    a.label("k2_cv_join")
    ACC1, ACC2, ACC0, ACC3 = 16, 16, 48, 48
    first = set()
    F = [80, 104]
    a("""
    s_waitcnt vmcnt(0) lgkmcnt(0)
    s_barrier
    """)
    stamp(a, 4)
    prio2(a, PR[1], PR[4])
    if 'nopf' not in VAR and 'pf1' not in VAR and not k3:
        srd(a, 56, 56, 57, 1376 * 1024)
        if 'e1' in VAR:
            a("""
            s_lshr_b32 s36, s20, 3
            s_mul_i32 s36, s36, 22016
            v_add_u32 v72, s36, v5
            """)
            for j in range(1, 6):
                a(f"v_add_u32 v{72+j}, {j*4096:#x}, v72")
            for j in range(6):
                a(f"buffer_load_dwordx4 v[68:71], v{72 + j}, s[56:59], 0 offen")
        else:
            a("""
            s_lshl_b32 s36, s20, 12
            v_add_u32 v72, s36, v5
            buffer_load_dwordx4 v[68:71], v72, s[56:59], 0 offen
            """)
    def mf(acc, A, B):
        c = f"v[{acc}:{acc+15}]" if acc in first else "0"
        first.add(acc)
        a(f"v_mfma_f32_32x32x16_bf16 v[{acc}:{acc+15}], v[{A}:{A+3}], v[{B}:{B+3}], {c}")
    def rd(dst, base, off):
        a(f"ds_read_b128 v[{dst}:{dst+3}], v{base} offset:{off}")
    def boff(c):
        return 16 * (c // 2) + 3072 * (c & 1)
    def ch_reads(c, f):
        rd(f, 12, AS * c)
        rd(f + 4, 13, boff(c))
        rd(f + 8, 13, boff(c + 64))
        rd(f + 12, 13, boff(c) + 6144)
        rd(f + 16, 13, boff(c + 64) + 6144)
        rd(f + 20, 12, AS * (c + 64))
    def ch_mfma(f, last):
        base = 0 if last else 6
        a(f"s_waitcnt lgkmcnt({base + 4})")
        mf(ACC1, f, f + 4)
        a(f"s_waitcnt lgkmcnt({base + 3})")
        mf(ACC0, f, f + 8)
        a(f"s_waitcnt lgkmcnt({base + 2})")
        mf(ACC2, f, f + 12)
        a(f"s_waitcnt lgkmcnt({base + 1})")
        mf(ACC3, f, f + 16)
        a(f"s_waitcnt lgkmcnt({base})")
        mf(ACC1, f + 20, f + 8)
        mf(ACC2, f + 20, f + 16)
    ch_reads(0, F[0])
    for c in range(16):
        if c < 15:
            ch_reads(c + 1, F[(c + 1) & 1])
        ch_mfma(F[c & 1], c == 15)
    a.label("k2_cv_fin")
    stamp(a, 5)
    prio2(a, PR[2], PR[5])
    a(f"""
    s_waitcnt lgkmcnt(0)
    s_nop 7
    s_nop 7
    """)
    a(f"""
    s_barrier
    v_mul_u32_u24 v14, 144, v4
    v_lshl_add_u32 v14, v6, 4, v14     ; a_l*144 + 16h
    s_mul_i32 s36, s3, 4608
    v_add_u32 v14, s36, v14
    """)
    for q in range(4):
        a(f"ds_write_b128 v14, v[{ACC1+4*q}:{ACC1+4*q+3}] offset:{32*q}")
    for q in range(4):
        a(f"ds_write_b128 v14, v[{ACC0+4*q}:{ACC0+4*q+3}] offset:{32*q + 4*4608}")
    a(f"""
    v_lshrrev_b32 v14, 2, v0
    v_and_b32 v14, 31, v14
    v_mul_u32_u24 v14, 144, v14
    v_and_b32 v15, 3, v0
    v_lshl_add_u32 v14, v15, 5, v14    ; a_l*144 + sub*32
    s_cmp_lt_u32 s3, 2
    s_cselect_b32 s36, {4*4608}, 0
    v_add_u32 v14, s36, v14
    s_waitcnt lgkmcnt(0)
    s_barrier
    """)
    for s in range(4):
        a(f"ds_read_b128 v[{16+8*s}:{19+8*s}], v14 offset:{s*4608}")
        a(f"ds_read_b128 v[{20+8*s}:{23+8*s}], v14 offset:{s*4608+16}")
    a("s_waitcnt lgkmcnt(0)")
    for i in range(8):
        a(f"v_add_f32 v{16+i}, v{16+i}, v{40+i}")
    a(f"""
    s_waitcnt lgkmcnt(0)
    s_and_b32 s21, s20, 1
    s_lshl_b32 s21, s21, 4
    s_lshr_b32 s22, s22, s21
    s_lshl_b32 s22, s22, 16
    s_mov_b32 s23, 0xffff0000
    s_lshl_b32 s24, s20, 12
    """)
    for i in range(8):
        a(f"v_add_f32 v{24+i}, v{24+i}, v{32+i}")
    for i in range(8):
        a(f"v_add_f32 v{16+i}, v{16+i}, v{24+i}")
    for j in range(4):
        a(f"""
        v_cvt_pk_bf16_f32 v24, v{16+2*j}, v{17+2*j}
        v_lshlrev_b32 v25, 16, v{8+j}
        v_and_b32 v26, s23, v{8+j}
        v_mul_f32 v25, s22, v25
        v_mul_f32 v26, s22, v26
        v_cvt_pk_bf16_f32 v27, v25, v26
        v_lshlrev_b32 v25, 16, v24
        v_and_b32 v26, s23, v24
        v_lshlrev_b32 v28, 16, v27
        v_and_b32 v29, s23, v27
        v_add_f32 v25, v25, v28
        v_add_f32 v26, v26, v29
        v_cvt_pk_bf16_f32 v{32+j}, v25, v26
        """)
    a(f"""
    buffer_store_dwordx4 v[32:35], v5, s[16:19], s24 offen sc0 sc1
    """)
    if k3:
        srd_off(a, 28, 6, 7, TB_OFF, 0x8000)
        a(f"""
        s_lshr_b32 s24, s2, 6
        s_lshl_b32 s24, s24, 8
        s_add_u32 s24, s24, 0x4000
        v_mov_b32 v16, 1
        v_mov_b32 v17, 0
        s_waitcnt vmcnt(0)
        s_barrier
        s_cmp_lg_u32 s3, 0
        s_cbranch_scc1 k3_done
        s_mov_b64 exec, 1
        buffer_atomic_add v16, v17, s[28:31], s24 offen sc1
        s_mov_b64 exec, -1
        """)
        stamp_out(a, 2, 6, "k3_done")
        a("s_branch k3_done")
        return
    stamp_out(a, 1, 6, "k2_done")
    a("s_branch k2_done")

    a.label("k2_gemm")
    a(f"""
    s_load_dwordx2 s[4:5], s[0:1], 80 ; w1
    s_and_b32 s20, s2, 15             ; mt
    s_sub_u32 s21, s2, {N_CV if 'cvfirst' in VAR else 0}
    s_lshr_b32 s21, s21, 4             ; nt
    s_waitcnt lgkmcnt(0)
    """)
    stamp(a, 0)
    prio2(a, PR[6], PR[6])
    srd(a, 8, 6, 7, 0x200000)
    srd(a, 12, 4, 5, 512 * 2752)
    srd_off(a, 16, 6, 7, H_OFF, H_SZ)
    ST = 6144
    GD = int(os.environ.get('GD', '6'))
    a(f"""
    s_lshl_b32 s22, s3, 15
    v_lshl_add_u32 v3, v2, 4, s22
    s_mul_i32 s22, s3, 96
    v_add_u32 v4, s22, v2              ; P = 96w + l
    v_add_u32 v5, 64, v4
    s_movk_i32 s23, 5462               ; 65536/12
    s_movk_i32 s24, 2752
    v_mul_u32_u24 v6, s23, v4
    v_lshrrev_b32 v6, 16, v6           ; row
    v_mul_u32_u24 v7, 12, v6
    v_sub_u32 v4, v4, v7               ; cc
    v_lshlrev_b32 v4, 4, v4
    v_mad_u32_u24 v4, v6, s24, v4      ; voffB0
    v_mul_u32_u24 v6, s23, v5
    v_lshrrev_b32 v6, 16, v6
    v_mul_u32_u24 v7, 12, v6
    v_sub_u32 v5, v5, v7
    v_lshlrev_b32 v5, 4, v5
    v_mad_u32_u24 v5, v6, s24, v5      ; voffB1
    s_lshl_b32 s25, s20, 17
    s_mul_i32 s26, s21, 192
    s_lshr_b32 s36, s20, 3
    s_lshl_b32 s36, s36, {os.environ.get('RM', '3')}
    s_add_u32 s36, s36, s21
    s_and_b32 s36, s36, {0 if 'norot' in VAR else 15}
    s_mul_i32 s28, s3, 1536
    s_mov_b64 s[30:31], -1
    s_mov_b32 s32, -1
    s_mov_b32 s33, 0
    """)
    def dma(kc):
        st = (kc % 3) * ST
        a(f"""
        s_add_u32 m0, s27, {st}
        s_add_u32 s29, s25, {kc*64 + 16384}
        buffer_load_dwordx4 v3, s[8:11], s25 offen offset:{0} lds
        s_add_u32 m0, s27, {st + 1024}
        s_nop 0
        buffer_load_dwordx4 v3, s[8:11], s29 offen lds
        s_add_u32 m0, s28, {st}
        s_nop 0
        buffer_load_dwordx4 v4, s[12:15], s26 offen lds
        s_add_u32 m0, s28, {st + 1024}
        s_mov_b64 exec, s[32:33]
        buffer_load_dwordx4 v5, s[12:15], s26 offen lds
        s_mov_b64 exec, s[30:31]
        s_add_u32 s25, s25, 64
        s_add_u32 s26, s26, {32*2752}
        """)
    a(f"""
    v_and_b32 v6, 31, v2               ; m
    v_lshrrev_b32 v7, 5, v2            ; kg / h
    s_lshl_b32 s22, s3, 5
    v_add_u32 v8, s22, v6
    v_lshlrev_b32 v8, 6, v8            ; row*64
    v_lshrrev_b32 v9, 2, v6
    v_and_b32 v9, 3, v9                ; (row>>2)&3
    v_xor_b32 v10, v9, v7
    v_lshl_add_u32 v10, v10, 4, v8     ; vAr0
    v_xor_b32 v11, 2, v9
    v_xor_b32 v11, v11, v7
    v_lshl_add_u32 v11, v11, 4, v8
    v_lshlrev_b32 v12, 3, v7           ; 8*kg
    v_bfe_u32 v13, v2, 2, 2
    v_add_u32 v12, v12, v13
    v_mul_u32_u24 v12, 192, v12
    v_bfe_u32 v13, v2, 4, 1
    v_lshl_add_u32 v12, v13, 5, v12    ; + 32*((l>>4)&1)
    v_and_b32 v13, 3, v2
    v_lshl_add_u32 v12, v13, 3, v12    ; + 8*(l&3)
    """)
    ACC = 16
    for i in range(48):
        a(f"v_mov_b32 v{ACC+i}, 0")
    return_dma = dma
    def dma2(kc):
        st = (kc % GD) * ST
        a(f"""
        s_lshl_b32 s37, s36, 11
        s_add_u32 s37, s37, s25
        s_mul_i32 s38, s36, {32*2752}
        buffer_load_dwordx4 v[{112+8*(kc%(GD+1))}:{115+8*(kc%(GD+1))}], v3, s[8:11], s37 offen
        buffer_load_dwordx4 v[{116+8*(kc%(GD+1))}:{119+8*(kc%(GD+1))}], v3, s[8:11], s37 offen offset:1024
        s_add_u32 m0, s28, {st}
        s_add_u32 s38, s38, s26
        buffer_load_dwordx4 v4, s[12:15], s38 offen lds
        s_add_u32 m0, s28, {st + 1024}
        s_mov_b64 exec, s[32:33]
        buffer_load_dwordx4 v5, s[12:15], s38 offen lds
        s_mov_b64 exec, s[30:31]
        s_add_u32 s36, s36, 1
        s_and_b32 s36, s36, 15
        """)
    for kc in range(GD): dma2(kc)
    FB = 64
    def breads(kc):
        st = (kc % GD) * ST
        for ks in range(2):
            for j in range(3):
                b = FB + 24 * (kc & 1) + 12 * ks + 4 * j
                off = st + ks * 16 * 192 + 64 * j
                a(f"ds_read_b64_tr_b16 v[{b}:{b+1}], v12 offset:{off}")
                a(f"ds_read_b64_tr_b16 v[{b+2}:{b+3}], v12 offset:{off + 4*192}")
    a(f"s_waitcnt vmcnt({4*(GD-1)})")
    a("s_barrier")
    stamp(a, 1)
    breads(0)
    for kc in range(16):
        if kc < 15:
            a(f"s_waitcnt vmcnt({4 * (min(kc + GD - 1, 15) - (kc + 1))}) lgkmcnt(0)")
            a("s_barrier")
            if kc + GD < 16:
                dma2(kc + GD)
            breads(kc + 1)
        else:
            a("s_waitcnt lgkmcnt(0)")
        FA = 112 + 8 * (kc % (GD + 1))
        for ks in range(2):
            for j in range(3):
                b = FB + 24 * (kc & 1) + 12 * ks + 4 * j
                a(f"v_mfma_f32_32x32x16_bf16 v[{ACC+16*j}:{ACC+16*j+15}], v[{b}:{b+3}], v[{FA+4*ks}:{FA+4*ks+3}], v[{ACC+16*j}:{ACC+16*j+15}]")
    stamp(a, 2)
    prio2(a, PR[7], PR[7])
    a(f"""
    s_barrier
    s_lshl_b32 s22, s3, 5
    v_add_u32 v8, s22, v6
    v_mul_u32_u24 v8, 208, v8
    v_lshl_add_u32 v8, v7, 3, v8       ; row*208 + 8h
    s_nop 7
    s_nop 3
    """)
    for j in range(3):
        for q in range(4):
            r = ACC + 16 * j + 4 * q
            a(f"""
            v_max_f32 v{r}, 0, v{r}
            v_max_f32 v{r+1}, 0, v{r+1}
            v_max_f32 v{r+2}, 0, v{r+2}
            v_max_f32 v{r+3}, 0, v{r+3}
            v_cvt_pk_bf16_f32 v{r}, v{r}, v{r+1}
            v_cvt_pk_bf16_f32 v{r+1}, v{r+2}, v{r+3}
            ds_write_b64 v8, v[{r}:{r+1}] offset:{64*j + 16*q}
            """)
    a(f"""
    s_mul_i32 s22, s3, {32*208}
    s_lshl_b32 s25, s20, 2
    s_add_u32 s25, s25, s3
    s_mul_i32 s25, s25, {H_RB}
    s_mul_i32 s26, s21, 6144
    s_add_u32 s25, s25, s26
    v_and_b32 v10, 31, v2
    v_mul_u32_u24 v12, 208, v10
    v_lshrrev_b32 v9, 5, v2
    v_lshl_add_u32 v12, v9, 4, v12
    v_add_u32 v12, s22, v12
    v_lshlrev_b32 v11, 4, v2
    s_mul_i32 s26, s21, 96
    s_movk_i32 s27, {H_RS}
    s_movk_i32 s28, 208
    s_mov_b32 s29, 0x40000000
    s_movk_i32 s34, 1376
    s_movk_i32 s35, 1408
    s_waitcnt lgkmcnt(0)
    """)
    for i in range(6):
        a(f"""
        ds_read_b128 v[{64+4*i}:{67+4*i}], v12 offset:{32*i}
        v_add_u32 v{90+i}, {1024*i}, v11
        v_add_u32 v10, {2*i}, v9
        v_lshl_add_u32 v{96+i}, v10, 3, s26 ; col
        """)
    for i in range(6):
        a(f"""
        s_waitcnt lgkmcnt({5-i})
        v_cmp_gt_u32 vcc, s34, v{96+i}
        v_mov_b32 v9, s29
        v_cndmask_b32 v{64+4*i}, 0, v{64+4*i}, vcc
        v_cndmask_b32 v{65+4*i}, 0, v{65+4*i}, vcc
        v_cndmask_b32 v{66+4*i}, 0, v{66+4*i}, vcc
        v_cndmask_b32 v{67+4*i}, 0, v{67+4*i}, vcc
        v_cmp_gt_u32 vcc, s35, v{96+i}
        s_nop 1
        v_cndmask_b32 v{90+i}, v9, v{90+i}, vcc
        buffer_store_dwordx4 v[{64+4*i}:{67+4*i}], v{90+i}, s[16:19], s25 offen sc0 sc1
        """)
    stamp_out(a, 1, 3, "k2_done")
    a.label("k2_done")
    a("s_endpgm")

def add(kernels, launches):
    a = Asm()
    gen_k2(a)
    kernels.append(("k2_kernel", a.text(), 120 + 8 * int(os.environ.get("GD", "6"))))
    launches.append(f"; @launch kernel=k2_kernel grid=({N_G1+N_CV},1,1) block=(256,1,1) lds={K2_LDS}")
    try:
        import gen3
        gen3.add(kernels, launches)
    except ImportError:
        pass
```

```python
from gen import *

N_G1 = 240
N_CV = 512
PS = int(os.environ.get('PS', '4384'))
K2_LDS = max(8 * PS + 12288 + 3072, 26880 + 26752)
UH = 0
KHL = 8 * PS

PR = [int(x) for x in os.environ.get('PR', '2,0,2,2,0,2,0,2').split(',')]
_pl = [0]
def prio2(a, pa, pb):
    if 'noprio' in VAR: return
    if pa == pb:
        a(f"s_setprio {pa}"); return
    _pl[0] += 1
    a(f"""
    s_setprio {pa}
    s_cmp_lt_u32 s20, 256
    s_cbranch_scc1 k2_pr{_pl[0]}
    s_setprio {pb}
    """)
    a.label(f"k2_pr{_pl[0]}")

def kgen(a):
    LUTB = 26752
    a(f"""
    s_load_dwordx8 s[40:47], s[0:1], 8
    s_load_dwordx4 s[48:51], s[0:1], 40
    s_load_dwordx2 s[52:53], s[0:1], 56    ; log_dt
    s_load_dwordx2 s[56:57], s[0:1], 80    ; w1
    s_mov_b32 s20, s2                     ; d
    s_lshl_b32 s27, s20, 8                ; d*256 bytes
    s_lshl_b32 s28, s3, 6
    s_add_u32 s27, s27, s28
    v_and_b32 v4, 31, v2                  ; i / j
    v_lshrrev_b32 v6, 5, v2               ; half
    v_lshlrev_b32 v7, 1, v4
    v_add_u32 v7, s27, v7
    s_lshl_b32 s27, s20, 1
    v_mov_b32 v14, s27                    ; 2*d
    s_waitcnt lgkmcnt(0)
    global_load_ushort v80, v7, s[40:41]
    global_load_ushort v81, v7, s[42:43]
    global_load_ushort v82, v7, s[44:45]
    global_load_ushort v83, v7, s[46:47]
    global_load_ushort v84, v7, s[48:49]
    global_load_ushort v85, v7, s[50:51]
    global_load_ushort v86, v14, s[52:53]
    """)
    stamp(a, 0)
    srd_off(a, 8, 6, 7, XT0_OFF, XT_SZ)
    srd_off(a, 12, 6, 7, KH_OFF, 0x400000)
    def RA(i):
        sl = ROWSLOT[rho_of_row(i)]
        return (sl >> 3) * 1024 + ((sl >> 2) & 1) * 512 + (sl & 3) * 4
    cw = [sum(COLSLOT[4*k+j] << (8*j) for j in range(4)) for k in range(8)]
    r0 = [RA(i) for i in [0, 8, 12, 14, 16, 17, 18, 19, 20]] + [0]
    rw = [r0[2*k] | (r0[2*k+1] << 16) for k in range(5)]
    a("v_mov_b32 v30, 0")
    for k in range(8):
        a(f"v_mov_b32 v{16+k}, {cw[k]:#x}")
    a(f"ds_write_b128 v30, v[16:19] offset:{LUTB}")
    a(f"ds_write_b128 v30, v[20:23] offset:{LUTB+16}")
    for k in range(5):
        a(f"v_mov_b32 v{24+k}, {rw[k]:#x}")
    a(f"""
    ds_write_b128 v30, v[24:27] offset:{LUTB+32}
    ds_write_b32 v30, v28 offset:{LUTB+48}
    v_sub_u32 v3, 0xff, v0               ; q
    v_sub_u32 v14, 0x100, v0             ; q+1
    v_and_b32 v16, 31, v3
    v_and_b32 v17, 31, v14
    v_lshrrev_b32 v18, 5, v3
    v_lshrrev_b32 v19, 5, v14
    v_lshlrev_b32 v18, 1, v18
    v_lshlrev_b32 v19, 1, v19
    ds_read_u8 v16, v16 offset:{LUTB}
    ds_read_u16 v18, v18 offset:{LUTB+32}
    ds_read_u8 v17, v17 offset:{LUTB}
    ds_read_u16 v19, v19 offset:{LUTB+32}
    v_lshlrev_b32 v5, 4, v0              ; 16*t
    v_and_b32 v15, 1, v3
    v_lshlrev_b32 v3, 5, v0              ; 32*t
    v_cmp_eq_u32 vcc, 1, v15             ; q odd
    s_cmp_eq_u32 s3, 2
    s_waitcnt lgkmcnt(0)
    v_lshl_add_u32 v16, v16, 4, v18      ; A0
    v_lshl_add_u32 v17, v17, 4, v19      ; A1
    s_cbranch_scc1 k1_ad_w2
    s_cmp_eq_u32 s3, 3
    s_cbranch_scc1 k1_ad_w3
    """)
    M = 0xffffffff
    for i in range(8):
        e = 7 - i
        if i == 4: a(f"v_cndmask_b32 v{60+e}, v16, v17, vcc")
        else: a(f"v_mov_b32 v{60+e}, v{16 if i < 4 else 17}")
    a("s_branch k1_ad_done")
    a.label("k1_ad_w2")
    a(f"""
    v_add_u32 v18, {(RA(13) - RA(12)) & M:#x}, v16
    s_mov_b32 exec_hi, 0
    v_add_u32 v18, {(RA(15) - RA(14)) & M:#x}, v16
    s_mov_b32 exec_hi, -1
    """)
    for i in range(8):
        a(f"v_mov_b32 v{67-i}, v{[16,16,16,18,18,18,17,17][i]}")
    a("s_branch k1_ad_done")
    a.label("k1_ad_w3")
    for i in range(8):
        a(f"v_add_u32 v{67-i}, {(RA(i) - RA(0)) & M:#x}, v16")
    a("s_mov_b32 exec_hi, 0")
    for i, off in enumerate([0, 0, 2, 4, 4, 4, 6]):
        a(f"v_add_u32 v{67-i}, {(RA(8 + off // 2) - RA(8)) & M:#x}, v16")
    a("v_mov_b32 v60, v17")
    a("s_mov_b32 exec_hi, -1")
    a.label("k1_ad_done")
    a(f"""
    s_cmp_lg_u32 s2, 0
    s_cbranch_scc1 k1_kg_notab
    {'s_branch k1_kg_notab' if N_KG == 512 else ''}
    """)
    srd_off(a, 28, 6, 7, TB_OFF, 0x10000)
    a(f"""
    v_mov_b32 v16, 0
    v_mov_b32 v17, 0
    v_mov_b32 v18, 0
    v_mov_b32 v19, 0
    s_movk_i32 s24, 0x4000
    buffer_store_dwordx4 v[60:63], v3, s[28:31], 0 offen
    buffer_store_dwordx4 v[64:67], v3, s[28:31], 0 offen offset:16
    buffer_store_dwordx4 v[16:19], v5, s[28:31], s24 offen
    s_mov_b32 s24, 0x8000
    buffer_store_dwordx4 v[16:19], v5, s[28:31], s24 offen
    s_mov_b32 s24, 0x9000
    buffer_store_dwordx4 v[16:19], v5, s[28:31], s24 offen
    s_mov_b32 s24, 0xa000
    buffer_store_dwordx4 v[16:19], v5, s[28:31], s24 offen
    s_mov_b32 s24, 0xb000
    buffer_store_dwordx4 v[16:19], v5, s[28:31], s24 offen
    """)
    a.label("k1_kg_notab")
    TBL = KHL + 12288
    WT = 6656
    P = [None] + [92 + 2 * i for i in range(7)]
    G1, G2, G3, G6 = 106, 108, 110, 112
    A = [114, 116, 118, 120]
    M1, M3 = 122, 124
    AR = 40
    NA = [84, 85, 86, 87]
    def cmul2(d, x, y, d2, x2, y2):
        a(f"""
        v_pk_mul_f32 v[{d}:{d+1}], v[{x}:{x+1}], v[{y}:{y+1}] op_sel:[0,0] op_sel_hi:[0,1]
        v_pk_mul_f32 v[{d2}:{d2+1}], v[{x2}:{x2+1}], v[{y2}:{y2+1}] op_sel:[0,0] op_sel_hi:[0,1]
        v_pk_fma_f32 v[{d}:{d+1}], v[{x}:{x+1}], v[{y}:{y+1}], v[{d}:{d+1}] op_sel:[1,1,0] op_sel_hi:[1,0,1] neg_lo:[1,0,0]
        v_pk_fma_f32 v[{d2}:{d2+1}], v[{x2}:{x2+1}], v[{y2}:{y2+1}], v[{d2}:{d2+1}] op_sel:[1,1,0] op_sel_hi:[1,0,1] neg_lo:[1,0,0]
        """)
    a(f"""
    s_mov_b32 s54, 0
    s_mov_b32 s55, -1
    s_mul_i32 s32, s3, {WT}
    v_lshlrev_b32 v12, 12, v6
    v_add_u32 v12, s32, v12
    v_and_b32 v13, 3, v4
    v_lshl_add_u32 v12, v13, 2, v12
    v_lshrrev_b32 v13, 2, v4
    v_lshl_add_u32 v12, v13, 4, v12
    """)
    for c in range(16):
        a(f"v_xor_b32 v{AR+c}, {16*((c>>1)&7) + 128*(c&1)}, v12")
    a(f"""
    v_mov_b32 v13, s32
    v_cndmask_b32 v13, v13, 0, s[54:55]
    v_sub_u32 v56, v12, v13
    v_mov_b32 v14, 0x41000000             ; 8
    v_cndmask_b32 v12, v14, 1.0, s[54:55] ; c1
    v_cndmask_b32 v13, v14, -1.0, s[54:55] ; c1 (phase)
    v_mov_b32 v14, 0x42800000             ; 64
    v_mov_b32 v15, 0x43800000             ; 256
    v_cndmask_b32 v57, v14, v15, s[54:55] ; c2
    v_cndmask_b32 v58, v14, -v15, s[54:55] ; c2 (phase)
    s_mov_b32 s33, 0x3fb8aa3b             ; log2e
    s_mov_b32 s34, 0x3e22f983             ; 1/(2pi)
    s_mov_b32 s35, 0xffff0000
    s_mov_b32 s36, 0x0000bf80
    s_mov_b32 s37, 0x80000000
    s_waitcnt vmcnt(0)
    """)
    if 'nopw1' not in VAR:
        srd(a, 56, 56, 57, 512 * 2752)
        a("""
        s_lshl_b32 s27, s2, 6
        v_lshl_add_u32 v9, v0, 14, s27
        buffer_load_dword v8, v9, s[56:59], 0 offen
        """)
    stamp(a, 1)
    a(f"""
    v_lshlrev_b32 v86, 16, v86
    v_mul_f32 v86, s33, v86
    v_exp_f32 v86, v86
    v_lshlrev_b32 v80, 16, v80
    v_lshlrev_b32 v81, 16, v81
    v_lshlrev_b32 v82, 16, v82
    v_lshlrev_b32 v83, 16, v83
    v_lshlrev_b32 v84, 16, v84
    v_lshlrev_b32 v85, 16, v85
    v_cvt_pk_bf16_f32 v86, v86, v86
    v_and_b32 v86, s35, v86               ; dt
    v_mul_f32 v80, v86, v80               ; lr
    v_mul_f32 v81, v86, v81               ; li
    v_mul_f32 v82, v86, v82               ; dBr
    v_mul_f32 v83, v86, v83               ; dBi
    v_mul_f32 v88, s33, v80               ; lr2
    v_mul_f32 v89, s34, v81               ; lif
    v_mul_f32 v68, v88, v12
    v_mul_f32 v69, v89, v13
    v_mul_f32 v70, v88, v57
    v_mul_f32 v71, v89, v58
    v_exp_f32 v68, v68
    v_fract_f32 v69, v69
    v_exp_f32 v70, v70
    v_fract_f32 v71, v71
    v_cos_f32 v{P[1]}, v69
    v_sin_f32 v{P[1]+1}, v69
    v_cos_f32 v{G1}, v71
    v_sin_f32 v{G1+1}, v71
    v_mul_f32 v90, v84, v82
    v_fma_f32 v90, -v85, v83, v90         ; CBr
    v_mul_f32 v91, v84, v83
    v_fma_f32 v91, v85, v82, v91          ; CBi
    v_mul_f32 v{P[1]}, v68, v{P[1]}
    v_mul_f32 v{P[1]+1}, v68, v{P[1]+1}
    v_mul_f32 v{G1}, v70, v{G1}
    v_mul_f32 v{G1+1}, v70, v{G1+1}
    v_cndmask_b32 v{A[0]}, 1.0, v90, s[54:55]
    v_cndmask_b32 v{A[0]+1}, 0, -v91, s[54:55]
    """)
    cmul2(P[2], P[1], P[1], G2, G1, G1)
    cmul2(P[3], P[2], P[1], G3, G2, G1)
    cmul2(P[4], P[2], P[2], A[1], A[0], G1)
    cmul2(P[6], P[3], P[3], G6, G3, G3)
    cmul2(P[5], P[4], P[1], A[2], A[0], G2)
    cmul2(P[7], P[4], P[3], A[3], A[0], G3)
    a(f"""
    v_cndmask_b32 v{M1}, v{P[1]}, v{G3}, s[54:55]
    v_cndmask_b32 v{M1+1}, v{P[1]+1}, v{G3+1}, s[54:55]
    v_cndmask_b32 v{M3}, v{P[3]}, v{G6}, s[54:55]
    v_cndmask_b32 v{M3+1}, v{P[3]+1}, v{G6+1}, s[54:55]
    v_xor_b32 v{NA[0]}, s37, v{A[0]+1}
    v_xor_b32 v{NA[1]}, s37, v{A[1]+1}
    v_xor_b32 v{NA[2]}, s37, v{A[2]+1}
    v_xor_b32 v{NA[3]}, s37, v{A[3]+1}
    """)
    def src_of(m, b):
        if b == 0: return None
        if m > 0 and b == 1: return M1
        if m > 0 and b == 3: return M3
        return P[b]
    def pair(p):
        pr = []
        for k in range(2):
            st_ = 2 * p + k
            m, b = KSTEPS[st_]
            pr.append((st_, m, b, 68 + 4 * ((p & 1) * 2 + k)))
        return pr
    def stA(p):
        n = 0
        for (st_, m, b, T) in pair(p):
            y = src_of(m, b)
            if y is not None:
                a(f"v_pk_mul_f32 v[{T}:{T+1}], v[{A[m]}:{A[m]+1}], v[{y}:{y+1}] op_sel:[0,0] op_sel_hi:[0,1]")
        for (st_, m, b, T) in pair(p):
            y = src_of(m, b)
            if y is not None:
                a(f"v_pk_fma_f32 v[{T}:{T+1}], v[{A[m]}:{A[m]+1}], v[{y}:{y+1}], v[{T}:{T+1}] op_sel:[1,1,0] op_sel_hi:[1,0,1] neg_lo:[1,0,0]")
        return 4
    def stB(p):
        for (st_, m, b, T) in pair(p):
            V = T if b else A[m]
            a(f"v_cvt_pk_bf16_f32 v{T+2}, v{V}, v{V+1}")
        for k, (st_, m, b, T) in enumerate(pair(p)):
            a(f"v_lshlrev_b32 v{88+2*k}, 16, v{T+2}")
            a(f"v_and_b32 v{89+2*k}, s35, v{T+2}")
        for k, (st_, m, b, T) in enumerate(pair(p)):
            V = T if b else A[m]
            a(f"v_pk_add_f32 v[{T}:{T+1}], v[{V}:{V+1}], v[{88+2*k}:{89+2*k}] neg_lo:[0,1] neg_hi:[0,1]")
    def stC(p):
        for (st_, m, b, T) in pair(p):
            a(f"v_cvt_pk_bf16_f32 v{T+3}, v{T}, v{T+1}")
        for (st_, m, b, T) in pair(p):
            if st_ == 21:
                a("s_mov_b32 exec_hi, 0")
            ar = 56 if st_ == 0 else AR + (st_ & 15)
            a(f"ds_write2st64_b32 v{ar}, v{T+2}, v{T+3} offset0:{st_>>1} offset1:{(st_>>1)+105}")
    stA(0); stB(0)
    for p in range(1, 17):
        if p < 16: stA(p)
        stC(p - 1)
        if p < 16: stB(p)
    a(f"""
    s_mov_b64 exec, -1
    v_min_u32 v12, 20, v4
    v_bfe_u32 v13, v12, 1, 3
    v_xor_b32 v13, v13, v6
    v_lshlrev_b32 v13, 4, v13
    v_lshl_add_u32 v12, v12, 7, v13
    s_add_u32 s33, s32, 4096
    v_add_u32 v44, s33, v12               ; RA[0]
    v_bfe_u32 v13, v4, 1, 3
    v_xor_b32 v13, v13, v6
    v_lshlrev_b32 v13, 4, v13
    v_lshl_add_u32 v12, v4, 7, v13
    v_mov_b32 v14, s32
    v_cmp_eq_u32 vcc, 0, v4
    v_xor_b32 v45, 32, v44
    v_cndmask_b32 v14, v14, 0, vcc
    v_add_u32 v48, v14, v12               ; RB[0]
    v_xor_b32 v46, 64, v44
    v_xor_b32 v47, 96, v44
    v_xor_b32 v49, 32, v48
    v_xor_b32 v50, 64, v48
    v_xor_b32 v51, 96, v48
    s_waitcnt lgkmcnt(0)
    """)
    stamp(a, 2)
    FR = [68 + 4 * i for i in range(15)] + [40]
    for g in range(4):
        a(f"ds_read_b128 v[{FR[4*g]}:{FR[4*g]+3}], v{44+g}")
        a(f"ds_read_b128 v[{FR[4*g+1]}:{FR[4*g+1]+3}], v{48+g} offset:26880")
        a(f"ds_read_b128 v[{FR[4*g+2]}:{FR[4*g+2]+3}], v{44+g} offset:26880")
        a(f"ds_read_b128 v[{FR[4*g+3]}:{FR[4*g+3]+3}], v{48+g}")
    KA = 16
    for g in range(4):
        AH, BL, AL, BH = FR[4*g:4*g+4]
        a(f"s_waitcnt lgkmcnt({14 - 4*g})")
        a(f"v_mfma_f32_32x32x16_bf16 v[{KA}:{KA+15}], v[{AH}:{AH+3}], v[{BL}:{BL+3}], {'0' if g == 0 else f'v[{KA}:{KA+15}]'}")
        a(f"s_waitcnt lgkmcnt({12 - 4*g})")
        a(f"v_mfma_f32_32x32x16_bf16 v[{KA}:{KA+15}], v[{AL}:{AL+3}], v[{BH}:{BH+3}], v[{KA}:{KA+15}]")
        a(f"v_mfma_f32_32x32x16_bf16 v[{KA}:{KA+15}], v[{AH}:{AH+3}], v[{BH}:{BH+3}], v[{KA}:{KA+15}]")
    a(f"""
    v_lshlrev_b32 v7, 4, v2
    v_add_u32 v7, s32, v7
    v_and_b32 v12, 3, v0
    v_mul_u32_u24 v12, 96, v12
    v_lshrrev_b32 v14, 2, v0
    v_add_u32 v12, v12, v14
    v_lshlrev_b32 v12, 4, v12             ; 16*pos(t)
    s_nop 7
    s_nop 4
    ds_write_b128 v7, v[{KA}:{KA+3}] offset:512
    ds_write_b128 v7, v[{KA+4}:{KA+7}] offset:{512+1024}
    ds_write_b128 v7, v[{KA+8}:{KA+11}] offset:{512+2048}
    s_waitcnt lgkmcnt(0)
    s_barrier
    s_cmp_eq_u32 s3, 3
    s_cbranch_scc1 k1_kg_nored
    ds_read_b128 v[16:19], v5 offset:512
    ds_read_b128 v[20:23], v5 offset:{512+WT}
    ds_read_b128 v[24:27], v5 offset:{512+2*WT}
    ds_read_b128 v[28:31], v5 offset:{512+3*WT}
    s_waitcnt lgkmcnt(0)
    v_add_f32 v16, v16, v20
    v_add_f32 v17, v17, v21
    v_add_f32 v18, v18, v22
    v_add_f32 v19, v19, v23
    v_add_f32 v24, v24, v28
    v_add_f32 v25, v25, v29
    v_add_f32 v26, v26, v30
    v_add_f32 v27, v27, v31
    v_add_f32 v16, v16, v24
    v_add_f32 v17, v17, v25
    v_add_f32 v18, v18, v26
    v_add_f32 v19, v19, v27
    ds_write_b128 v5, v[16:19] offset:{TBL}
    """)
    a("s_branch k1_kg_red")
    a.label("k1_kg_nored")
    a(f"""
    v_mov_b32 v16, 0
    v_mov_b32 v17, 0
    v_mov_b32 v18, 0
    v_mov_b32 v19, 0
    v_and_b32 v20, 3, v2
    v_lshlrev_b32 v20, 4, v20
    s_mul_i32 s23, s20, {XT_RS}
    s_add_u32 s24, s23, {256*XT_RS:#x}
    buffer_store_dwordx4 v[16:19], v20, s[8:11], s23 offen
    {'buffer_store_dwordx4 v[16:19], v20, s[8:11], s24 offen' if N_KG == 256 else ''}
    """)
    a.label("k1_kg_red")
    a(f"""
    s_lshl_b32 s24, s20, 13
    s_waitcnt lgkmcnt(0)
    s_barrier
    """)
    stamp(a, 3)
    for e in range(8):
        a(f"ds_read_b32 v{16+e}, v{60+e} offset:{TBL}")
    a("s_waitcnt lgkmcnt(0)")
    for e in range(0, 8, 2):
        a(f"v_cvt_pk_bf16_f32 v{32+e//2}, v{16+e}, v{17+e}")
    a(f"s_add_u32 s23, s24, 0x1000\nbuffer_store_dwordx4 v[32:35], v5, s[12:15], s24 offen {'' if 'kwb' in VAR else 'sc0 sc1'}")
    for e in range(0, 8, 2):
        a(f"v_lshlrev_b32 v{24+e}, 16, v{32+e//2}")
        a(f"v_and_b32 v{25+e}, s35, v{32+e//2}")
    for e in range(8):
        a(f"v_sub_f32 v{16+e}, v{16+e}, v{24+e}")
    for e in range(0, 8, 2):
        a(f"v_cvt_pk_bf16_f32 v{36+e//2}, v{16+e}, v{17+e}")
    a(f"buffer_store_dwordx4 v[36:39], v5, s[12:15], s23 offen {'' if 'kwb' in VAR else 'sc0 sc1'}")
    stamp_out(a, 0, 4, "k1_done")
    a("s_branch k1_done")

def gen_k2(a, k3=False):
    if not k3:
        a.label("k2_kernel")
        a(f"""
    s_cmp_ge_u32 s2, {N_G1 + N_CV}
    s_cbranch_scc1 k2_done
    v_lshrrev_b32 v1, 6, v0
    v_and_b32 v2, 63, v0              ; lane
    s_load_dwordx2 s[6:7], s[0:1], 112 ; ws
    v_readfirstlane_b32 s3, v1
    {f's_cmp_ge_u32 s2, {N_CV}' if 'cvfirst' in VAR else f's_cmp_lt_u32 s2, {N_G1}'}
    s_cbranch_scc1 {'k2_done' if 'k2_nog1' in VAR else 'k2_gemm'}
    {'s_branch k2_done' if 'k2_nocv' in VAR else ''}
    s_cmp_ge_u32 s2, {N_G1 + N_KG}
    s_cbranch_scc1 k2_cvB
    """)
    a(f"""
    s_load_dwordx2 s[4:5], s[0:1], 64 ; Dskip
    s_load_dwordx2 s[56:57], s[0:1], 88    ; w2
    {'s_add_u32 s20, s2, 256' if k3 else f's_sub_u32 s20, s2, {N_G1}'}         ; d
    v_and_b32 v4, 31, v2                  ; i / j
    v_lshrrev_b32 v6, 5, v2               ; half
    s_and_b32 s21, s20, 0x1fe
    s_lshl_b32 s21, s21, 1
    s_mul_i32 s23, s20, {XT_RS}       ; d*4224
    s_add_u32 s26, s23, 48            ; xn[-8]
    s_lshl_b32 s27, s20, 13           ; d*8192
    v_lshlrev_b32 v5, 4, v0           ; 16*t
    v_lshlrev_b32 v3, 5, v0           ; 32*t
    s_waitcnt lgkmcnt(0)
    s_load_dword s22, s[4:5], s21
    """)
    srd_off(a, 8, 6, 7, XT0_OFF, XT_SZ + 4096)
    srd_off(a, 12, 6, 7, KH_OFF, 0x400000)
    AS = 32
    a(f"""
    buffer_load_dwordx4 v[32:35], v5, s[8:11], s26 offen
    buffer_load_dwordx4 v[36:39], v5, s[8:11], s26 offen offset:16
    s_add_u32 s28, s27, 0x1000
    buffer_load_dwordx4 v[60:63], v5, s[12:15], s27 offen
    buffer_load_dwordx4 v[64:67], v5, s[12:15], s28 offen
    """)
    stamp(a, 0)
    prio2(a, PR[0], PR[3])
    srd_off(a, 16, 6, 7, YT_OFF, 0x200000)
    a(f"""
    v_and_b32 v15, 3, v0
    v_mul_u32_u24 v15, 96, v15
    v_lshrrev_b32 v14, 2, v0
    v_add_u32 v15, v15, v14
    v_lshlrev_b32 v15, 4, v15             ; 16*pos(t)
    v_mov_b32 v20, 0
    v_mov_b32 v21, 0
    v_mov_b32 v22, 0
    v_mov_b32 v23, 0
    s_cmp_eq_u32 s3, 3
    s_cbranch_scc1 k2_ca_zf
    s_cmp_ge_u32 s3, 2
    s_cbranch_scc1 k2_ca_nozero
    ds_write_b128 v15, v[20:23] offset:{KHL+1024}
    ds_write_b128 v15, v[20:23] offset:{KHL+6144+1024}
    s_branch k2_ca_nozero
    """)
    a.label("k2_ca_zf")
    a(f"""
    v_lshrrev_b32 v16, 3, v2
    v_min_u32 v16, 2, v16
    v_lshlrev_b32 v16, 4, v16
    v_and_b32 v17, 7, v2
    v_mov_b32 v18, {PS}
    v_mad_u32_u24 v16, v17, v18, v16
    ds_write_b128 v16, v[20:23]
    """)
    a.label("k2_ca_nozero")
    a(f"""
    s_lshl_b32 s35, s3, 4             ; c_start
    v_lshrrev_b32 v12, 3, v4
    v_add_u32 v12, v12, v6
    v_lshlrev_b32 v12, 4, v12         ; 16*((b>>3)+kg)
    v_and_b32 v13, 7, v4
    v_mov_b32 v14, {PS}
    v_mad_u32_u24 v12, v13, v14, v12
    s_lshl_b32 s36, s35, 5
    v_add_u32 v12, s36, v12           ; vA (tile1 A address at c_start)
    v_mul_u32_u24 v13, 96, v6
    v_sub_u32 v13, v13, v4
    v_add_u32 v13, 31, v13
    v_lshlrev_b32 v13, 4, v13
    s_lshl_b32 s36, s35, 3            ; 16*(c/2)
    s_add_u32 s36, s36, {KHL}
    v_add_u32 v13, s36, v13           ; vB
    """)
    a("s_waitcnt vmcnt(2)")
    stamp(a, 1)
    a(f"ds_write_b128 v5, v[34:37] offset:{3*PS + 48}")
    a(f"ds_write_b128 v5, v[36:39] offset:{7*PS + 48}")
    for k in range(6):
        a(f"v_alignbit_b32 v{40+k}, v{33+k}, v{32+k}, 16")
    a(f"ds_write_b128 v5, v[40:43] offset:{0*PS + 48}")
    a(f"ds_write_b128 v5, v[42:45] offset:{4*PS + 48}")
    for k in range(6):
        a(f"v_mov_b32 v{48+k}, v{33+k}")
    a(f"ds_write_b128 v5, v[48:51] offset:{1*PS + 48}")
    a(f"ds_write_b128 v5, v[50:53] offset:{5*PS + 48}")
    for k in range(6):
        a(f"v_alignbit_b32 v{54+k}, v{34+k}, v{33+k}, 16")
    a(f"ds_write_b128 v5, v[54:57] offset:{2*PS + 48}")
    a(f"ds_write_b128 v5, v[56:59] offset:{6*PS + 48}")
    for k in range(4):
        a(f"v_mov_b32 v{8+k}, v{36+k}")
    a(f"""
    s_waitcnt vmcnt(1)
    ds_write_b128 v15, v[60:63] offset:{KHL}
    s_waitcnt vmcnt(0)
    ds_write_b128 v15, v[64:67] offset:{KHL+6144}
    """)
    stamp(a, 2)
    stamp(a, 3)
    if not k3:
        a("s_branch k2_cv_join")
        a.label("k2_cvB")
        a(f"""
        s_load_dwordx2 s[4:5], s[0:1], 64 ; Dskip
        s_load_dwordx8 s[40:47], s[0:1], 8
        s_load_dwordx4 s[48:51], s[0:1], 40
        s_load_dwordx2 s[52:53], s[0:1], 56    ; log_dt
        s_load_dwordx2 s[56:57], s[0:1], 88    ; w2
        s_load_dwordx2 s[90:91], s[0:1], 80    ; w1
        s_sub_u32 s20, s2, {0 if 'cvfirst' in VAR else N_G1}         ; d
        s_lshl_b32 s27, s20, 8                ; d*256 bytes
        s_lshl_b32 s28, s3, 6
        s_add_u32 s27, s27, s28
        v_and_b32 v4, 31, v2                  ; i / j
        v_lshrrev_b32 v6, 5, v2               ; half
        v_lshlrev_b32 v7, 1, v4
        v_add_u32 v7, s27, v7
        s_lshl_b32 s27, s20, 1
        v_mov_b32 v14, s27                    ; 2*d
        s_waitcnt lgkmcnt(0)
        global_load_ushort v80, v7, s[40:41]
        global_load_ushort v81, v7, s[42:43]
        global_load_ushort v82, v7, s[44:45]
        global_load_ushort v83, v7, s[46:47]
        global_load_ushort v84, v7, s[48:49]
        global_load_ushort v85, v7, s[50:51]
        global_load_ushort v86, v14, s[52:53]
        s_and_b32 s21, s20, 0x1fe
        s_lshl_b32 s21, s21, 1
        s_load_dword s22, s[4:5], s21
        """)
        stamp(a, 0)
        prio2(a, PR[0], PR[3])
        srd_off(a, 8, 6, 7, XT0_OFF, XT_SZ + 4096)
        srd_off(a, 16, 6, 7, YT_OFF, 0x200000)
        AS = 32
        srd_off(a, 12, 6, 7, TB_OFF, 8192)
        a(f"""
        s_mul_i32 s23, s20, {XT_RS}       ; d*4224
        s_add_u32 s26, s23, 48            ; xn[-8]
        v_lshlrev_b32 v5, 4, v0           ; 16*t
        v_lshlrev_b32 v3, 5, v0           ; 32*t
        buffer_load_dwordx4 v[60:63], v3, s[12:15], 0 offen
        buffer_load_dwordx4 v[64:67], v3, s[12:15], 0 offen offset:16
        """)
        TBL = KHL + 12288
        WT = 6656
        P = [None] + [92 + 2 * i for i in range(7)]
        G1, G2, G3, G6 = 106, 108, 110, 112
        A = [114, 116, 118, 120]
        M1, M3 = 122, 124
        AR = 40
        NA = [84, 85, 86, 87]
        def cmul2(d, x, y, d2, x2, y2):
            a(f"""
            v_mul_f32 v{d}, v{x}, v{y}
            v_mul_f32 v{d+1}, v{x}, v{y+1}
            v_mul_f32 v{d2}, v{x2}, v{y2}
            v_mul_f32 v{d2+1}, v{x2}, v{y2+1}
            v_fma_f32 v{d}, -v{x+1}, v{y+1}, v{d}
            v_fmac_f32 v{d+1}, v{x+1}, v{y}
            v_fma_f32 v{d2}, -v{x2+1}, v{y2+1}, v{d2}
            v_fmac_f32 v{d2+1}, v{x2+1}, v{y2}
            """)
        a(f"""
        s_mov_b32 s54, 0
        s_mov_b32 s55, -1
        s_mul_i32 s32, s3, {WT}
        v_lshlrev_b32 v12, 12, v6
        v_add_u32 v12, s32, v12
        v_and_b32 v13, 3, v4
        v_lshl_add_u32 v12, v13, 2, v12
        v_lshrrev_b32 v13, 2, v4
        v_lshl_add_u32 v12, v13, 4, v12
        """)
        for c in range(16):
            a(f"v_xor_b32 v{AR+c}, {16*((c>>1)&7) + 128*(c&1)}, v12")
        a(f"""
        v_mov_b32 v13, s32
        v_cndmask_b32 v13, v13, 0, s[54:55]
        v_sub_u32 v56, v12, v13
        v_mov_b32 v14, 0x41000000             ; 8
        v_cndmask_b32 v12, v14, 1.0, s[54:55] ; c1
        v_cndmask_b32 v13, v14, -1.0, s[54:55] ; c1 (phase)
        v_mov_b32 v14, 0x42800000             ; 64
        v_mov_b32 v15, 0x43800000             ; 256
        v_cndmask_b32 v57, v14, v15, s[54:55] ; c2
        v_cndmask_b32 v58, v14, -v15, s[54:55] ; c2 (phase)
        s_mov_b32 s33, 0x3fb8aa3b             ; log2e
        s_mov_b32 s34, 0x3e22f983             ; 1/(2pi)
        s_mov_b32 s35, 0xffff0000
        s_mov_b32 s36, 0x0000bf80
        s_mov_b32 s37, 0x80000000
        s_waitcnt vmcnt(2)
        """)
        if 'l2w1' in VAR:
            srd(a, 92, 90, 91, 512 * 2752)
            a("""
            s_sub_u32 s96, s20, 256
            s_lshr_b32 s96, s96, 3
            s_mul_i32 s96, s96, 44032
            v_lshl_add_u32 v132, v0, 4, s96
            """)
            for i in range(11):
                a(f"s_movk_i32 s96, {i*4096:#x}" if i < 8 else f"s_mov_b32 s96, {i*4096:#x}")
                a("buffer_load_dwordx4 v[128:131], v132, s[92:95], s96 offen")
        stamp(a, 1)
        a(f"""
        v_lshlrev_b32 v86, 16, v86
        v_mul_f32 v86, s33, v86
        v_exp_f32 v86, v86
        v_lshlrev_b32 v80, 16, v80
        v_lshlrev_b32 v81, 16, v81
        v_lshlrev_b32 v82, 16, v82
        v_lshlrev_b32 v83, 16, v83
        v_lshlrev_b32 v84, 16, v84
        v_lshlrev_b32 v85, 16, v85
        v_cvt_pk_bf16_f32 v86, v86, v86
        v_and_b32 v86, s35, v86               ; dt
        v_mul_f32 v80, v86, v80               ; lr
        v_mul_f32 v81, v86, v81               ; li
        v_mul_f32 v82, v86, v82               ; dBr
        v_mul_f32 v83, v86, v83               ; dBi
        v_mul_f32 v88, s33, v80               ; lr2
        v_mul_f32 v89, s34, v81               ; lif
        v_mul_f32 v68, v88, v12
        v_mul_f32 v69, v89, v13
        v_mul_f32 v70, v88, v57
        v_mul_f32 v71, v89, v58
        v_exp_f32 v68, v68
        v_fract_f32 v69, v69
        v_exp_f32 v70, v70
        v_fract_f32 v71, v71
        v_cos_f32 v{P[1]}, v69
        v_sin_f32 v{P[1]+1}, v69
        v_cos_f32 v{G1}, v71
        v_sin_f32 v{G1+1}, v71
        v_mul_f32 v90, v84, v82
        v_fma_f32 v90, -v85, v83, v90         ; CBr
        v_mul_f32 v91, v84, v83
        v_fma_f32 v91, v85, v82, v91          ; CBi
        v_mul_f32 v{P[1]}, v68, v{P[1]}
        v_mul_f32 v{P[1]+1}, v68, v{P[1]+1}
        v_mul_f32 v{G1}, v70, v{G1}
        v_mul_f32 v{G1+1}, v70, v{G1+1}
        v_cndmask_b32 v{A[0]}, 1.0, v90, s[54:55]
        v_cndmask_b32 v{A[0]+1}, 0, -v91, s[54:55]
        """)
        cmul2(P[2], P[1], P[1], G2, G1, G1)
        cmul2(P[3], P[2], P[1], G3, G2, G1)
        cmul2(P[4], P[2], P[2], A[1], A[0], G1)
        cmul2(P[6], P[3], P[3], G6, G3, G3)
        cmul2(P[5], P[4], P[1], A[2], A[0], G2)
        cmul2(P[7], P[4], P[3], A[3], A[0], G3)
        a(f"""
        v_cndmask_b32 v{M1}, v{P[1]}, v{G3}, s[54:55]
        v_cndmask_b32 v{M1+1}, v{P[1]+1}, v{G3+1}, s[54:55]
        v_cndmask_b32 v{M3}, v{P[3]}, v{G6}, s[54:55]
        v_cndmask_b32 v{M3+1}, v{P[3]+1}, v{G6+1}, s[54:55]
        v_xor_b32 v{NA[0]}, s37, v{A[0]+1}
        v_xor_b32 v{NA[1]}, s37, v{A[1]+1}
        v_xor_b32 v{NA[2]}, s37, v{A[2]+1}
        v_xor_b32 v{NA[3]}, s37, v{A[3]+1}
        """)
        def src_of(m, b):
            if b == 0: return None
            if m > 0 and b == 1: return M1
            if m > 0 and b == 3: return M3
            return P[b]
        def pair(p):
            pr = []
            for k in range(2):
                st_ = 2 * p + k
                m, b = KSTEPS[st_]
                pr.append((st_, m, b, 68 + 4 * ((p & 1) * 2 + k)))
            return pr
        def stA(p):
            n = 0
            for (st_, m, b, T) in pair(p):
                y = src_of(m, b)
                if y is not None:
                    a(f"v_mul_f32 v{T}, v{A[m]}, v{y}")
                    a(f"v_mul_f32 v{T+1}, v{A[m]}, v{y+1}"); n += 2
            for (st_, m, b, T) in pair(p):
                y = src_of(m, b)
                if y is not None:
                    a(f"v_fmac_f32 v{T}, v{NA[m]}, v{y+1}")
                    a(f"v_fmac_f32 v{T+1}, v{A[m]+1}, v{y}"); n += 2
            return 4
        def stB(p):
            for (st_, m, b, T) in pair(p):
                V = T if b else A[m]
                a(f"v_cvt_pk_bf16_f32 v{T+2}, v{V}, v{V+1}")
            for k, (st_, m, b, T) in enumerate(pair(p)):
                a(f"v_lshlrev_b32 v{88+2*k}, 16, v{T+2}")
                a(f"v_and_b32 v{89+2*k}, s35, v{T+2}")
            for k, (st_, m, b, T) in enumerate(pair(p)):
                V = T if b else A[m]
                a(f"v_sub_f32 v{T}, v{V}, v{88+2*k}")
                a(f"v_sub_f32 v{T+1}, v{V+1}, v{89+2*k}")
        def stC(p):
            for (st_, m, b, T) in pair(p):
                a(f"v_cvt_pk_bf16_f32 v{T+3}, v{T}, v{T+1}")
            for (st_, m, b, T) in pair(p):
                if st_ == 21:
                    a("s_mov_b32 exec_hi, 0")
                ar = 56 if st_ == 0 else AR + (st_ & 15)
                a(f"ds_write2st64_b32 v{ar}, v{T+2}, v{T+3} offset0:{st_>>1} offset1:{(st_>>1)+105}")
        stA(0); stB(0)
        for p in range(1, 17):
            if p < 16: stA(p)
            stC(p - 1)
            if p < 16: stB(p)
        a(f"""
        s_mov_b64 exec, -1
        v_min_u32 v12, 20, v4
        v_bfe_u32 v13, v12, 1, 3
        v_xor_b32 v13, v13, v6
        v_lshlrev_b32 v13, 4, v13
        v_lshl_add_u32 v12, v12, 7, v13
        s_add_u32 s33, s32, 4096
        v_add_u32 v44, s33, v12               ; RA[0]
        v_bfe_u32 v13, v4, 1, 3
        v_xor_b32 v13, v13, v6
        v_lshlrev_b32 v13, 4, v13
        v_lshl_add_u32 v12, v4, 7, v13
        v_mov_b32 v14, s32
        v_cmp_eq_u32 vcc, 0, v4
        v_xor_b32 v45, 32, v44
        v_cndmask_b32 v14, v14, 0, vcc
        v_add_u32 v48, v14, v12               ; RB[0]
        v_xor_b32 v46, 64, v44
        v_xor_b32 v47, 96, v44
        v_xor_b32 v49, 32, v48
        v_xor_b32 v50, 64, v48
        v_xor_b32 v51, 96, v48
        s_waitcnt lgkmcnt(0)
        """)
        stamp(a, 2)
        FR = [68 + 4 * i for i in range(15)] + [40]
        for g in range(4):
            a(f"ds_read_b128 v[{FR[4*g]}:{FR[4*g]+3}], v{44+g}")
            a(f"ds_read_b128 v[{FR[4*g+1]}:{FR[4*g+1]+3}], v{48+g} offset:26880")
            a(f"ds_read_b128 v[{FR[4*g+2]}:{FR[4*g+2]+3}], v{44+g} offset:26880")
            a(f"ds_read_b128 v[{FR[4*g+3]}:{FR[4*g+3]+3}], v{48+g}")
        KA = 16
        for g in range(4):
            AH, BL, AL, BH = FR[4*g:4*g+4]
            a(f"s_waitcnt lgkmcnt({14 - 4*g})")
            a(f"v_mfma_f32_32x32x16_bf16 v[{KA}:{KA+15}], v[{AH}:{AH+3}], v[{BL}:{BL+3}], {'0' if g == 0 else f'v[{KA}:{KA+15}]'}")
            a(f"s_waitcnt lgkmcnt({12 - 4*g})")
            a(f"v_mfma_f32_32x32x16_bf16 v[{KA}:{KA+15}], v[{AL}:{AL+3}], v[{BH}:{BH+3}], v[{KA}:{KA+15}]")
            a(f"v_mfma_f32_32x32x16_bf16 v[{KA}:{KA+15}], v[{AH}:{AH+3}], v[{BH}:{BH+3}], v[{KA}:{KA+15}]")
        a(f"""
        v_lshlrev_b32 v7, 4, v2
        v_add_u32 v7, s32, v7
        v_and_b32 v12, 3, v0
        v_mul_u32_u24 v12, 96, v12
        v_lshrrev_b32 v14, 2, v0
        v_add_u32 v12, v12, v14
        v_lshlrev_b32 v12, 4, v12             ; 16*pos(t)
        s_nop 7
        s_nop 4
        ds_write_b128 v7, v[{KA}:{KA+3}] offset:512
        ds_write_b128 v7, v[{KA+4}:{KA+7}] offset:{512+1024}
        ds_write_b128 v7, v[{KA+8}:{KA+11}] offset:{512+2048}
        s_waitcnt lgkmcnt(0)
        s_barrier
        s_cmp_eq_u32 s3, 3
        s_cbranch_scc1 k2_cv_nored
        ds_read_b128 v[16:19], v5 offset:512
        ds_read_b128 v[20:23], v5 offset:{512+WT}
        ds_read_b128 v[24:27], v5 offset:{512+2*WT}
        ds_read_b128 v[28:31], v5 offset:{512+3*WT}
        s_waitcnt lgkmcnt(0)
        v_add_f32 v16, v16, v20
        v_add_f32 v17, v17, v21
        v_add_f32 v18, v18, v22
        v_add_f32 v19, v19, v23
        v_add_f32 v24, v24, v28
        v_add_f32 v25, v25, v29
        v_add_f32 v26, v26, v30
        v_add_f32 v27, v27, v31
        v_add_f32 v16, v16, v24
        v_add_f32 v17, v17, v25
        v_add_f32 v18, v18, v26
        v_add_f32 v19, v19, v27
        ds_write_b128 v5, v[16:19] offset:{TBL}
        """)
        a.label("k2_cv_nored")
        a("s_waitcnt vmcnt(0)")
        a(f"""
        s_waitcnt lgkmcnt(0)
        s_barrier
        """)
        stamp(a, 3)
        for e in range(8):
            a(f"ds_read_b32 v{16+e}, v{60+e} offset:{TBL}")
        srd_off(a, 12, 6, 7, KH_OFF, 0x400000)
        srd(a, 56, 56, 57, 1376 * 1024)
        a(f"""
        s_lshl_b32 s36, s20, 12
        v_add_u32 v72, s36, v5
        buffer_load_dwordx4 v[68:71], v72, s[56:59], 0 offen
        s_lshl_b32 s24, s20, 13
        s_waitcnt lgkmcnt(0)
        """)
        for e in range(0, 8, 2):
            a(f"v_cvt_pk_bf16_f32 v{32+e//2}, v{16+e}, v{17+e}")
        for e in range(0, 8, 2):
            a(f"v_lshlrev_b32 v{24+e}, 16, v{32+e//2}")
            a(f"v_and_b32 v{25+e}, s35, v{32+e//2}")
        for e in range(8):
            a(f"v_sub_f32 v{16+e}, v{16+e}, v{24+e}")
        for e in range(0, 8, 2):
            a(f"v_cvt_pk_bf16_f32 v{36+e//2}, v{16+e}, v{17+e}")
        a(f"""
        s_add_u32 s23, s24, 0x1000
        buffer_store_dwordx4 v[32:35], v5, s[12:15], s24 offen {'' if 'kwb' in VAR else 'sc0 sc1'}
        buffer_store_dwordx4 v[36:39], v5, s[12:15], s23 offen {'' if 'kwb' in VAR else 'sc0 sc1'}
        """)
        stamp_out(a, 1, 4, "k2_done")
        a("s_branch k2_done")
    a.label("k2_cv_join")
    ACC1, ACC2, ACC0, ACC3 = 16, 16, 48, 48
    first = set()
    F = [80, 104]
    a("""
    s_waitcnt vmcnt(0) lgkmcnt(0)
    s_barrier
    """)
    stamp(a, 4)
    prio2(a, PR[1], PR[4])
    if 'nopf' not in VAR and 'pf1' not in VAR and not k3:
        srd(a, 56, 56, 57, 1376 * 1024)
        if 'e1' in VAR:
            a("""
            s_lshr_b32 s36, s20, 3
            s_mul_i32 s36, s36, 22016
            v_add_u32 v72, s36, v5
            """)
            for j in range(1, 6):
                a(f"v_add_u32 v{72+j}, {j*4096:#x}, v72")
            for j in range(6):
                a(f"buffer_load_dwordx4 v[68:71], v{72 + j}, s[56:59], 0 offen")
        else:
            a("""
            s_lshl_b32 s36, s20, 12
            v_add_u32 v72, s36, v5
            buffer_load_dwordx4 v[68:71], v72, s[56:59], 0 offen
            """)
    if k3 and 'l2w2' in VAR:
        srd(a, 56, 56, 57, 1376 * 1024)
        a("""
        s_lshr_b32 s36, s2, 3
        s_mul_i32 s36, s36, 44032
        v_add_u32 v132, s36, v5
        """)
        for i in range(11):
            a(f"s_mov_b32 s36, {i*4096:#x}")
            a("buffer_load_dwordx4 v[128:131], v132, s[56:59], s36 offen")
    def mf(acc, A, B):
        c = f"v[{acc}:{acc+15}]" if acc in first else "0"
        first.add(acc)
        a(f"v_mfma_f32_32x32x16_bf16 v[{acc}:{acc+15}], v[{A}:{A+3}], v[{B}:{B+3}], {c}")
    def rd(dst, base, off):
        a(f"ds_read_b128 v[{dst}:{dst+3}], v{base} offset:{off}")
    def boff(c):
        return 16 * (c // 2) + 3072 * (c & 1)
    def ch_reads(c, f):
        rd(f, 12, AS * c)
        rd(f + 4, 13, boff(c))
        rd(f + 8, 13, boff(c + 64))
        rd(f + 12, 13, boff(c) + 6144)
        rd(f + 16, 13, boff(c + 64) + 6144)
        rd(f + 20, 12, AS * (c + 64))
    def ch_mfma(f, last):
        base = 0 if last else 6
        a(f"s_waitcnt lgkmcnt({base + 4})")
        mf(ACC1, f, f + 4)
        a(f"s_waitcnt lgkmcnt({base + 3})")
        mf(ACC0, f, f + 8)
        a(f"s_waitcnt lgkmcnt({base + 2})")
        mf(ACC2, f, f + 12)
        a(f"s_waitcnt lgkmcnt({base + 1})")
        mf(ACC3, f, f + 16)
        a(f"s_waitcnt lgkmcnt({base})")
        mf(ACC1, f + 20, f + 8)
        mf(ACC2, f + 20, f + 16)
    ch_reads(0, F[0])
    for c in range(16):
        if c < 15:
            ch_reads(c + 1, F[(c + 1) & 1])
        ch_mfma(F[c & 1], c == 15)
    a.label("k2_cv_fin")
    stamp(a, 5)
    prio2(a, PR[2], PR[5])
    a(f"""
    s_waitcnt lgkmcnt(0)
    s_nop 7
    s_nop 7
    """)
    a(f"""
    s_barrier
    v_mul_u32_u24 v14, 144, v4
    v_lshl_add_u32 v14, v6, 4, v14     ; a_l*144 + 16h
    s_mul_i32 s36, s3, 4608
    v_add_u32 v14, s36, v14
    """)
    for q in range(4):
        a(f"ds_write_b128 v14, v[{ACC1+4*q}:{ACC1+4*q+3}] offset:{32*q}")
    for q in range(4):
        a(f"ds_write_b128 v14, v[{ACC0+4*q}:{ACC0+4*q+3}] offset:{32*q + 4*4608}")
    a(f"""
    v_lshrrev_b32 v14, 2, v0
    v_and_b32 v14, 31, v14
    v_mul_u32_u24 v14, 144, v14
    v_and_b32 v15, 3, v0
    v_lshl_add_u32 v14, v15, 5, v14    ; a_l*144 + sub*32
    s_cmp_lt_u32 s3, 2
    s_cselect_b32 s36, {4*4608}, 0
    v_add_u32 v14, s36, v14
    s_waitcnt lgkmcnt(0)
    s_barrier
    """)
    for s in range(4):
        a(f"ds_read_b128 v[{16+8*s}:{19+8*s}], v14 offset:{s*4608}")
        a(f"ds_read_b128 v[{20+8*s}:{23+8*s}], v14 offset:{s*4608+16}")
    a("s_waitcnt lgkmcnt(0)")
    for i in range(8):
        a(f"v_add_f32 v{16+i}, v{16+i}, v{40+i}")
    a(f"""
    s_waitcnt lgkmcnt(0)
    s_and_b32 s21, s20, 1
    s_lshl_b32 s21, s21, 4
    s_lshr_b32 s22, s22, s21
    s_lshl_b32 s22, s22, 16
    s_mov_b32 s23, 0xffff0000
    s_lshl_b32 s24, s20, 12
    """)
    for i in range(8):
        a(f"v_add_f32 v{24+i}, v{24+i}, v{32+i}")
    for i in range(8):
        a(f"v_add_f32 v{16+i}, v{16+i}, v{24+i}")
    for j in range(4):
        a(f"""
        v_cvt_pk_bf16_f32 v24, v{16+2*j}, v{17+2*j}
        v_lshlrev_b32 v25, 16, v{8+j}
        v_and_b32 v26, s23, v{8+j}
        v_mul_f32 v25, s22, v25
        v_mul_f32 v26, s22, v26
        v_cvt_pk_bf16_f32 v27, v25, v26
        v_lshlrev_b32 v25, 16, v24
        v_and_b32 v26, s23, v24
        v_lshlrev_b32 v28, 16, v27
        v_and_b32 v29, s23, v27
        v_add_f32 v25, v25, v28
        v_add_f32 v26, v26, v29
        v_cvt_pk_bf16_f32 v{32+j}, v25, v26
        """)
    a(f"""
    buffer_store_dwordx4 v[32:35], v5, s[16:19], s24 offen sc0 sc1
    """)
    if k3:
        srd_off(a, 28, 6, 7, TB_OFF, 0x10000)
        a(f"""
        s_lshr_b32 s24, s2, 6
        s_lshl_b32 s24, s24, 8
        s_add_u32 s24, s24, 0x4000
        v_mov_b32 v16, 1
        v_mov_b32 v17, 0
        s_waitcnt vmcnt(0)
        s_barrier
        s_cmp_lg_u32 s3, 0
        s_cbranch_scc1 k3_done
        s_mov_b64 exec, 1
        buffer_atomic_add v16, v17, s[28:31], s24 offen sc0 sc1
        s_mov_b64 exec, -1
        s_lshr_b32 s24, s2, 6
        s_lshl_b32 s24, s24, 12
        s_add_u32 s24, s24, 0x8000
        v_lshlrev_b32 v17, 7, v2
        v_mov_b32 v18, 1
        s_waitcnt vmcnt(0)
        v_readfirstlane_b32 s25, v16
        s_cmp_lg_u32 s25, 63
        s_cbranch_scc1 k2_notlast
        s_mov_b32 exec_hi, 0
        buffer_store_dword v18, v17, s[28:31], s24 offen sc0 sc1
        s_mov_b32 exec_hi, -1
        """)
        a.label("k2_notlast")
        stamp_out(a, 2, 6, "k3_done")
        a("s_branch k3_done")
        return
    stamp_out(a, 1, 6, "k2_done")
    a("s_branch k2_done")

    a.label("k2_gemm")
    a(f"""
    s_load_dwordx2 s[4:5], s[0:1], 80 ; w1
    s_and_b32 s20, s2, 15             ; mt
    s_sub_u32 s21, s2, {N_CV if 'cvfirst' in VAR else 0}
    s_lshr_b32 s21, s21, 4             ; nt
    s_waitcnt lgkmcnt(0)
    """)
    stamp(a, 0)
    prio2(a, PR[6], PR[6])
    srd(a, 8, 6, 7, 0x200000)
    srd(a, 12, 4, 5, 512 * 2752)
    srd_off(a, 16, 6, 7, H_OFF, H_SZ)
    ST = 6144
    GD = int(os.environ.get('GD', '6'))
    a(f"""
    s_lshl_b32 s22, s3, 15
    v_lshl_add_u32 v3, v2, 4, s22
    s_mul_i32 s22, s3, 96
    v_add_u32 v4, s22, v2              ; P = 96w + l
    v_add_u32 v5, 64, v4
    s_movk_i32 s23, 5462               ; 65536/12
    s_movk_i32 s24, 2752
    v_mul_u32_u24 v6, s23, v4
    v_lshrrev_b32 v6, 16, v6           ; row
    v_mul_u32_u24 v7, 12, v6
    v_sub_u32 v4, v4, v7               ; cc
    v_lshlrev_b32 v4, 4, v4
    v_mad_u32_u24 v4, v6, s24, v4      ; voffB0
    v_mul_u32_u24 v6, s23, v5
    v_lshrrev_b32 v6, 16, v6
    v_mul_u32_u24 v7, 12, v6
    v_sub_u32 v5, v5, v7
    v_lshlrev_b32 v5, 4, v5
    v_mad_u32_u24 v5, v6, s24, v5      ; voffB1
    s_lshl_b32 s25, s20, 17
    s_mul_i32 s26, s21, 192
    s_lshr_b32 s36, s20, 3
    s_lshl_b32 s36, s36, {os.environ.get('RM', '3')}
    s_add_u32 s36, s36, s21
    s_and_b32 s36, s36, {0 if 'norot' in VAR else 15}
    s_mul_i32 s28, s3, 1536
    s_mov_b64 s[30:31], -1
    s_mov_b32 s32, -1
    s_mov_b32 s33, 0
    """)
    def dma(kc):
        st = (kc % 3) * ST
        a(f"""
        s_add_u32 m0, s27, {st}
        s_add_u32 s29, s25, {kc*64 + 16384}
        buffer_load_dwordx4 v3, s[8:11], s25 offen offset:{0} lds
        s_add_u32 m0, s27, {st + 1024}
        s_nop 0
        buffer_load_dwordx4 v3, s[8:11], s29 offen lds
        s_add_u32 m0, s28, {st}
        s_nop 0
        buffer_load_dwordx4 v4, s[12:15], s26 offen lds
        s_add_u32 m0, s28, {st + 1024}
        s_mov_b64 exec, s[32:33]
        buffer_load_dwordx4 v5, s[12:15], s26 offen lds
        s_mov_b64 exec, s[30:31]
        s_add_u32 s25, s25, 64
        s_add_u32 s26, s26, {32*2752}
        """)
    a(f"""
    v_and_b32 v6, 31, v2               ; m
    v_lshrrev_b32 v7, 5, v2            ; kg / h
    s_lshl_b32 s22, s3, 5
    v_add_u32 v8, s22, v6
    v_lshlrev_b32 v8, 6, v8            ; row*64
    v_lshrrev_b32 v9, 2, v6
    v_and_b32 v9, 3, v9                ; (row>>2)&3
    v_xor_b32 v10, v9, v7
    v_lshl_add_u32 v10, v10, 4, v8     ; vAr0
    v_xor_b32 v11, 2, v9
    v_xor_b32 v11, v11, v7
    v_lshl_add_u32 v11, v11, 4, v8
    v_lshlrev_b32 v12, 3, v7           ; 8*kg
    v_bfe_u32 v13, v2, 2, 2
    v_add_u32 v12, v12, v13
    v_mul_u32_u24 v12, 192, v12
    v_bfe_u32 v13, v2, 4, 1
    v_lshl_add_u32 v12, v13, 5, v12    ; + 32*((l>>4)&1)
    v_and_b32 v13, 3, v2
    v_lshl_add_u32 v12, v13, 3, v12    ; + 8*(l&3)
    """)
    ACC = 16
    for i in range(48):
        a(f"v_mov_b32 v{ACC+i}, 0")
    return_dma = dma
    def dma2(kc):
        st = (kc % GD) * ST
        a(f"""
        s_lshl_b32 s37, s36, 11
        s_add_u32 s37, s37, s25
        s_mul_i32 s38, s36, {32*2752}
        buffer_load_dwordx4 v[{112+8*(kc%(GD+1))}:{115+8*(kc%(GD+1))}], v3, s[8:11], s37 offen
        buffer_load_dwordx4 v[{116+8*(kc%(GD+1))}:{119+8*(kc%(GD+1))}], v3, s[8:11], s37 offen offset:1024
        s_add_u32 m0, s28, {st}
        s_add_u32 s38, s38, s26
        buffer_load_dwordx4 v4, s[12:15], s38 offen lds
        s_add_u32 m0, s28, {st + 1024}
        s_mov_b64 exec, s[32:33]
        buffer_load_dwordx4 v5, s[12:15], s38 offen lds
        s_mov_b64 exec, s[30:31]
        s_add_u32 s36, s36, 1
        s_and_b32 s36, s36, 15
        """)
    for kc in range(GD): dma2(kc)
    FB = 64
    def breads(kc):
        st = (kc % GD) * ST
        for ks in range(2):
            for j in range(3):
                b = FB + 24 * (kc & 1) + 12 * ks + 4 * j
                off = st + ks * 16 * 192 + 64 * j
                a(f"ds_read_b64_tr_b16 v[{b}:{b+1}], v12 offset:{off}")
                a(f"ds_read_b64_tr_b16 v[{b+2}:{b+3}], v12 offset:{off + 4*192}")
    a(f"s_waitcnt vmcnt({4*(GD-1)})")
    a("s_barrier")
    stamp(a, 1)
    breads(0)
    for kc in range(16):
        if kc < 15:
            a(f"s_waitcnt vmcnt({4 * (min(kc + GD - 1, 15) - (kc + 1))}) lgkmcnt(0)")
            a("s_barrier")
            if kc + GD < 16:
                dma2(kc + GD)
            breads(kc + 1)
        else:
            a("s_waitcnt lgkmcnt(0)")
        FA = 112 + 8 * (kc % (GD + 1))
        for ks in range(2):
            for j in range(3):
                b = FB + 24 * (kc & 1) + 12 * ks + 4 * j
                a(f"v_mfma_f32_32x32x16_bf16 v[{ACC+16*j}:{ACC+16*j+15}], v[{b}:{b+3}], v[{FA+4*ks}:{FA+4*ks+3}], v[{ACC+16*j}:{ACC+16*j+15}]")
    stamp(a, 2)
    prio2(a, PR[7], PR[7])
    a(f"""
    s_barrier
    s_lshl_b32 s22, s3, 5
    v_add_u32 v8, s22, v6
    v_mul_u32_u24 v8, 208, v8
    v_lshl_add_u32 v8, v7, 3, v8       ; row*208 + 8h
    s_nop 7
    s_nop 3
    """)
    for j in range(3):
        for q in range(4):
            r = ACC + 16 * j + 4 * q
            a(f"""
            v_max_f32 v{r}, 0, v{r}
            v_max_f32 v{r+1}, 0, v{r+1}
            v_max_f32 v{r+2}, 0, v{r+2}
            v_max_f32 v{r+3}, 0, v{r+3}
            v_cvt_pk_bf16_f32 v{r}, v{r}, v{r+1}
            v_cvt_pk_bf16_f32 v{r+1}, v{r+2}, v{r+3}
            ds_write_b64 v8, v[{r}:{r+1}] offset:{64*j + 16*q}
            """)
    a(f"""
    s_mul_i32 s22, s3, {32*208}
    s_lshl_b32 s25, s20, 2
    s_add_u32 s25, s25, s3
    s_mul_i32 s25, s25, {H_RB}
    s_mul_i32 s26, s21, 6144
    s_add_u32 s25, s25, s26
    v_and_b32 v10, 31, v2
    v_mul_u32_u24 v12, 208, v10
    v_lshrrev_b32 v9, 5, v2
    v_lshl_add_u32 v12, v9, 4, v12
    v_add_u32 v12, s22, v12
    v_lshlrev_b32 v11, 4, v2
    s_mul_i32 s26, s21, 96
    s_movk_i32 s27, {H_RS}
    s_movk_i32 s28, 208
    s_mov_b32 s29, 0x40000000
    s_movk_i32 s34, 1376
    s_movk_i32 s35, 1408
    s_waitcnt lgkmcnt(0)
    """)
    for i in range(6):
        a(f"""
        ds_read_b128 v[{64+4*i}:{67+4*i}], v12 offset:{32*i}
        v_add_u32 v{90+i}, {1024*i}, v11
        v_add_u32 v10, {2*i}, v9
        v_lshl_add_u32 v{96+i}, v10, 3, s26 ; col
        """)
    for i in range(6):
        a(f"""
        s_waitcnt lgkmcnt({5-i})
        v_cmp_gt_u32 vcc, s34, v{96+i}
        v_mov_b32 v9, s29
        v_cndmask_b32 v{64+4*i}, 0, v{64+4*i}, vcc
        v_cndmask_b32 v{65+4*i}, 0, v{65+4*i}, vcc
        v_cndmask_b32 v{66+4*i}, 0, v{66+4*i}, vcc
        v_cndmask_b32 v{67+4*i}, 0, v{67+4*i}, vcc
        v_cmp_gt_u32 vcc, s35, v{96+i}
        s_nop 1
        v_cndmask_b32 v{90+i}, v9, v{90+i}, vcc
        buffer_store_dwordx4 v[{64+4*i}:{67+4*i}], v{90+i}, s[16:19], s25 offen sc0 sc1
        """)
    stamp_out(a, 1, 3, "k2_done")
    a.label("k2_done")
    a("s_endpgm")

def add(kernels, launches):
    a = Asm()
    gen_k2(a)
    kernels.append(("k2_kernel", a.text(), 120 + 8 * int(os.environ.get("GD", "6"))))
    launches.append(f"; @launch kernel=k2_kernel grid=({N_G1+N_CV},1,1) block=(256,1,1) lds={K2_LDS}")
    try:
        import gen3
        gen3.add(kernels, launches)
    except ImportError:
        pass
```

```python
from gen import *

N_G2 = 256
NST = 4
YB = 4 * 17408
K3_LDS = YB + 4 * 2080
N_CB = 256
SB = 4096
POLLK = int(os.environ.get('POLLK', '8'))

def gen_k3(a):
    a.label("k3_kernel")
    a(f"""
    s_cmp_ge_u32 s2, {N_G2 + N_CB}
    s_cbranch_scc1 k3_done
    v_lshrrev_b32 v1, 6, v0
    v_and_b32 v2, 63, v0              ; lane
    s_load_dwordx2 s[6:7], s[0:1], 112 ; ws
    v_readfirstlane_b32 s3, v1
    s_cmp_ge_u32 s2, {N_CB}
    s_cbranch_scc1 k3_gemm
    """)
    import gen2
    b = Asm()
    gen2.gen_k2(b, k3=True)
    a.lines += [l.replace("k2_", "k3c_") for l in b.lines]
    a.label("k3_gemm")
    a(f"""
    s_load_dwordx2 s[4:5], s[0:1], 88  ; w2
    s_load_dwordx2 s[36:37], s[0:1], 0 ; x
    s_load_dwordx2 s[38:39], s[0:1], 96 ; out
    s_setprio {os.environ.get('P3', '0')}
    {'''s_and_b32 s20, s2, 31             ; mt''' if 'k3old' in VAR else '''s_and_b32 s20, s2, 7
    s_lshl_b32 s20, s20, 1
    s_bfe_u32 s21, s2, 0x10003
    s_add_u32 s20, s20, s21
    s_and_b32 s21, s2, 16
    s_add_u32 s20, s20, s21           ; mt = 2x + r0 + 16 r1'''}
    s_bfe_u32 s21, s2, 0x30005        ; nt
    v_lshlrev_b32 v3, 4, v2            ; voffA
    v_lshrrev_b32 v4, 3, v2
    v_lshlrev_b32 v4, 10, v4
    v_bfe_u32 v5, v2, 4, 1
    v_lshlrev_b32 v5, 2, v5
    v_and_b32 v6, 7, v2
    v_xor_b32 v5, v5, v6
    v_lshl_add_u32 v4, v5, 4, v4       ; voffB
    s_waitcnt lgkmcnt(0)
    """)
    stamp(a, 0)
    srd_off(a, 8, 6, 7, H_OFF, H_SZ)
    srd(a, 12, 4, 5, 1376 * 1024)
    srd_off(a, 16, 6, 7, YT_OFF, 0x200000)
    srd(a, 40, 36, 37, 0x200000)
    srd(a, 44, 38, 39, 0x200000)
    srd_off(a, 48, 6, 7, TB_OFF, 0x10000)
    a(f"""
    s_mul_i32 s25, s20, {2*H_RB}
    s_mul_i32 s26, s3, {44*512}
    s_add_u32 s25, s25, s26
    s_mul_i32 s26, s3, {352*1024}
    s_lshl_b32 s27, s21, 7
    s_add_u32 s26, s26, s27            ; soffB
    s_lshl_b32 s27, s3, 14
    """)
    FH0 = 144
    def dma(kc):
        st = (kc % NST) * SB
        for jm in range(2):
            f = FH0 + 16 * (kc % NST) + 4 * jm
            a(f"""
            s_add_u32 s28, s25, {kc*2048 + jm*H_RB}
            buffer_load_dwordx4 v[{f}:{f+3}], v3, s[8:11], s28 offen
            buffer_load_dwordx4 v[{f+8}:{f+11}], v3, s[8:11], s28 offen offset:1024
            """)
        for i in range(4):
            a(f"""
            s_add_u32 m0, s27, {st + 1024*i}
            s_add_u32 s28, s26, {kc*32768 + i*8192}
            buffer_load_dwordx4 v4, s[12:15], s28 offen lds
            """)
    for kc in range(NST - 1):
        dma(kc)
    AT = 112; XV = 128
    a(f"""
    v_lshrrev_b32 v5, 3, v2
    v_lshlrev_b32 v5, 12, v5           ; (l>>3)*4096
    v_and_b32 v6, 7, v2
    v_lshl_add_u32 v5, v6, 4, v5       ; + 16*(l&7)
    v_lshrrev_b32 v6, 3, v0
    s_lshl_b32 s29, s21, 18            ; n0*4096
    s_lshl_b32 s30, s20, 7
    s_add_u32 s29, s29, s30
    s_lshl_b32 s30, s3, 16             ; 16w*4096
    s_add_u32 s29, s29, s30
    s_mul_i32 s33, s3, 2080
    s_add_u32 s34, s29, 0x8000
    s_lshl_b32 s35, s21, 12
    s_and_b32 s32, s2, 31
    s_lshl_b32 s32, s32, 7
    s_add_u32 s35, s35, s32
    s_add_u32 s35, s35, 0x4000
    v_mov_b32 v137, 0
    v_lshlrev_b32 v7, 10, v6           ; row*1024
    v_and_b32 v8, 7, v0
    v_lshl_add_u32 v7, v8, 4, v7       ; + 16*(t&7)
    s_lshl_b32 s30, s20, 16
    s_lshl_b32 s31, s21, 7
    s_add_u32 s30, s30, s31
    s_add_u32 s24, s30, 0x8000         ; rows + 32
    buffer_load_dwordx4 v[{XV}:{XV+3}], v7, s[40:43], s30 offen
    buffer_load_dwordx4 v[{XV+4}:{XV+7}], v7, s[40:43], s24 offen
    """)
    NEX = 2
    a(f"""
    v_and_b32 v8, 31, v2               ; idx
    v_lshrrev_b32 v9, 5, v2            ; kg / h
    v_lshlrev_b32 v14, 3, v9
    v_bfe_u32 v15, v2, 2, 2
    v_add_u32 v14, v14, v15
    v_lshlrev_b32 v14, 7, v14          ; row*128
    v_bfe_u32 v15, v2, 4, 1
    v_lshl_add_u32 v14, v15, 5, v14
    v_and_b32 v15, 3, v2
    v_lshl_add_u32 v14, v15, 3, v14
    v_bfe_u32 v15, v2, 3, 1
    v_lshl_add_u32 v14, v15, 6, v14
    v_add_u32 v14, s27, v14            ; vW0
    v_xor_b32 v15, 64, v14             ; vW1
    """)
    ACC = 16
    for i in range(64):
        a(f"v_mov_b32 v{ACC+i}, 0")
    FH = 80; FW = 96
    NCH = 11
    for kc in range(NCH):
        st = (kc % NST) * SB
        FH = FH0 + 16 * (kc % NST)
        later = min(kc + NST - 2, NCH - 1) - kc
        cnt = 8 * later + (NEX if kc < NST - 2 + 0 and False else 0)
        if kc <= NST - 2:
            cnt += NEX
        if kc > POLLK:
            cnt += 2
        a(f"s_waitcnt vmcnt({min(cnt, 63)})")
        if kc == 0: stamp(a, 1)
        for ks in range(2):
            for jn in range(2):
                f = FW + 8 * ks + 4 * jn
                a(f"ds_read_b64_tr_b16 v[{f}:{f+1}], v{14+jn} offset:{st + ks*2048}")
                a(f"ds_read_b64_tr_b16 v[{f+2}:{f+3}], v{14+jn} offset:{st + ks*2048 + 512}")
        if kc + NST - 1 < NCH:
            dma(kc + NST - 1)
        for ks in range(2):
            a(f"s_waitcnt lgkmcnt({4 if ks == 0 else 0})")
            for jn in range(2):
                for jm in range(2):
                    acc = ACC + 16 * (2 * jn + jm)
                    w = FW + 8 * ks + 4 * jn
                    h = FH + 8 * ks + 4 * jm
                    a(f"v_mfma_f32_32x32x16_bf16 v[{acc}:{acc+15}], v[{w}:{w+3}], v[{h}:{h+3}], v[{acc}:{acc+15}]")
        if kc == POLLK:
            assert kc + NST - 1 >= NCH
            a(f"""
            s_cmp_lt_u32 s21, 4
            s_cbranch_scc1 k3_ready
            s_mov_b32 s31, 0x40000
            """)
            a.label("k3_poll")
            a(f"""
            buffer_load_dword v136, v137, s[48:51], s35 offen sc0 sc1
            s_sub_u32 s31, s31, 1
            s_waitcnt vmcnt(0)
            v_readfirstlane_b32 s32, v136
            s_cmp_eq_u32 s31, 0
            s_cbranch_scc1 k3_ready
            s_cmp_eq_u32 s32, 1
            s_cbranch_scc1 k3_ready
            s_sleep 4
            s_branch k3_poll
            """)
            a.label("k3_ready")
            a(f"""
            s_add_u32 m0, s33, {YB}
            s_nop 0
            buffer_load_dwordx4 v5, s[16:19], s29 offen sc0 sc1 lds
            s_add_u32 m0, s33, {YB + 1024}
            s_nop 0
            buffer_load_dwordx4 v5, s[16:19], s34 offen sc0 sc1 lds
            """)
    stamp(a, 2)
    a(f"""
    s_barrier
    v_mul_u32_u24 v10, 272, v8
    v_lshl_add_u32 v10, v9, 4, v10
    s_mul_i32 s28, s3, 17408
    v_add_u32 v10, s28, v10
    s_nop 7
    s_nop 3
    """)
    for jn in range(2):
        for jm in range(2):
            for q in range(4):
                r = ACC + 16 * (2 * jn + jm) + 4 * q
                a(f"ds_write_b128 v10, v[{r}:{r+3}] offset:{jm*32*272 + jn*128 + q*32}")
    a(f"""
    v_mul_u32_u24 v11, 272, v6
    v_and_b32 v12, 7, v0
    v_lshl_add_u32 v11, v12, 5, v11
    v_bfe_u32 v13, v0, 1, 2
    v_mul_u32_u24 v13, 2080, v13
    v_and_b32 v12, 1, v0
    v_lshl_add_u32 v12, v12, 10, v13
    v_lshl_add_u32 v12, v6, 1, v12
    v_add_u32 v12, {YB}, v12
    s_mov_b32 s23, 0xffff0000
    s_waitcnt vmcnt(0) lgkmcnt(0)
    s_barrier
    """)
    for p in range(4):
        for c in range(4):
            r = 16 + 16 * p + 4 * c
            a(f"ds_read_b128 v[{r}:{r+3}], v11 offset:{p*17408 + (c >> 1)*8704 + 16*(c & 1)}")
    a("s_waitcnt lgkmcnt(8)")
    for i in range(16):
        a(f"v_add_f32 v{16+i}, v{16+i}, v{32+i}")
    a("s_waitcnt lgkmcnt(0)")
    for i in range(16):
        a(f"ds_read_u16 v{AT + i}, v12 offset:{128*(i & 7) + 64*(i >> 3)}")
    for i in range(16):
        a(f"v_add_f32 v{48+i}, v{48+i}, v{64+i}")
    for i in range(16):
        a(f"v_add_f32 v{16+i}, v{16+i}, v{48+i}")
    a("s_waitcnt vmcnt(0) lgkmcnt(0)")
    for j in range(8):
        a(f"""
        v_cvt_pk_bf16_f32 v32, v{16+2*j}, v{17+2*j}
        v_lshlrev_b32 v33, 16, v{XV+j}
        v_and_b32 v34, s23, v{XV+j}
        v_lshlrev_b32 v35, 16, v{AT+2*j}
        v_lshlrev_b32 v36, 16, v{AT+2*j+1}
        v_add_f32 v33, v33, v35
        v_add_f32 v34, v34, v36
        v_cvt_pk_bf16_f32 v33, v33, v34
        v_lshlrev_b32 v35, 16, v32
        v_and_b32 v36, s23, v32
        v_lshlrev_b32 v37, 16, v33
        v_and_b32 v38, s23, v33
        v_add_f32 v35, v35, v37
        v_add_f32 v36, v36, v38
        v_cvt_pk_bf16_f32 v{40+j}, v35, v36
        """)
    a(f"""
    buffer_store_dwordx4 v[40:43], v7, s[44:47], s30 offen {'' if 'owb' in VAR else 'sc0 sc1'}
    buffer_store_dwordx4 v[44:47], v7, s[44:47], s24 offen {'' if 'owb' in VAR else 'sc0 sc1'}
    """)
    stamp_out(a, 2, 3, "k3_done")
    a.label("k3_done")
    a("s_endpgm")

def add(kernels, launches):
    a = Asm()
    gen_k3(a)
    kernels.append(("k3_kernel", a.text(), 208))
    launches.append(f"; @launch kernel=k3_kernel grid=({N_G2+N_CB},1,1) block=(256,1,1) lds={K3_LDS}")
```

```python
from gen import *

N_G1 = 240
N_CV = 512
PS = int(os.environ.get('PS', '4384'))
K2_LDS = max(8 * PS + 12288 + 3072, 26880 + 26752)
UH = 0
KHL = 8 * PS

PR = [int(x) for x in os.environ.get('PR', '2,0,2,2,0,2,0,2').split(',')]
_pl = [0]
def prio2(a, pa, pb):
    if 'noprio' in VAR: return
    if pa == pb:
        a(f"s_setprio {pa}"); return
    _pl[0] += 1
    a(f"""
    s_setprio {pa}
    s_cmp_lt_u32 s20, 256
    s_cbranch_scc1 k2_pr{_pl[0]}
    s_setprio {pb}
    """)
    a.label(f"k2_pr{_pl[0]}")

def kgen(a):
    LUTB = 26752
    a(f"""
    s_load_dwordx8 s[40:47], s[0:1], 8
    s_load_dwordx4 s[48:51], s[0:1], 40
    s_load_dwordx2 s[52:53], s[0:1], 56    ; log_dt
    s_load_dwordx2 s[56:57], s[0:1], 80    ; w1
    s_mov_b32 s20, s2                     ; d
    s_lshl_b32 s27, s20, 8                ; d*256 bytes
    s_lshl_b32 s28, s3, 6
    s_add_u32 s27, s27, s28
    v_and_b32 v4, 31, v2                  ; i / j
    v_lshrrev_b32 v6, 5, v2               ; half
    v_lshlrev_b32 v7, 1, v4
    v_add_u32 v7, s27, v7
    s_lshl_b32 s27, s20, 1
    v_mov_b32 v14, s27                    ; 2*d
    s_waitcnt lgkmcnt(0)
    global_load_ushort v80, v7, s[40:41]
    global_load_ushort v81, v7, s[42:43]
    global_load_ushort v82, v7, s[44:45]
    global_load_ushort v83, v7, s[46:47]
    global_load_ushort v84, v7, s[48:49]
    global_load_ushort v85, v7, s[50:51]
    global_load_ushort v86, v14, s[52:53]
    """)
    stamp(a, 0)
    srd_off(a, 8, 6, 7, XT0_OFF, XT_SZ)
    srd_off(a, 12, 6, 7, KH_OFF, 0x400000)
    def RA(i):
        sl = ROWSLOT[rho_of_row(i)]
        return (sl >> 3) * 1024 + ((sl >> 2) & 1) * 512 + (sl & 3) * 4
    cw = [sum(COLSLOT[4*k+j] << (8*j) for j in range(4)) for k in range(8)]
    r0 = [RA(i) for i in [0, 8, 12, 14, 16, 17, 18, 19, 20]] + [0]
    rw = [r0[2*k] | (r0[2*k+1] << 16) for k in range(5)]
    a("v_mov_b32 v30, 0")
    for k in range(8):
        a(f"v_mov_b32 v{16+k}, {cw[k]:#x}")
    a(f"ds_write_b128 v30, v[16:19] offset:{LUTB}")
    a(f"ds_write_b128 v30, v[20:23] offset:{LUTB+16}")
    for k in range(5):
        a(f"v_mov_b32 v{24+k}, {rw[k]:#x}")
    a(f"""
    ds_write_b128 v30, v[24:27] offset:{LUTB+32}
    ds_write_b32 v30, v28 offset:{LUTB+48}
    v_sub_u32 v3, 0xff, v0               ; q
    v_sub_u32 v14, 0x100, v0             ; q+1
    v_and_b32 v16, 31, v3
    v_and_b32 v17, 31, v14
    v_lshrrev_b32 v18, 5, v3
    v_lshrrev_b32 v19, 5, v14
    v_lshlrev_b32 v18, 1, v18
    v_lshlrev_b32 v19, 1, v19
    ds_read_u8 v16, v16 offset:{LUTB}
    ds_read_u16 v18, v18 offset:{LUTB+32}
    ds_read_u8 v17, v17 offset:{LUTB}
    ds_read_u16 v19, v19 offset:{LUTB+32}
    v_lshlrev_b32 v5, 4, v0              ; 16*t
    v_and_b32 v15, 1, v3
    v_lshlrev_b32 v3, 5, v0              ; 32*t
    v_cmp_eq_u32 vcc, 1, v15             ; q odd
    s_cmp_eq_u32 s3, 2
    s_waitcnt lgkmcnt(0)
    v_lshl_add_u32 v16, v16, 4, v18      ; A0
    v_lshl_add_u32 v17, v17, 4, v19      ; A1
    s_cbranch_scc1 k1_ad_w2
    s_cmp_eq_u32 s3, 3
    s_cbranch_scc1 k1_ad_w3
    """)
    M = 0xffffffff
    for i in range(8):
        e = 7 - i
        if i == 4: a(f"v_cndmask_b32 v{60+e}, v16, v17, vcc")
        else: a(f"v_mov_b32 v{60+e}, v{16 if i < 4 else 17}")
    a("s_branch k1_ad_done")
    a.label("k1_ad_w2")
    a(f"""
    v_add_u32 v18, {(RA(13) - RA(12)) & M:#x}, v16
    s_mov_b32 exec_hi, 0
    v_add_u32 v18, {(RA(15) - RA(14)) & M:#x}, v16
    s_mov_b32 exec_hi, -1
    """)
    for i in range(8):
        a(f"v_mov_b32 v{67-i}, v{[16,16,16,18,18,18,17,17][i]}")
    a("s_branch k1_ad_done")
    a.label("k1_ad_w3")
    for i in range(8):
        a(f"v_add_u32 v{67-i}, {(RA(i) - RA(0)) & M:#x}, v16")
    a("s_mov_b32 exec_hi, 0")
    for i, off in enumerate([0, 0, 2, 4, 4, 4, 6]):
        a(f"v_add_u32 v{67-i}, {(RA(8 + off // 2) - RA(8)) & M:#x}, v16")
    a("v_mov_b32 v60, v17")
    a("s_mov_b32 exec_hi, -1")
    a.label("k1_ad_done")
    a(f"""
    s_cmp_lg_u32 s2, 0
    s_cbranch_scc1 k1_kg_notab
    {'s_branch k1_kg_notab' if N_KG == 512 else ''}
    """)
    srd_off(a, 28, 6, 7, TB_OFF, 0x10000)
    a(f"""
    v_mov_b32 v16, 0
    v_mov_b32 v17, 0
    v_mov_b32 v18, 0
    v_mov_b32 v19, 0
    s_movk_i32 s24, 0x4000
    buffer_store_dwordx4 v[60:63], v3, s[28:31], 0 offen
    buffer_store_dwordx4 v[64:67], v3, s[28:31], 0 offen offset:16
    buffer_store_dwordx4 v[16:19], v5, s[28:31], s24 offen
    s_mov_b32 s24, 0x8000
    buffer_store_dwordx4 v[16:19], v5, s[28:31], s24 offen
    s_mov_b32 s24, 0x9000
    buffer_store_dwordx4 v[16:19], v5, s[28:31], s24 offen
    s_mov_b32 s24, 0xa000
    buffer_store_dwordx4 v[16:19], v5, s[28:31], s24 offen
    s_mov_b32 s24, 0xb000
    buffer_store_dwordx4 v[16:19], v5, s[28:31], s24 offen
    """)
    a.label("k1_kg_notab")
    TBL = KHL + 12288
    WT = 6656
    P = [None] + [92 + 2 * i for i in range(7)]
    G1, G2, G3, G6 = 106, 108, 110, 112
    A = [114, 116, 118, 120]
    M1, M3 = 122, 124
    AR = 40
    NA = [84, 85, 86, 87]
    def cmul2(d, x, y, d2, x2, y2):
        a(f"""
        v_pk_mul_f32 v[{d}:{d+1}], v[{x}:{x+1}], v[{y}:{y+1}] op_sel:[0,0] op_sel_hi:[0,1]
        v_pk_mul_f32 v[{d2}:{d2+1}], v[{x2}:{x2+1}], v[{y2}:{y2+1}] op_sel:[0,0] op_sel_hi:[0,1]
        v_pk_fma_f32 v[{d}:{d+1}], v[{x}:{x+1}], v[{y}:{y+1}], v[{d}:{d+1}] op_sel:[1,1,0] op_sel_hi:[1,0,1] neg_lo:[1,0,0]
        v_pk_fma_f32 v[{d2}:{d2+1}], v[{x2}:{x2+1}], v[{y2}:{y2+1}], v[{d2}:{d2+1}] op_sel:[1,1,0] op_sel_hi:[1,0,1] neg_lo:[1,0,0]
        """)
    a(f"""
    s_mov_b32 s54, 0
    s_mov_b32 s55, -1
    s_mul_i32 s32, s3, {WT}
    v_lshlrev_b32 v12, 12, v6
    v_add_u32 v12, s32, v12
    v_and_b32 v13, 3, v4
    v_lshl_add_u32 v12, v13, 2, v12
    v_lshrrev_b32 v13, 2, v4
    v_lshl_add_u32 v12, v13, 4, v12
    """)
    for c in range(16):
        a(f"v_xor_b32 v{AR+c}, {16*((c>>1)&7) + 128*(c&1)}, v12")
    a(f"""
    v_mov_b32 v13, s32
    v_cndmask_b32 v13, v13, 0, s[54:55]
    v_sub_u32 v56, v12, v13
    v_mov_b32 v14, 0x41000000             ; 8
    v_cndmask_b32 v12, v14, 1.0, s[54:55] ; c1
    v_cndmask_b32 v13, v14, -1.0, s[54:55] ; c1 (phase)
    v_mov_b32 v14, 0x42800000             ; 64
    v_mov_b32 v15, 0x43800000             ; 256
    v_cndmask_b32 v57, v14, v15, s[54:55] ; c2
    v_cndmask_b32 v58, v14, -v15, s[54:55] ; c2 (phase)
    s_mov_b32 s33, 0x3fb8aa3b             ; log2e
    s_mov_b32 s34, 0x3e22f983             ; 1/(2pi)
    s_mov_b32 s35, 0xffff0000
    s_mov_b32 s36, 0x0000bf80
    s_mov_b32 s37, 0x80000000
    s_waitcnt vmcnt(0)
    """)
    def pw1():
        if 'nopw1' not in VAR:
            srd(a, 56, 56, 57, 512 * 2752)
            a("""
            s_lshl_b32 s27, s2, 6
            v_lshl_add_u32 v9, v0, 14, s27
            buffer_load_dword v8, v9, s[56:59], 0 offen
            """)
    if 'pwlate' not in VAR and 'pwend' not in VAR: pw1()
    stamp(a, 1)
    a(f"""
    v_lshlrev_b32 v86, 16, v86
    v_mul_f32 v86, s33, v86
    v_exp_f32 v86, v86
    v_lshlrev_b32 v80, 16, v80
    v_lshlrev_b32 v81, 16, v81
    v_lshlrev_b32 v82, 16, v82
    v_lshlrev_b32 v83, 16, v83
    v_lshlrev_b32 v84, 16, v84
    v_lshlrev_b32 v85, 16, v85
    v_cvt_pk_bf16_f32 v86, v86, v86
    v_and_b32 v86, s35, v86               ; dt
    v_mul_f32 v80, v86, v80               ; lr
    v_mul_f32 v81, v86, v81               ; li
    v_mul_f32 v82, v86, v82               ; dBr
    v_mul_f32 v83, v86, v83               ; dBi
    v_mul_f32 v88, s33, v80               ; lr2
    v_mul_f32 v89, s34, v81               ; lif
    v_mul_f32 v68, v88, v12
    v_mul_f32 v69, v89, v13
    v_mul_f32 v70, v88, v57
    v_mul_f32 v71, v89, v58
    v_exp_f32 v68, v68
    v_fract_f32 v69, v69
    v_exp_f32 v70, v70
    v_fract_f32 v71, v71
    v_cos_f32 v{P[1]}, v69
    v_sin_f32 v{P[1]+1}, v69
    v_cos_f32 v{G1}, v71
    v_sin_f32 v{G1+1}, v71
    v_mul_f32 v90, v84, v82
    v_fma_f32 v90, -v85, v83, v90         ; CBr
    v_mul_f32 v91, v84, v83
    v_fma_f32 v91, v85, v82, v91          ; CBi
    v_mul_f32 v{P[1]}, v68, v{P[1]}
    v_mul_f32 v{P[1]+1}, v68, v{P[1]+1}
    v_mul_f32 v{G1}, v70, v{G1}
    v_mul_f32 v{G1+1}, v70, v{G1+1}
    v_cndmask_b32 v{A[0]}, 1.0, v90, s[54:55]
    v_cndmask_b32 v{A[0]+1}, 0, -v91, s[54:55]
    """)
    cmul2(P[2], P[1], P[1], G2, G1, G1)
    cmul2(P[3], P[2], P[1], G3, G2, G1)
    cmul2(P[4], P[2], P[2], A[1], A[0], G1)
    cmul2(P[6], P[3], P[3], G6, G3, G3)
    cmul2(P[5], P[4], P[1], A[2], A[0], G2)
    cmul2(P[7], P[4], P[3], A[3], A[0], G3)
    a(f"""
    v_cndmask_b32 v{M1}, v{P[1]}, v{G3}, s[54:55]
    v_cndmask_b32 v{M1+1}, v{P[1]+1}, v{G3+1}, s[54:55]
    v_cndmask_b32 v{M3}, v{P[3]}, v{G6}, s[54:55]
    v_cndmask_b32 v{M3+1}, v{P[3]+1}, v{G6+1}, s[54:55]
    v_xor_b32 v{NA[0]}, s37, v{A[0]+1}
    v_xor_b32 v{NA[1]}, s37, v{A[1]+1}
    v_xor_b32 v{NA[2]}, s37, v{A[2]+1}
    v_xor_b32 v{NA[3]}, s37, v{A[3]+1}
    """)
    def src_of(m, b):
        if b == 0: return None
        if m > 0 and b == 1: return M1
        if m > 0 and b == 3: return M3
        return P[b]
    def pair(p):
        pr = []
        for k in range(2):
            st_ = 2 * p + k
            m, b = KSTEPS[st_]
            pr.append((st_, m, b, 68 + 4 * ((p & 1) * 2 + k)))
        return pr
    def stA(p):
        n = 0
        for (st_, m, b, T) in pair(p):
            y = src_of(m, b)
            if y is not None:
                a(f"v_pk_mul_f32 v[{T}:{T+1}], v[{A[m]}:{A[m]+1}], v[{y}:{y+1}] op_sel:[0,0] op_sel_hi:[0,1]")
        for (st_, m, b, T) in pair(p):
            y = src_of(m, b)
            if y is not None:
                a(f"v_pk_fma_f32 v[{T}:{T+1}], v[{A[m]}:{A[m]+1}], v[{y}:{y+1}], v[{T}:{T+1}] op_sel:[1,1,0] op_sel_hi:[1,0,1] neg_lo:[1,0,0]")
        return 4
    def stB(p):
        for (st_, m, b, T) in pair(p):
            V = T if b else A[m]
            a(f"v_cvt_pk_bf16_f32 v{T+2}, v{V}, v{V+1}")
        for k, (st_, m, b, T) in enumerate(pair(p)):
            a(f"v_lshlrev_b32 v{88+2*k}, 16, v{T+2}")
            a(f"v_and_b32 v{89+2*k}, s35, v{T+2}")
        for k, (st_, m, b, T) in enumerate(pair(p)):
            V = T if b else A[m]
            a(f"v_pk_add_f32 v[{T}:{T+1}], v[{V}:{V+1}], v[{88+2*k}:{89+2*k}] neg_lo:[0,1] neg_hi:[0,1]")
    def stC(p):
        for (st_, m, b, T) in pair(p):
            a(f"v_cvt_pk_bf16_f32 v{T+3}, v{T}, v{T+1}")
        for (st_, m, b, T) in pair(p):
            if st_ == 21:
                a("s_mov_b32 exec_hi, 0")
            ar = 56 if st_ == 0 else AR + (st_ & 15)
            a(f"ds_write2st64_b32 v{ar}, v{T+2}, v{T+3} offset0:{st_>>1} offset1:{(st_>>1)+105}")
    stA(0); stB(0)
    for p in range(1, 17):
        if p < 16: stA(p)
        stC(p - 1)
        if p < 16: stB(p)
    a(f"""
    s_mov_b64 exec, -1
    v_min_u32 v12, 20, v4
    v_bfe_u32 v13, v12, 1, 3
    v_xor_b32 v13, v13, v6
    v_lshlrev_b32 v13, 4, v13
    v_lshl_add_u32 v12, v12, 7, v13
    s_add_u32 s33, s32, 4096
    v_add_u32 v44, s33, v12               ; RA[0]
    v_bfe_u32 v13, v4, 1, 3
    v_xor_b32 v13, v13, v6
    v_lshlrev_b32 v13, 4, v13
    v_lshl_add_u32 v12, v4, 7, v13
    v_mov_b32 v14, s32
    v_cmp_eq_u32 vcc, 0, v4
    v_xor_b32 v45, 32, v44
    v_cndmask_b32 v14, v14, 0, vcc
    v_add_u32 v48, v14, v12               ; RB[0]
    v_xor_b32 v46, 64, v44
    v_xor_b32 v47, 96, v44
    v_xor_b32 v49, 32, v48
    v_xor_b32 v50, 64, v48
    v_xor_b32 v51, 96, v48
    s_waitcnt lgkmcnt(0)
    """)
    if 'pwlate' in VAR: pw1()
    stamp(a, 2)
    FR = [68 + 4 * i for i in range(15)] + [40]
    for g in range(4):
        a(f"ds_read_b128 v[{FR[4*g]}:{FR[4*g]+3}], v{44+g}")
        a(f"ds_read_b128 v[{FR[4*g+1]}:{FR[4*g+1]+3}], v{48+g} offset:26880")
        a(f"ds_read_b128 v[{FR[4*g+2]}:{FR[4*g+2]+3}], v{44+g} offset:26880")
        a(f"ds_read_b128 v[{FR[4*g+3]}:{FR[4*g+3]+3}], v{48+g}")
    KA = 16
    for g in range(4):
        AH, BL, AL, BH = FR[4*g:4*g+4]
        a(f"s_waitcnt lgkmcnt({14 - 4*g})")
        a(f"v_mfma_f32_32x32x16_bf16 v[{KA}:{KA+15}], v[{AH}:{AH+3}], v[{BL}:{BL+3}], {'0' if g == 0 else f'v[{KA}:{KA+15}]'}")
        a(f"s_waitcnt lgkmcnt({12 - 4*g})")
        a(f"v_mfma_f32_32x32x16_bf16 v[{KA}:{KA+15}], v[{AL}:{AL+3}], v[{BH}:{BH+3}], v[{KA}:{KA+15}]")
        a(f"v_mfma_f32_32x32x16_bf16 v[{KA}:{KA+15}], v[{AH}:{AH+3}], v[{BH}:{BH+3}], v[{KA}:{KA+15}]")
    a(f"""
    v_lshlrev_b32 v7, 4, v2
    v_add_u32 v7, s32, v7
    v_and_b32 v12, 3, v0
    v_mul_u32_u24 v12, 96, v12
    v_lshrrev_b32 v14, 2, v0
    v_add_u32 v12, v12, v14
    v_lshlrev_b32 v12, 4, v12             ; 16*pos(t)
    s_nop 7
    s_nop 4
    ds_write_b128 v7, v[{KA}:{KA+3}] offset:512
    ds_write_b128 v7, v[{KA+4}:{KA+7}] offset:{512+1024}
    ds_write_b128 v7, v[{KA+8}:{KA+11}] offset:{512+2048}
    s_waitcnt lgkmcnt(0)
    s_barrier
    s_cmp_eq_u32 s3, 3
    s_cbranch_scc1 k1_kg_nored
    ds_read_b128 v[16:19], v5 offset:512
    ds_read_b128 v[20:23], v5 offset:{512+WT}
    ds_read_b128 v[24:27], v5 offset:{512+2*WT}
    ds_read_b128 v[28:31], v5 offset:{512+3*WT}
    s_waitcnt lgkmcnt(0)
    v_add_f32 v16, v16, v20
    v_add_f32 v17, v17, v21
    v_add_f32 v18, v18, v22
    v_add_f32 v19, v19, v23
    v_add_f32 v24, v24, v28
    v_add_f32 v25, v25, v29
    v_add_f32 v26, v26, v30
    v_add_f32 v27, v27, v31
    v_add_f32 v16, v16, v24
    v_add_f32 v17, v17, v25
    v_add_f32 v18, v18, v26
    v_add_f32 v19, v19, v27
    ds_write_b128 v5, v[16:19] offset:{TBL}
    """)
    a("s_branch k1_kg_red")
    a.label("k1_kg_nored")
    a(f"""
    v_mov_b32 v16, 0
    v_mov_b32 v17, 0
    v_mov_b32 v18, 0
    v_mov_b32 v19, 0
    v_and_b32 v20, 3, v2
    v_lshlrev_b32 v20, 4, v20
    s_mul_i32 s23, s20, {XT_RS}
    s_add_u32 s24, s23, {256*XT_RS:#x}
    buffer_store_dwordx4 v[16:19], v20, s[8:11], s23 offen
    {'buffer_store_dwordx4 v[16:19], v20, s[8:11], s24 offen' if N_KG == 256 else ''}
    """)
    a.label("k1_kg_red")
    a(f"""
    s_lshl_b32 s24, s20, 13
    s_waitcnt lgkmcnt(0)
    s_barrier
    """)
    if 'pwend' in VAR: pw1()
    stamp(a, 3)
    for e in range(8):
        a(f"ds_read_b32 v{16+e}, v{60+e} offset:{TBL}")
    a("s_waitcnt lgkmcnt(0)")
    for e in range(0, 8, 2):
        a(f"v_cvt_pk_bf16_f32 v{32+e//2}, v{16+e}, v{17+e}")
    a(f"s_add_u32 s23, s24, 0x1000\nbuffer_store_dwordx4 v[32:35], v5, s[12:15], s24 offen {'' if 'kwb' in VAR else 'sc0 sc1'}")
    for e in range(0, 8, 2):
        a(f"v_lshlrev_b32 v{24+e}, 16, v{32+e//2}")
        a(f"v_and_b32 v{25+e}, s35, v{32+e//2}")
    for e in range(8):
        a(f"v_sub_f32 v{16+e}, v{16+e}, v{24+e}")
    for e in range(0, 8, 2):
        a(f"v_cvt_pk_bf16_f32 v{36+e//2}, v{16+e}, v{17+e}")
    a(f"buffer_store_dwordx4 v[36:39], v5, s[12:15], s23 offen {'' if 'kwb' in VAR else 'sc0 sc1'}")
    stamp_out(a, 0, 4, "k1_done")
    a("s_branch k1_done")

def gen_k2(a, k3=False):
    if not k3:
        a.label("k2_kernel")
        a(f"""
    s_cmp_ge_u32 s2, {N_G1 + N_CV}
    s_cbranch_scc1 k2_done
    v_lshrrev_b32 v1, 6, v0
    v_and_b32 v2, 63, v0              ; lane
    s_load_dwordx2 s[6:7], s[0:1], 112 ; ws
    v_readfirstlane_b32 s3, v1
    {f's_cmp_ge_u32 s2, {N_CV}' if 'cvfirst' in VAR else f's_cmp_lt_u32 s2, {N_G1}'}
    s_cbranch_scc1 {'k2_done' if 'k2_nog1' in VAR else 'k2_gemm'}
    {'s_branch k2_done' if 'k2_nocv' in VAR else ''}
    s_cmp_ge_u32 s2, {N_G1 + N_KG}
    s_cbranch_scc1 k2_cvB
    """)
    a(f"""
    s_load_dwordx2 s[4:5], s[0:1], 64 ; Dskip
    s_load_dwordx2 s[56:57], s[0:1], 88    ; w2
    {'s_add_u32 s20, s2, 256' if k3 else f's_sub_u32 s20, s2, {N_G1}'}         ; d
    v_and_b32 v4, 31, v2                  ; i / j
    v_lshrrev_b32 v6, 5, v2               ; half
    s_and_b32 s21, s20, 0x1fe
    s_lshl_b32 s21, s21, 1
    s_mul_i32 s23, s20, {XT_RS}       ; d*4224
    s_add_u32 s26, s23, 48            ; xn[-8]
    s_lshl_b32 s27, s20, 13           ; d*8192
    v_lshlrev_b32 v5, 4, v0           ; 16*t
    v_lshlrev_b32 v3, 5, v0           ; 32*t
    s_waitcnt lgkmcnt(0)
    s_load_dword s22, s[4:5], s21
    """)
    srd_off(a, 8, 6, 7, XT0_OFF, XT_SZ + 4096)
    srd_off(a, 12, 6, 7, KH_OFF, 0x400000)
    AS = 32
    a(f"""
    buffer_load_dwordx4 v[32:35], v5, s[8:11], s26 offen
    buffer_load_dwordx4 v[36:39], v5, s[8:11], s26 offen offset:16
    s_add_u32 s28, s27, 0x1000
    buffer_load_dwordx4 v[60:63], v5, s[12:15], s27 offen
    buffer_load_dwordx4 v[64:67], v5, s[12:15], s28 offen
    """)
    stamp(a, 0)
    prio2(a, PR[0], PR[3])
    srd_off(a, 16, 6, 7, YT_OFF, 0x200000)
    a(f"""
    v_and_b32 v15, 3, v0
    v_mul_u32_u24 v15, 96, v15
    v_lshrrev_b32 v14, 2, v0
    v_add_u32 v15, v15, v14
    v_lshlrev_b32 v15, 4, v15             ; 16*pos(t)
    v_mov_b32 v20, 0
    v_mov_b32 v21, 0
    v_mov_b32 v22, 0
    v_mov_b32 v23, 0
    s_cmp_eq_u32 s3, 3
    s_cbranch_scc1 k2_ca_zf
    s_cmp_ge_u32 s3, 2
    s_cbranch_scc1 k2_ca_nozero
    ds_write_b128 v15, v[20:23] offset:{KHL+1024}
    ds_write_b128 v15, v[20:23] offset:{KHL+6144+1024}
    s_branch k2_ca_nozero
    """)
    a.label("k2_ca_zf")
    a(f"""
    v_lshrrev_b32 v16, 3, v2
    v_min_u32 v16, 2, v16
    v_lshlrev_b32 v16, 4, v16
    v_and_b32 v17, 7, v2
    v_mov_b32 v18, {PS}
    v_mad_u32_u24 v16, v17, v18, v16
    ds_write_b128 v16, v[20:23]
    """)
    a.label("k2_ca_nozero")
    a(f"""
    s_lshl_b32 s35, s3, 4             ; c_start
    v_lshrrev_b32 v12, 3, v4
    v_add_u32 v12, v12, v6
    v_lshlrev_b32 v12, 4, v12         ; 16*((b>>3)+kg)
    v_and_b32 v13, 7, v4
    v_mov_b32 v14, {PS}
    v_mad_u32_u24 v12, v13, v14, v12
    s_lshl_b32 s36, s35, 5
    v_add_u32 v12, s36, v12           ; vA (tile1 A address at c_start)
    v_mul_u32_u24 v13, 96, v6
    v_sub_u32 v13, v13, v4
    v_add_u32 v13, 31, v13
    v_lshlrev_b32 v13, 4, v13
    s_lshl_b32 s36, s35, 3            ; 16*(c/2)
    s_add_u32 s36, s36, {KHL}
    v_add_u32 v13, s36, v13           ; vB
    """)
    a("s_waitcnt vmcnt(2)")
    stamp(a, 1)
    a(f"ds_write_b128 v5, v[34:37] offset:{3*PS + 48}")
    a(f"ds_write_b128 v5, v[36:39] offset:{7*PS + 48}")
    for k in range(6):
        a(f"v_alignbit_b32 v{40+k}, v{33+k}, v{32+k}, 16")
    a(f"ds_write_b128 v5, v[40:43] offset:{0*PS + 48}")
    a(f"ds_write_b128 v5, v[42:45] offset:{4*PS + 48}")
    for k in range(6):
        a(f"v_mov_b32 v{48+k}, v{33+k}")
    a(f"ds_write_b128 v5, v[48:51] offset:{1*PS + 48}")
    a(f"ds_write_b128 v5, v[50:53] offset:{5*PS + 48}")
    for k in range(6):
        a(f"v_alignbit_b32 v{54+k}, v{34+k}, v{33+k}, 16")
    a(f"ds_write_b128 v5, v[54:57] offset:{2*PS + 48}")
    a(f"ds_write_b128 v5, v[56:59] offset:{6*PS + 48}")
    for k in range(4):
        a(f"v_mov_b32 v{8+k}, v{36+k}")
    a(f"""
    s_waitcnt vmcnt(1)
    ds_write_b128 v15, v[60:63] offset:{KHL}
    s_waitcnt vmcnt(0)
    ds_write_b128 v15, v[64:67] offset:{KHL+6144}
    """)
    stamp(a, 2)
    stamp(a, 3)
    if not k3:
        a("s_branch k2_cv_join")
        a.label("k2_cvB")
        a(f"""
        s_load_dwordx2 s[4:5], s[0:1], 64 ; Dskip
        s_load_dwordx8 s[40:47], s[0:1], 8
        s_load_dwordx4 s[48:51], s[0:1], 40
        s_load_dwordx2 s[52:53], s[0:1], 56    ; log_dt
        s_load_dwordx2 s[56:57], s[0:1], 88    ; w2
        s_load_dwordx2 s[90:91], s[0:1], 80    ; w1
        s_sub_u32 s20, s2, {0 if 'cvfirst' in VAR else N_G1}         ; d
        s_lshl_b32 s27, s20, 8                ; d*256 bytes
        s_lshl_b32 s28, s3, 6
        s_add_u32 s27, s27, s28
        v_and_b32 v4, 31, v2                  ; i / j
        v_lshrrev_b32 v6, 5, v2               ; half
        v_lshlrev_b32 v7, 1, v4
        v_add_u32 v7, s27, v7
        s_lshl_b32 s27, s20, 1
        v_mov_b32 v14, s27                    ; 2*d
        s_waitcnt lgkmcnt(0)
        global_load_ushort v80, v7, s[40:41]
        global_load_ushort v81, v7, s[42:43]
        global_load_ushort v82, v7, s[44:45]
        global_load_ushort v83, v7, s[46:47]
        global_load_ushort v84, v7, s[48:49]
        global_load_ushort v85, v7, s[50:51]
        global_load_ushort v86, v14, s[52:53]
        s_and_b32 s21, s20, 0x1fe
        s_lshl_b32 s21, s21, 1
        s_load_dword s22, s[4:5], s21
        """)
        stamp(a, 0)
        prio2(a, PR[0], PR[3])
        srd_off(a, 8, 6, 7, XT0_OFF, XT_SZ + 4096)
        srd_off(a, 16, 6, 7, YT_OFF, 0x200000)
        AS = 32
        srd_off(a, 12, 6, 7, TB_OFF, 8192)
        a(f"""
        s_mul_i32 s23, s20, {XT_RS}       ; d*4224
        s_add_u32 s26, s23, 48            ; xn[-8]
        v_lshlrev_b32 v5, 4, v0           ; 16*t
        v_lshlrev_b32 v3, 5, v0           ; 32*t
        buffer_load_dwordx4 v[60:63], v3, s[12:15], 0 offen
        buffer_load_dwordx4 v[64:67], v3, s[12:15], 0 offen offset:16
        """)
        TBL = KHL + 12288
        WT = 6656
        P = [None] + [92 + 2 * i for i in range(7)]
        G1, G2, G3, G6 = 106, 108, 110, 112
        A = [114, 116, 118, 120]
        M1, M3 = 122, 124
        AR = 40
        NA = [84, 85, 86, 87]
        def cmul2(d, x, y, d2, x2, y2):
            a(f"""
            v_mul_f32 v{d}, v{x}, v{y}
            v_mul_f32 v{d+1}, v{x}, v{y+1}
            v_mul_f32 v{d2}, v{x2}, v{y2}
            v_mul_f32 v{d2+1}, v{x2}, v{y2+1}
            v_fma_f32 v{d}, -v{x+1}, v{y+1}, v{d}
            v_fmac_f32 v{d+1}, v{x+1}, v{y}
            v_fma_f32 v{d2}, -v{x2+1}, v{y2+1}, v{d2}
            v_fmac_f32 v{d2+1}, v{x2+1}, v{y2}
            """)
        a(f"""
        s_mov_b32 s54, 0
        s_mov_b32 s55, -1
        s_mul_i32 s32, s3, {WT}
        v_lshlrev_b32 v12, 12, v6
        v_add_u32 v12, s32, v12
        v_and_b32 v13, 3, v4
        v_lshl_add_u32 v12, v13, 2, v12
        v_lshrrev_b32 v13, 2, v4
        v_lshl_add_u32 v12, v13, 4, v12
        """)
        for c in range(16):
            a(f"v_xor_b32 v{AR+c}, {16*((c>>1)&7) + 128*(c&1)}, v12")
        a(f"""
        v_mov_b32 v13, s32
        v_cndmask_b32 v13, v13, 0, s[54:55]
        v_sub_u32 v56, v12, v13
        v_mov_b32 v14, 0x41000000             ; 8
        v_cndmask_b32 v12, v14, 1.0, s[54:55] ; c1
        v_cndmask_b32 v13, v14, -1.0, s[54:55] ; c1 (phase)
        v_mov_b32 v14, 0x42800000             ; 64
        v_mov_b32 v15, 0x43800000             ; 256
        v_cndmask_b32 v57, v14, v15, s[54:55] ; c2
        v_cndmask_b32 v58, v14, -v15, s[54:55] ; c2 (phase)
        s_mov_b32 s33, 0x3fb8aa3b             ; log2e
        s_mov_b32 s34, 0x3e22f983             ; 1/(2pi)
        s_mov_b32 s35, 0xffff0000
        s_mov_b32 s36, 0x0000bf80
        s_mov_b32 s37, 0x80000000
        s_waitcnt vmcnt(2)
        """)
        if 'l2w1' in VAR:
            srd(a, 92, 90, 91, 512 * 2752)
            a("""
            s_sub_u32 s96, s20, 256
            s_lshr_b32 s96, s96, 3
            s_mul_i32 s96, s96, 44032
            v_lshl_add_u32 v132, v0, 4, s96
            """)
            for i in range(11):
                a(f"s_movk_i32 s96, {i*4096:#x}" if i < 8 else f"s_mov_b32 s96, {i*4096:#x}")
                a("buffer_load_dwordx4 v[128:131], v132, s[92:95], s96 offen")
        stamp(a, 1)
        a(f"""
        v_lshlrev_b32 v86, 16, v86
        v_mul_f32 v86, s33, v86
        v_exp_f32 v86, v86
        v_lshlrev_b32 v80, 16, v80
        v_lshlrev_b32 v81, 16, v81
        v_lshlrev_b32 v82, 16, v82
        v_lshlrev_b32 v83, 16, v83
        v_lshlrev_b32 v84, 16, v84
        v_lshlrev_b32 v85, 16, v85
        v_cvt_pk_bf16_f32 v86, v86, v86
        v_and_b32 v86, s35, v86               ; dt
        v_mul_f32 v80, v86, v80               ; lr
        v_mul_f32 v81, v86, v81               ; li
        v_mul_f32 v82, v86, v82               ; dBr
        v_mul_f32 v83, v86, v83               ; dBi
        v_mul_f32 v88, s33, v80               ; lr2
        v_mul_f32 v89, s34, v81               ; lif
        v_mul_f32 v68, v88, v12
        v_mul_f32 v69, v89, v13
        v_mul_f32 v70, v88, v57
        v_mul_f32 v71, v89, v58
        v_exp_f32 v68, v68
        v_fract_f32 v69, v69
        v_exp_f32 v70, v70
        v_fract_f32 v71, v71
        v_cos_f32 v{P[1]}, v69
        v_sin_f32 v{P[1]+1}, v69
        v_cos_f32 v{G1}, v71
        v_sin_f32 v{G1+1}, v71
        v_mul_f32 v90, v84, v82
        v_fma_f32 v90, -v85, v83, v90         ; CBr
        v_mul_f32 v91, v84, v83
        v_fma_f32 v91, v85, v82, v91          ; CBi
        v_mul_f32 v{P[1]}, v68, v{P[1]}
        v_mul_f32 v{P[1]+1}, v68, v{P[1]+1}
        v_mul_f32 v{G1}, v70, v{G1}
        v_mul_f32 v{G1+1}, v70, v{G1+1}
        v_cndmask_b32 v{A[0]}, 1.0, v90, s[54:55]
        v_cndmask_b32 v{A[0]+1}, 0, -v91, s[54:55]
        """)
        cmul2(P[2], P[1], P[1], G2, G1, G1)
        cmul2(P[3], P[2], P[1], G3, G2, G1)
        cmul2(P[4], P[2], P[2], A[1], A[0], G1)
        cmul2(P[6], P[3], P[3], G6, G3, G3)
        cmul2(P[5], P[4], P[1], A[2], A[0], G2)
        cmul2(P[7], P[4], P[3], A[3], A[0], G3)
        a(f"""
        v_cndmask_b32 v{M1}, v{P[1]}, v{G3}, s[54:55]
        v_cndmask_b32 v{M1+1}, v{P[1]+1}, v{G3+1}, s[54:55]
        v_cndmask_b32 v{M3}, v{P[3]}, v{G6}, s[54:55]
        v_cndmask_b32 v{M3+1}, v{P[3]+1}, v{G6+1}, s[54:55]
        v_xor_b32 v{NA[0]}, s37, v{A[0]+1}
        v_xor_b32 v{NA[1]}, s37, v{A[1]+1}
        v_xor_b32 v{NA[2]}, s37, v{A[2]+1}
        v_xor_b32 v{NA[3]}, s37, v{A[3]+1}
        """)
        def src_of(m, b):
            if b == 0: return None
            if m > 0 and b == 1: return M1
            if m > 0 and b == 3: return M3
            return P[b]
        def pair(p):
            pr = []
            for k in range(2):
                st_ = 2 * p + k
                m, b = KSTEPS[st_]
                pr.append((st_, m, b, 68 + 4 * ((p & 1) * 2 + k)))
            return pr
        def stA(p):
            n = 0
            for (st_, m, b, T) in pair(p):
                y = src_of(m, b)
                if y is not None:
                    a(f"v_mul_f32 v{T}, v{A[m]}, v{y}")
                    a(f"v_mul_f32 v{T+1}, v{A[m]}, v{y+1}"); n += 2
            for (st_, m, b, T) in pair(p):
                y = src_of(m, b)
                if y is not None:
                    a(f"v_fmac_f32 v{T}, v{NA[m]}, v{y+1}")
                    a(f"v_fmac_f32 v{T+1}, v{A[m]+1}, v{y}"); n += 2
            return 4
        def stB(p):
            for (st_, m, b, T) in pair(p):
                V = T if b else A[m]
                a(f"v_cvt_pk_bf16_f32 v{T+2}, v{V}, v{V+1}")
            for k, (st_, m, b, T) in enumerate(pair(p)):
                a(f"v_lshlrev_b32 v{88+2*k}, 16, v{T+2}")
                a(f"v_and_b32 v{89+2*k}, s35, v{T+2}")
            for k, (st_, m, b, T) in enumerate(pair(p)):
                V = T if b else A[m]
                a(f"v_sub_f32 v{T}, v{V}, v{88+2*k}")
                a(f"v_sub_f32 v{T+1}, v{V+1}, v{89+2*k}")
        def stC(p):
            for (st_, m, b, T) in pair(p):
                a(f"v_cvt_pk_bf16_f32 v{T+3}, v{T}, v{T+1}")
            for (st_, m, b, T) in pair(p):
                if st_ == 21:
                    a("s_mov_b32 exec_hi, 0")
                ar = 56 if st_ == 0 else AR + (st_ & 15)
                a(f"ds_write2st64_b32 v{ar}, v{T+2}, v{T+3} offset0:{st_>>1} offset1:{(st_>>1)+105}")
        stA(0); stB(0)
        for p in range(1, 17):
            if p < 16: stA(p)
            stC(p - 1)
            if p < 16: stB(p)
        a(f"""
        s_mov_b64 exec, -1
        v_min_u32 v12, 20, v4
        v_bfe_u32 v13, v12, 1, 3
        v_xor_b32 v13, v13, v6
        v_lshlrev_b32 v13, 4, v13
        v_lshl_add_u32 v12, v12, 7, v13
        s_add_u32 s33, s32, 4096
        v_add_u32 v44, s33, v12               ; RA[0]
        v_bfe_u32 v13, v4, 1, 3
        v_xor_b32 v13, v13, v6
        v_lshlrev_b32 v13, 4, v13
        v_lshl_add_u32 v12, v4, 7, v13
        v_mov_b32 v14, s32
        v_cmp_eq_u32 vcc, 0, v4
        v_xor_b32 v45, 32, v44
        v_cndmask_b32 v14, v14, 0, vcc
        v_add_u32 v48, v14, v12               ; RB[0]
        v_xor_b32 v46, 64, v44
        v_xor_b32 v47, 96, v44
        v_xor_b32 v49, 32, v48
        v_xor_b32 v50, 64, v48
        v_xor_b32 v51, 96, v48
        s_waitcnt lgkmcnt(0)
        """)
        stamp(a, 2)
        FR = [68 + 4 * i for i in range(15)] + [40]
        for g in range(4):
            a(f"ds_read_b128 v[{FR[4*g]}:{FR[4*g]+3}], v{44+g}")
            a(f"ds_read_b128 v[{FR[4*g+1]}:{FR[4*g+1]+3}], v{48+g} offset:26880")
            a(f"ds_read_b128 v[{FR[4*g+2]}:{FR[4*g+2]+3}], v{44+g} offset:26880")
            a(f"ds_read_b128 v[{FR[4*g+3]}:{FR[4*g+3]+3}], v{48+g}")
        KA = 16
        for g in range(4):
            AH, BL, AL, BH = FR[4*g:4*g+4]
            a(f"s_waitcnt lgkmcnt({14 - 4*g})")
            a(f"v_mfma_f32_32x32x16_bf16 v[{KA}:{KA+15}], v[{AH}:{AH+3}], v[{BL}:{BL+3}], {'0' if g == 0 else f'v[{KA}:{KA+15}]'}")
            a(f"s_waitcnt lgkmcnt({12 - 4*g})")
            a(f"v_mfma_f32_32x32x16_bf16 v[{KA}:{KA+15}], v[{AL}:{AL+3}], v[{BH}:{BH+3}], v[{KA}:{KA+15}]")
            a(f"v_mfma_f32_32x32x16_bf16 v[{KA}:{KA+15}], v[{AH}:{AH+3}], v[{BH}:{BH+3}], v[{KA}:{KA+15}]")
        a(f"""
        v_lshlrev_b32 v7, 4, v2
        v_add_u32 v7, s32, v7
        v_and_b32 v12, 3, v0
        v_mul_u32_u24 v12, 96, v12
        v_lshrrev_b32 v14, 2, v0
        v_add_u32 v12, v12, v14
        v_lshlrev_b32 v12, 4, v12             ; 16*pos(t)
        s_nop 7
        s_nop 4
        ds_write_b128 v7, v[{KA}:{KA+3}] offset:512
        ds_write_b128 v7, v[{KA+4}:{KA+7}] offset:{512+1024}
        ds_write_b128 v7, v[{KA+8}:{KA+11}] offset:{512+2048}
        s_waitcnt lgkmcnt(0)
        s_barrier
        s_cmp_eq_u32 s3, 3
        s_cbranch_scc1 k2_cv_nored
        ds_read_b128 v[16:19], v5 offset:512
        ds_read_b128 v[20:23], v5 offset:{512+WT}
        ds_read_b128 v[24:27], v5 offset:{512+2*WT}
        ds_read_b128 v[28:31], v5 offset:{512+3*WT}
        s_waitcnt lgkmcnt(0)
        v_add_f32 v16, v16, v20
        v_add_f32 v17, v17, v21
        v_add_f32 v18, v18, v22
        v_add_f32 v19, v19, v23
        v_add_f32 v24, v24, v28
        v_add_f32 v25, v25, v29
        v_add_f32 v26, v26, v30
        v_add_f32 v27, v27, v31
        v_add_f32 v16, v16, v24
        v_add_f32 v17, v17, v25
        v_add_f32 v18, v18, v26
        v_add_f32 v19, v19, v27
        ds_write_b128 v5, v[16:19] offset:{TBL}
        """)
        a.label("k2_cv_nored")
        a("s_waitcnt vmcnt(0)")
        a(f"""
        s_waitcnt lgkmcnt(0)
        s_barrier
        """)
        stamp(a, 3)
        for e in range(8):
            a(f"ds_read_b32 v{16+e}, v{60+e} offset:{TBL}")
        srd_off(a, 12, 6, 7, KH_OFF, 0x400000)
        srd(a, 56, 56, 57, 1376 * 1024)
        a(f"""
        s_lshl_b32 s36, s20, 12
        v_add_u32 v72, s36, v5
        buffer_load_dwordx4 v[68:71], v72, s[56:59], 0 offen
        s_lshl_b32 s24, s20, 13
        s_waitcnt lgkmcnt(0)
        """)
        for e in range(0, 8, 2):
            a(f"v_cvt_pk_bf16_f32 v{32+e//2}, v{16+e}, v{17+e}")
        for e in range(0, 8, 2):
            a(f"v_lshlrev_b32 v{24+e}, 16, v{32+e//2}")
            a(f"v_and_b32 v{25+e}, s35, v{32+e//2}")
        for e in range(8):
            a(f"v_sub_f32 v{16+e}, v{16+e}, v{24+e}")
        for e in range(0, 8, 2):
            a(f"v_cvt_pk_bf16_f32 v{36+e//2}, v{16+e}, v{17+e}")
        a(f"""
        s_add_u32 s23, s24, 0x1000
        buffer_store_dwordx4 v[32:35], v5, s[12:15], s24 offen {'' if 'kwb' in VAR else 'sc0 sc1'}
        buffer_store_dwordx4 v[36:39], v5, s[12:15], s23 offen {'' if 'kwb' in VAR else 'sc0 sc1'}
        """)
        stamp_out(a, 1, 4, "k2_done")
        a("s_branch k2_done")
    a.label("k2_cv_join")
    ACC1, ACC2, ACC0, ACC3 = 16, 16, 48, 48
    first = set()
    F = [80, 104]
    a("""
    s_waitcnt vmcnt(0) lgkmcnt(0)
    s_barrier
    """)
    stamp(a, 4)
    prio2(a, PR[1], PR[4])
    if 'nopf' not in VAR and 'pf1' not in VAR and not k3:
        srd(a, 56, 56, 57, 1376 * 1024)
        if 'e1' in VAR:
            a("""
            s_lshr_b32 s36, s20, 3
            s_mul_i32 s36, s36, 22016
            v_add_u32 v72, s36, v5
            """)
            for j in range(1, 6):
                a(f"v_add_u32 v{72+j}, {j*4096:#x}, v72")
            for j in range(6):
                a(f"buffer_load_dwordx4 v[68:71], v{72 + j}, s[56:59], 0 offen")
        else:
            a("""
            s_lshl_b32 s36, s20, 12
            v_add_u32 v72, s36, v5
            buffer_load_dwordx4 v[68:71], v72, s[56:59], 0 offen
            """)
    if k3 and 'l2w2' in VAR:
        srd(a, 56, 56, 57, 1376 * 1024)
        a("""
        s_lshr_b32 s36, s2, 3
        s_mul_i32 s36, s36, 44032
        v_add_u32 v132, s36, v5
        """)
        for i in range(11):
            a(f"s_mov_b32 s36, {i*4096:#x}")
            a("buffer_load_dwordx4 v[128:131], v132, s[56:59], s36 offen")
    def mf(acc, A, B):
        c = f"v[{acc}:{acc+15}]" if acc in first else "0"
        first.add(acc)
        a(f"v_mfma_f32_32x32x16_bf16 v[{acc}:{acc+15}], v[{A}:{A+3}], v[{B}:{B+3}], {c}")
    def rd(dst, base, off):
        a(f"ds_read_b128 v[{dst}:{dst+3}], v{base} offset:{off}")
    def boff(c):
        return 16 * (c // 2) + 3072 * (c & 1)
    def ch_reads(c, f):
        rd(f, 12, AS * c)
        rd(f + 4, 13, boff(c))
        rd(f + 8, 13, boff(c + 64))
        rd(f + 12, 13, boff(c) + 6144)
        rd(f + 16, 13, boff(c + 64) + 6144)
        rd(f + 20, 12, AS * (c + 64))
    def ch_mfma(f, last):
        base = 0 if last else 6
        a(f"s_waitcnt lgkmcnt({base + 4})")
        mf(ACC1, f, f + 4)
        a(f"s_waitcnt lgkmcnt({base + 3})")
        mf(ACC0, f, f + 8)
        a(f"s_waitcnt lgkmcnt({base + 2})")
        mf(ACC2, f, f + 12)
        a(f"s_waitcnt lgkmcnt({base + 1})")
        mf(ACC3, f, f + 16)
        a(f"s_waitcnt lgkmcnt({base})")
        mf(ACC1, f + 20, f + 8)
        mf(ACC2, f + 20, f + 16)
    ch_reads(0, F[0])
    for c in range(16):
        if c < 15:
            ch_reads(c + 1, F[(c + 1) & 1])
        ch_mfma(F[c & 1], c == 15)
    a.label("k2_cv_fin")
    stamp(a, 5)
    prio2(a, PR[2], PR[5])
    a(f"""
    s_waitcnt lgkmcnt(0)
    s_nop 7
    s_nop 7
    """)
    a(f"""
    s_barrier
    v_mul_u32_u24 v14, 144, v4
    v_lshl_add_u32 v14, v6, 4, v14     ; a_l*144 + 16h
    s_mul_i32 s36, s3, 4608
    v_add_u32 v14, s36, v14
    """)
    for q in range(4):
        a(f"ds_write_b128 v14, v[{ACC1+4*q}:{ACC1+4*q+3}] offset:{32*q}")
    for q in range(4):
        a(f"ds_write_b128 v14, v[{ACC0+4*q}:{ACC0+4*q+3}] offset:{32*q + 4*4608}")
    a(f"""
    v_lshrrev_b32 v14, 2, v0
    v_and_b32 v14, 31, v14
    v_mul_u32_u24 v14, 144, v14
    v_and_b32 v15, 3, v0
    v_lshl_add_u32 v14, v15, 5, v14    ; a_l*144 + sub*32
    s_cmp_lt_u32 s3, 2
    s_cselect_b32 s36, {4*4608}, 0
    v_add_u32 v14, s36, v14
    s_waitcnt lgkmcnt(0)
    s_barrier
    """)
    for s in range(4):
        a(f"ds_read_b128 v[{16+8*s}:{19+8*s}], v14 offset:{s*4608}")
        a(f"ds_read_b128 v[{20+8*s}:{23+8*s}], v14 offset:{s*4608+16}")
    a("s_waitcnt lgkmcnt(0)")
    for i in range(8):
        a(f"v_add_f32 v{16+i}, v{16+i}, v{40+i}")
    a(f"""
    s_waitcnt lgkmcnt(0)
    s_and_b32 s21, s20, 1
    s_lshl_b32 s21, s21, 4
    s_lshr_b32 s22, s22, s21
    s_lshl_b32 s22, s22, 16
    s_mov_b32 s23, 0xffff0000
    s_lshl_b32 s24, s20, 12
    """)
    for i in range(8):
        a(f"v_add_f32 v{24+i}, v{24+i}, v{32+i}")
    for i in range(8):
        a(f"v_add_f32 v{16+i}, v{16+i}, v{24+i}")
    for j in range(4):
        a(f"""
        v_cvt_pk_bf16_f32 v24, v{16+2*j}, v{17+2*j}
        v_lshlrev_b32 v25, 16, v{8+j}
        v_and_b32 v26, s23, v{8+j}
        v_mul_f32 v25, s22, v25
        v_mul_f32 v26, s22, v26
        v_cvt_pk_bf16_f32 v27, v25, v26
        v_lshlrev_b32 v25, 16, v24
        v_and_b32 v26, s23, v24
        v_lshlrev_b32 v28, 16, v27
        v_and_b32 v29, s23, v27
        v_add_f32 v25, v25, v28
        v_add_f32 v26, v26, v29
        v_cvt_pk_bf16_f32 v{32+j}, v25, v26
        """)
    a(f"""
    buffer_store_dwordx4 v[32:35], v5, s[16:19], s24 offen sc0 sc1
    """)
    if k3:
        srd_off(a, 28, 6, 7, TB_OFF, 0x10000)
        a(f"""
        s_lshr_b32 s24, s2, 6
        s_lshl_b32 s24, s24, 8
        s_add_u32 s24, s24, 0x4000
        v_mov_b32 v16, 1
        v_mov_b32 v17, 0
        s_waitcnt vmcnt(0)
        s_barrier
        s_cmp_lg_u32 s3, 0
        s_cbranch_scc1 k3_done
        s_mov_b64 exec, 1
        buffer_atomic_add v16, v17, s[28:31], s24 offen sc0 sc1
        s_mov_b64 exec, -1
        s_lshr_b32 s24, s2, 6
        s_lshl_b32 s24, s24, 12
        s_add_u32 s24, s24, 0x8000
        v_lshlrev_b32 v17, 7, v2
        v_mov_b32 v18, 1
        s_waitcnt vmcnt(0)
        v_readfirstlane_b32 s25, v16
        s_cmp_lg_u32 s25, 63
        s_cbranch_scc1 k2_notlast
        s_mov_b32 exec_hi, 0
        buffer_store_dword v18, v17, s[28:31], s24 offen sc0 sc1
        s_mov_b32 exec_hi, -1
        """)
        a.label("k2_notlast")
        stamp_out(a, 2, 6, "k3_done")
        a("s_branch k3_done")
        return
    stamp_out(a, 1, 6, "k2_done")
    a("s_branch k2_done")

    a.label("k2_gemm")
    a(f"""
    s_load_dwordx2 s[4:5], s[0:1], 80 ; w1
    s_and_b32 s20, s2, 15             ; mt
    s_sub_u32 s21, s2, {N_CV if 'cvfirst' in VAR else 0}
    s_lshr_b32 s21, s21, 4             ; nt
    s_waitcnt lgkmcnt(0)
    """)
    stamp(a, 0)
    prio2(a, PR[6], PR[6])
    srd(a, 8, 6, 7, 0x200000)
    srd(a, 12, 4, 5, 512 * 2752)
    srd_off(a, 16, 6, 7, H_OFF, H_SZ)
    ST = 6144
    GD = int(os.environ.get('GD', '6'))
    a(f"""
    s_lshl_b32 s22, s3, 15
    v_lshl_add_u32 v3, v2, 4, s22
    s_mul_i32 s22, s3, 96
    v_add_u32 v4, s22, v2              ; P = 96w + l
    v_add_u32 v5, 64, v4
    s_movk_i32 s23, 5462               ; 65536/12
    s_movk_i32 s24, 2752
    v_mul_u32_u24 v6, s23, v4
    v_lshrrev_b32 v6, 16, v6           ; row
    v_mul_u32_u24 v7, 12, v6
    v_sub_u32 v4, v4, v7               ; cc
    v_lshlrev_b32 v4, 4, v4
    v_mad_u32_u24 v4, v6, s24, v4      ; voffB0
    v_mul_u32_u24 v6, s23, v5
    v_lshrrev_b32 v6, 16, v6
    v_mul_u32_u24 v7, 12, v6
    v_sub_u32 v5, v5, v7
    v_lshlrev_b32 v5, 4, v5
    v_mad_u32_u24 v5, v6, s24, v5      ; voffB1
    s_lshl_b32 s25, s20, 17
    s_mul_i32 s26, s21, 192
    s_lshr_b32 s36, s20, 3
    s_lshl_b32 s36, s36, {os.environ.get('RM', '3')}
    s_add_u32 s36, s36, s21
    s_and_b32 s36, s36, {0 if 'norot' in VAR else 15}
    s_mul_i32 s28, s3, 1536
    s_mov_b64 s[30:31], -1
    s_mov_b32 s32, -1
    s_mov_b32 s33, 0
    """)
    def dma(kc):
        st = (kc % 3) * ST
        a(f"""
        s_add_u32 m0, s27, {st}
        s_add_u32 s29, s25, {kc*64 + 16384}
        buffer_load_dwordx4 v3, s[8:11], s25 offen offset:{0} lds
        s_add_u32 m0, s27, {st + 1024}
        s_nop 0
        buffer_load_dwordx4 v3, s[8:11], s29 offen lds
        s_add_u32 m0, s28, {st}
        s_nop 0
        buffer_load_dwordx4 v4, s[12:15], s26 offen lds
        s_add_u32 m0, s28, {st + 1024}
        s_mov_b64 exec, s[32:33]
        buffer_load_dwordx4 v5, s[12:15], s26 offen lds
        s_mov_b64 exec, s[30:31]
        s_add_u32 s25, s25, 64
        s_add_u32 s26, s26, {32*2752}
        """)
    a(f"""
    v_and_b32 v6, 31, v2               ; m
    v_lshrrev_b32 v7, 5, v2            ; kg / h
    s_lshl_b32 s22, s3, 5
    v_add_u32 v8, s22, v6
    v_lshlrev_b32 v8, 6, v8            ; row*64
    v_lshrrev_b32 v9, 2, v6
    v_and_b32 v9, 3, v9                ; (row>>2)&3
    v_xor_b32 v10, v9, v7
    v_lshl_add_u32 v10, v10, 4, v8     ; vAr0
    v_xor_b32 v11, 2, v9
    v_xor_b32 v11, v11, v7
    v_lshl_add_u32 v11, v11, 4, v8
    v_lshlrev_b32 v12, 3, v7           ; 8*kg
    v_bfe_u32 v13, v2, 2, 2
    v_add_u32 v12, v12, v13
    v_mul_u32_u24 v12, 192, v12
    v_bfe_u32 v13, v2, 4, 1
    v_lshl_add_u32 v12, v13, 5, v12    ; + 32*((l>>4)&1)
    v_and_b32 v13, 3, v2
    v_lshl_add_u32 v12, v13, 3, v12    ; + 8*(l&3)
    """)
    ACC = 16
    for i in range(48):
        a(f"v_mov_b32 v{ACC+i}, 0")
    return_dma = dma
    def dma2(kc):
        st = (kc % GD) * ST
        a(f"""
        s_lshl_b32 s37, s36, 11
        s_add_u32 s37, s37, s25
        s_mul_i32 s38, s36, {32*2752}
        buffer_load_dwordx4 v[{112+8*(kc%(GD+1))}:{115+8*(kc%(GD+1))}], v3, s[8:11], s37 offen
        buffer_load_dwordx4 v[{116+8*(kc%(GD+1))}:{119+8*(kc%(GD+1))}], v3, s[8:11], s37 offen offset:1024
        s_add_u32 m0, s28, {st}
        s_add_u32 s38, s38, s26
        buffer_load_dwordx4 v4, s[12:15], s38 offen lds
        s_add_u32 m0, s28, {st + 1024}
        s_mov_b64 exec, s[32:33]
        buffer_load_dwordx4 v5, s[12:15], s38 offen lds
        s_mov_b64 exec, s[30:31]
        s_add_u32 s36, s36, 1
        s_and_b32 s36, s36, 15
        """)
    for kc in range(GD): dma2(kc)
    FB = 64
    def breads(kc):
        st = (kc % GD) * ST
        for ks in range(2):
            for j in range(3):
                b = FB + 24 * (kc & 1) + 12 * ks + 4 * j
                off = st + ks * 16 * 192 + 64 * j
                a(f"ds_read_b64_tr_b16 v[{b}:{b+1}], v12 offset:{off}")
                a(f"ds_read_b64_tr_b16 v[{b+2}:{b+3}], v12 offset:{off + 4*192}")
    a(f"s_waitcnt vmcnt({4*(GD-1)})")
    a("s_barrier")
    stamp(a, 1)
    breads(0)
    for kc in range(16):
        if kc < 15:
            a(f"s_waitcnt vmcnt({4 * (min(kc + GD - 1, 15) - (kc + 1))}) lgkmcnt(0)")
            a("s_barrier")
            if kc + GD < 16:
                dma2(kc + GD)
            breads(kc + 1)
        else:
            a("s_waitcnt lgkmcnt(0)")
        FA = 112 + 8 * (kc % (GD + 1))
        for ks in range(2):
            for j in range(3):
                b = FB + 24 * (kc & 1) + 12 * ks + 4 * j
                a(f"v_mfma_f32_32x32x16_bf16 v[{ACC+16*j}:{ACC+16*j+15}], v[{b}:{b+3}], v[{FA+4*ks}:{FA+4*ks+3}], v[{ACC+16*j}:{ACC+16*j+15}]")
    stamp(a, 2)
    prio2(a, PR[7], PR[7])
    a(f"""
    s_barrier
    s_lshl_b32 s22, s3, 5
    v_add_u32 v8, s22, v6
    v_mul_u32_u24 v8, 208, v8
    v_lshl_add_u32 v8, v7, 3, v8       ; row*208 + 8h
    s_nop 7
    s_nop 3
    """)
    for j in range(3):
        for q in range(4):
            r = ACC + 16 * j + 4 * q
            a(f"""
            v_max_f32 v{r}, 0, v{r}
            v_max_f32 v{r+1}, 0, v{r+1}
            v_max_f32 v{r+2}, 0, v{r+2}
            v_max_f32 v{r+3}, 0, v{r+3}
            v_cvt_pk_bf16_f32 v{r}, v{r}, v{r+1}
            v_cvt_pk_bf16_f32 v{r+1}, v{r+2}, v{r+3}
            ds_write_b64 v8, v[{r}:{r+1}] offset:{64*j + 16*q}
            """)
    a(f"""
    s_mul_i32 s22, s3, {32*208}
    s_lshl_b32 s25, s20, 2
    s_add_u32 s25, s25, s3
    s_mul_i32 s25, s25, {H_RB}
    s_mul_i32 s26, s21, 6144
    s_add_u32 s25, s25, s26
    v_and_b32 v10, 31, v2
    v_mul_u32_u24 v12, 208, v10
    v_lshrrev_b32 v9, 5, v2
    v_lshl_add_u32 v12, v9, 4, v12
    v_add_u32 v12, s22, v12
    v_lshlrev_b32 v11, 4, v2
    s_mul_i32 s26, s21, 96
    s_movk_i32 s27, {H_RS}
    s_movk_i32 s28, 208
    s_mov_b32 s29, 0x40000000
    s_movk_i32 s34, 1376
    s_movk_i32 s35, 1408
    s_waitcnt lgkmcnt(0)
    """)
    for i in range(6):
        a(f"""
        ds_read_b128 v[{64+4*i}:{67+4*i}], v12 offset:{32*i}
        v_add_u32 v{90+i}, {1024*i}, v11
        v_add_u32 v10, {2*i}, v9
        v_lshl_add_u32 v{96+i}, v10, 3, s26 ; col
        """)
    for i in range(6):
        a(f"""
        s_waitcnt lgkmcnt({5-i})
        v_cmp_gt_u32 vcc, s34, v{96+i}
        v_mov_b32 v9, s29
        v_cndmask_b32 v{64+4*i}, 0, v{64+4*i}, vcc
        v_cndmask_b32 v{65+4*i}, 0, v{65+4*i}, vcc
        v_cndmask_b32 v{66+4*i}, 0, v{66+4*i}, vcc
        v_cndmask_b32 v{67+4*i}, 0, v{67+4*i}, vcc
        v_cmp_gt_u32 vcc, s35, v{96+i}
        s_nop 1
        v_cndmask_b32 v{90+i}, v9, v{90+i}, vcc
        buffer_store_dwordx4 v[{64+4*i}:{67+4*i}], v{90+i}, s[16:19], s25 offen sc0 sc1
        """)
    stamp_out(a, 1, 3, "k2_done")
    a.label("k2_done")
    a("s_endpgm")

def add(kernels, launches):
    a = Asm()
    gen_k2(a)
    kernels.append(("k2_kernel", a.text(), 120 + 8 * int(os.environ.get("GD", "6"))))
    launches.append(f"; @launch kernel=k2_kernel grid=({N_G1+N_CV},1,1) block=(256,1,1) lds={K2_LDS}")
    try:
        import gen3
        gen3.add(kernels, launches)
    except ImportError:
        pass
```

```python
import sys, re, os
VAR = os.environ.get('VAR', '').split(',')

NAME = "parallel_sum__ssm_conv_s4__dense_activation_relu__prompt"

XN_OFF  = 0x000000
XT_RS   = 4224
XT0_OFF = 0x200000
XT_SZ   = 512 * XT_RS
XT1_OFF = XT0_OFF + XT_SZ
KH_OFF  = XT1_OFF + XT_SZ
KL_OFF  = KH_OFF + 0x200000
YT_OFF  = KL_OFF + 0x200000
H_OFF   = YT_OFF + 0x200000
H_RS    = 2816
H_SZ    = 2048 * H_RS
WS_END  = H_OFF + H_SZ
TB_OFF  = XT1_OFF + 0x10000
H_RB    = 90112

class Asm:
    def __init__(self):
        self.lines = []
    def __call__(self, s):
        for l in s.strip("\n").split("\n"):
            m = re.search(r"offset:(\d+)", l)
            if m and ("buffer_" in l or "global_" in l) and int(m.group(1)) > 4095:
                raise ValueError("offset too large: " + l)
            if m and "ds_" in l and int(m.group(1)) > 65535:
                raise ValueError("ds offset too large: " + l)
            self.lines.append("    " + l.strip() if l.strip() and not l.strip().endswith(":") else l.strip())
    def label(self, l):
        self.lines.append(l + ":")
    def text(self):
        return "\n".join(self.lines) + "\n"

def srd(a, d, lo, hi, size):
    a(f"""
    s_mov_b32 s{d}, s{lo}
    s_and_b32 s{d+1}, s{hi}, 0xffff
    s_mov_b32 s{d+2}, {size:#x}
    s_mov_b32 s{d+3}, 0x00020000
    """)

def srd_off(a, d, lo, hi, off, size):
    a(f"""
    s_add_u32 s{d}, s{lo}, {off:#x}
    s_addc_u32 s{d+1}, s{hi}, 0
    s_and_b32 s{d+1}, s{d+1}, 0xffff
    s_mov_b32 s{d+2}, {size:#x}
    s_mov_b32 s{d+3}, 0x00020000
    """)

def stamp(a, i):
    if 'stamp' not in VAR: return
    a(f"s_memtime s[{60+2*i}:{61+2*i}]")
    if i == 0:
        a("s_memrealtime s[76:77]")
    a("s_waitcnt lgkmcnt(0)")

def stamp_out(a, kidx, n, lab):
    if 'stamp' not in VAR: return
    a(f"""
    s_memtime s[{60+2*n}:{61+2*n}]
    s_memrealtime s[78:79]
    s_cmp_lg_u32 s3, 0
    s_cbranch_scc1 {lab}
    s_add_u32 s80, s6, {0x4000000 + kidx*0x100000:#x}
    s_addc_u32 s81, s7, 0
    s_and_b32 s81, s81, 0xffff
    s_mov_b32 s82, 0x100000
    s_mov_b32 s83, 0x00020000
    s_lshl_b32 s84, s2, 6
    v_mov_b32 v1, 0
    s_waitcnt lgkmcnt(0)
    """)
    for i in list(range(n + 1)) + [8, 9]:
        a(f"v_mov_b32 v2, s{60+2*i}")
        a(f"buffer_store_dword v2, v1, s[80:83], s84 offen offset:{4*i}")

def rho_of_row(i):
    if i < 8: return i
    if i < 12: return 256 + 2 * (i - 8)
    if i < 16: return 512 + 4 * ((i - 12) & 1) + 256 * ((i - 12) >> 1)
    if i < 20: return 1024 + 256 * (i - 16)
    return 2048

KSTEPS = [(0, b) for b in range(8)] + [(1,0),(1,2),(1,4),(1,6),(1,1),(1,3),(2,0),(2,4),(2,1),(2,3),(3,0),(3,4),(3,1)] \
       + [(1,5),(1,7),(2,2),(2,5),(2,6),(2,7),(3,2),(3,3),(3,5),(3,6),(3,7)]
def rho_of_step(m, b):
    if m == 0 or b not in (1, 3): return 256 * m + b
    return 256 * (m + (3 if b == 1 else 6))
ROWSLOT = {rho_of_step(m, b): s for s, (m, b) in enumerate(KSTEPS[:21])}
COLSLOT = {8 * m + b: s for s, (m, b) in enumerate(KSTEPS)}

N_LN = 256
N_KG = int(os.environ.get('NKG', '256'))
K1_LDS = 53632
LRS = 1088

def gen_k1(a):
    a.label("k1_kernel")
    a(f"""
    s_cmp_ge_u32 s2, {N_LN + N_KG}
    s_cbranch_scc1 k1_done
    v_lshrrev_b32 v1, 6, v0
    v_and_b32 v2, 63, v0              ; lane
    s_load_dwordx2 s[6:7], s[0:1], 112 ; ws
    v_readfirstlane_b32 s3, v1
    s_cmp_lt_u32 s2, {N_KG}
    s_cbranch_scc1 k1_kg
    {'s_branch k1_done' if 'k1_noln' in VAR else ''}
    s_load_dwordx2 s[4:5], s[0:1], 0  ; x
    s_setprio {os.environ.get('PLN', '0')}
    s_load_dwordx8 s[40:47], s[0:1], 8
    s_load_dwordx4 s[48:51], s[0:1], 40
    s_load_dwordx2 s[52:53], s[0:1], 80  ; w1
    v_lshlrev_b32 v3, 4, v2           ; lane*16
    s_movk_i32 s22, {XT_RS}
    v_mul_lo_u32 v5, v0, s22          ; t*4224
    s_waitcnt lgkmcnt(0)
    """)
    stamp(a, 0)
    srd_off(a, 16, 6, 7, XT0_OFF, XT_SZ)
    srd(a, 8, 4, 5, 0x200000)
    srd(a, 12, 6, 7, 0x200000)
    a(f"""
    s_and_b32 s20, s2, 7
    s_lshl_b32 s20, s20, 5
    s_sub_u32 s21, s2, {N_KG}
    s_lshr_b32 s21, s21, 3
    s_add_u32 s20, s20, s21           ; rb
    s_lshl_b32 s21, s20, 13           ; rb*8*1024
    s_lshl_b32 s22, s3, 11
    s_add_u32 s21, s21, s22           ; + 2*wave*1024
    buffer_load_dwordx4 v[10:13], v3, s[8:11], s21 offen
    buffer_load_dwordx4 v[14:17], v3, s[8:11], s21 offen offset:1024
    """)
    NPF = 0
    if 'nopf' not in VAR and N_KG == 256:
        a(f"""
        s_lshl_b32 s22, s2, 8                ; (256 + i) * 256
        v_lshl_add_u32 v66, v2, 2, s22
        """)
        for lo in [40, 42, 44, 46, 48, 50]:
            srd(a, 28, lo, lo + 1, 512 * 256)
            a("buffer_load_dword v68, v66, s[28:31], 0 offen")
        NPF = 6
        if 'pwln' in VAR:
            srd(a, 28, 52, 53, 512 * 2752)
            a("""
            s_and_b32 s22, s2, 0xff
            s_lshl_b32 s22, s22, 6
            v_lshl_add_u32 v66, v0, 14, s22
            buffer_load_dword v68, v66, s[28:31], 0 offen
            """)
            NPF = 7
    a(f"""
    s_mov_b32 s23, 0xffff0000
    s_mov_b32 s34, 0x3b000000         ; 1/512
    s_mov_b32 s35, 0x3727c5ac         ; 1e-5f
    s_mul_i32 s22, s3, {2*LRS}
    v_add_u32 v4, s22, v3
    v_bfe_u32 v6, v2, 2, 2
    v_mul_u32_u24 v6, {LRS}, v6
    v_lshrrev_b32 v7, 4, v0
    v_lshl_add_u32 v6, v7, 5, v6
    v_and_b32 v7, 3, v2
    v_lshl_add_u32 v6, v7, 3, v6
    s_lshl_b32 s24, s20, 4
    s_add_u32 s24, s24, 64
    s_add_u32 s25, s24, {256*XT_RS:#x}
    v_and_b32 v8, 7, v0               ; row
    v_lshrrev_b32 v9, 3, v0           ; chunk (0..31)
    v_mul_u32_u24 v7, {LRS}, v8
    v_lshl_add_u32 v7, v9, 4, v7
    v_lshlrev_b32 v9, 9, v9
    v_lshl_add_u32 v9, v8, 4, v9
    v_mov_b32 v8, v7
    s_lshr_b32 s21, s20, 2
    s_lshl_b32 s21, s21, 15           ; rowblock*32768
    s_and_b32 s22, s20, 3
    s_lshl_b32 s22, s22, 7
    s_add_u32 s21, s21, s22           ; + (rb&3)*128
    s_add_u32 s22, s21, 0x4000        ; chunks 32..63
    """)
    X = [20, 28]
    S = [36, 37]
    for r in range(2):
        a(f"s_waitcnt vmcnt({NPF+1-r})")
        for j in range(4):
            a(f"v_lshlrev_b32 v{X[r]+2*j}, 16, v{10+4*r+j}")
            a(f"v_and_b32 v{X[r]+2*j+1}, s23, v{10+4*r+j}")
        t = 40 + 4 * r
        a(f"""
        v_add_f32 v{t}, v{X[r]}, v{X[r]+1}
        v_add_f32 v{t+1}, v{X[r]+2}, v{X[r]+3}
        v_add_f32 v{t+2}, v{X[r]+4}, v{X[r]+5}
        v_add_f32 v{t+3}, v{X[r]+6}, v{X[r]+7}
        v_add_f32 v{t}, v{t}, v{t+1}
        v_add_f32 v{t+2}, v{t+2}, v{t+3}
        v_add_f32 v{S[r]}, v{t}, v{t+2}
        """)
    def wave_reduce():
        for ctrl in ["row_shr:1", "row_shr:2", "row_shr:4", "row_shr:8"]:
            for r in range(2):
                a(f"v_add_f32_dpp v{S[r]}, v{S[r]}, v{S[r]} {ctrl} row_mask:0xf bank_mask:0xf bound_ctrl:0")
            a("s_nop 0")
        for r in range(2):
            a(f"v_add_f32_dpp v{S[r]}, v{S[r]}, v{S[r]} row_bcast:15 row_mask:0xa bank_mask:0xf")
        a("s_nop 0")
        for r in range(2):
            a(f"v_add_f32_dpp v{S[r]}, v{S[r]}, v{S[r]} row_bcast:31 row_mask:0xc bank_mask:0xf")
        a("s_nop 1")
        for r in range(2):
            a(f"v_readlane_b32 s{26+r}, v{S[r]}, 63")
        a("s_nop 1")
    stamp(a, 1)
    wave_reduce()
    M = [38, 39]
    for r in range(2):
        a(f"v_mov_b32 v{M[r]}, s{26+r}")
        a(f"v_mul_f32 v{M[r]}, s34, v{M[r]}")
    for r in range(2):
        t = 40 + 10 * r
        for k in range(8):
            a(f"v_sub_f32 v{t+k}, v{X[r]+k}, v{M[r]}")
        a(f"v_mul_f32 v{S[r]}, v{t}, v{t}")
        a(f"v_mul_f32 v{t+8}, v{t+1}, v{t+1}")
        for k in range(2, 8, 2):
            a(f"v_fmac_f32 v{S[r]}, v{t+k}, v{t+k}")
            a(f"v_fmac_f32 v{t+8}, v{t+k+1}, v{t+k+1}")
        a(f"v_add_f32 v{S[r]}, v{S[r]}, v{t+8}")
    a("s_nop 1")
    wave_reduce()
    RI = [60, 61]
    for r in range(2):
        t = 40 + 4 * r
        a(f"""
        v_mov_b32 v{t}, s{26+r}
        v_mul_f32 v{t}, s34, v{t}
        v_cvt_pk_bf16_f32 v{t}, v{t}, v{t}
        v_and_b32 v{t}, s23, v{t}
        v_add_f32 v{t}, s35, v{t}
        v_cvt_pk_bf16_f32 v{t}, v{t}, v{t}
        v_and_b32 v{t}, s23, v{t}
        v_sqrt_f32 v{t+1}, v{t}
        v_cvt_pk_bf16_f32 v{M[r]}, v{M[r]}, v{M[r]}
        v_rcp_f32 v{t+2}, v{t+1}
        v_and_b32 v{M[r]}, s23, v{M[r]}
        v_fma_f32 v{t+3}, -v{t+1}, v{t+1}, v{t}
        v_mul_f32 v{t+2}, 0.5, v{t+2}
        v_fma_f32 v{t+1}, v{t+3}, v{t+2}, v{t+1}
        v_cvt_pk_bf16_f32 v{t+1}, v{t+1}, v{t+1}
        v_and_b32 v{t+1}, s23, v{t+1}
        v_rcp_f32 v{RI[r]}, v{t+1}
        """)
    for r in range(2):
        for k in range(8):
            a(f"v_sub_f32 v{X[r]+k}, v{X[r]+k}, v{M[r]}")
        for j in range(4):
            a(f"v_cvt_pk_bf16_f32 v{10+4*r+j}, v{X[r]+2*j}, v{X[r]+2*j+1}")
        for j in range(4):
            a(f"v_lshlrev_b32 v{X[r]+2*j}, 16, v{10+4*r+j}")
            a(f"v_and_b32 v{X[r]+2*j+1}, s23, v{10+4*r+j}")
        for k in range(8):
            a(f"v_mul_f32 v{X[r]+k}, v{X[r]+k}, v{RI[r]}")
        for j in range(4):
            a(f"v_cvt_pk_bf16_f32 v{10+4*r+j}, v{X[r]+2*j}, v{X[r]+2*j+1}")
        a(f"ds_write_b128 v4, v[{10+4*r}:{13+4*r}] offset:{r*LRS}")
    a("""
    s_waitcnt lgkmcnt(0)
    s_barrier
    """)
    stamp(a, 2)
    a(f"""
    ds_read_b64_tr_b16 v[20:21], v6
    ds_read_b64_tr_b16 v[22:23], v6 offset:{4*LRS}
    ds_read_b64_tr_b16 v[24:25], v6 offset:512
    ds_read_b64_tr_b16 v[26:27], v6 offset:{4*LRS+512}
    ds_read_b128 v[28:31], v8
    ds_read_b128 v[32:35], v8 offset:512
    s_waitcnt lgkmcnt(4)
    buffer_store_dwordx4 v[20:23], v5, s[16:19], s24 offen
    s_waitcnt lgkmcnt(2)
    buffer_store_dwordx4 v[24:27], v5, s[16:19], s25 offen
    s_waitcnt lgkmcnt(1)
    buffer_store_dwordx4 v[28:31], v9, s[12:15], s21 offen sc0 sc1
    s_waitcnt lgkmcnt(0)
    buffer_store_dwordx4 v[32:35], v9, s[12:15], s22 offen sc0 sc1
    """)
    stamp_out(a, 0, 3, "k1_done")
    a("s_branch k1_done")
    a.label("k1_kg")
    import gen2
    gen2.kgen(a)
    a.label("k1_done")
    a("s_endpgm")

def descriptor(name, vgpr, sgpr=102):
    acc = (vgpr + 3) // 4 * 4
    return f""".amdhsa_kernel {name}
  .amdhsa_next_free_vgpr {vgpr}
  .amdhsa_next_free_sgpr {sgpr}
  .amdhsa_accum_offset {acc}
  .amdhsa_group_segment_fixed_size 0
  .amdhsa_kernarg_size 120
  .amdhsa_user_sgpr_count 2
  .amdhsa_user_sgpr_kernarg_segment_ptr 1
  .amdhsa_system_sgpr_workgroup_id_x 1
  .amdhsa_float_denorm_mode_32 3
.end_amdhsa_kernel
"""

def main():
    kernels = []
    launches = []
    a = Asm()
    gen_k1(a)
    kernels.append(("k1_kernel", a.text(), 128))
    launches.append(f"; @launch kernel=k1_kernel grid=({N_LN+N_KG},1,1) block=(256,1,1) lds={K1_LDS}")
    try:
        import gen2
        gen2.add(kernels, launches)
    except ImportError:
        pass
    hdr = open("cdna_kernels/" + NAME + ".s.ref").read().split("\n")
    out = []
    for l in hdr:
        if l.startswith("; @launch"):
            break
        out.append(l)
    out += launches
    out.append('.amdgcn_target "amdgcn-amd-amdhsa--gfx950"')
    out.append(".text")
    for name, text, vg in kernels:
        out.append(f".globl {name}")
        out.append(".p2align 8")
        out.append(f".type {name},@function")
        out.append(text)
    out.append('.section .rodata,"a"')
    for name, text, vg in kernels:
        out.append(".p2align 6")
        out.append(descriptor(name, vg))
    open(os.environ.get("OUT", "cdna_kernels/" + NAME + ".s"), "w").write("\n".join(out))

if __name__ == "__main__":
    main()
```
